```python
import torch

def _softmax(x, axis=-1):
    return torch.softmax(x, dim=axis)
def _gelu(x):
    return torch.nn.functional.gelu(x, approximate="tanh")
def _silu(x):
    return torch.nn.functional.silu(x)
def _sigmoid(x):
    return torch.sigmoid(x)
def _layernorm(x, axis=-1, eps=1e-5):
    m = x.mean(dim=axis, keepdim=True)
    v = x.var(dim=axis, keepdim=True, unbiased=False)
    return (x - m) / torch.sqrt(v + eps)
def _scatter_add(tgt, idx, src, axis=0):
    return tgt.clone().index_add_(axis, idx, src)
def _segment_sum(src, seg, n):
    out = torch.zeros((n,) + src.shape[1:], dtype=src.dtype)
    return out.index_add_(0, seg, src)
def _pad(x, pw):
    flat = tuple(v for pair in reversed(pw) for v in pair)
    return torch.nn.functional.pad(x, flat)

kernel_name = 'standalone__sliding_block_cached__sampling'

def setup_inputs():

    _w = (lambda a: (lambda t: t.to(torch.bfloat16) if t.is_floating_point() else t)(torch.as_tensor(a)))
    B, Sq, D = 8, 4, 640
    Hq, Hkv, Sk, Dh = 32, 32, 4096, 192
    assert Hq % Hkv == 0, (Hq, Hkv)
    return {
        "x": _w((lambda *s: torch.randn(*s, dtype=torch.bfloat16) * 0.8)(B, Sq, D)),
        "k_cache": _w((lambda *s: torch.randn(*s, dtype=torch.bfloat16) * 0.8)(B, Hkv, Sk, Dh)),
        "v_cache": _w((lambda *s: torch.randn(*s, dtype=torch.bfloat16) * 0.05)(B, Hkv, Sk, Dh)),
        "wq": _w((lambda *s: torch.randn(*s, dtype=torch.bfloat16) * 0.8)(D, Hq * Dh) * (D ** -0.5)),
        "wo": _w((lambda *s: torch.randn(*s, dtype=torch.bfloat16) * 0.05)(Hq * Dh, D) * ((Hq * Dh) ** -0.5)),
    }

def reference(x, k_cache, v_cache, wq, wo):
    B, Sq, D = x.shape
    Hq, Dh = 32, 192
    Hkv, Sk = k_cache.shape[1], k_cache.shape[2]
    W = min(4096, max(256, Sk // 4))
    rep = Hq // Hkv
    q = (lambda x, *d: x.permute(*d))((x @ wq).reshape(B, Sq, Hq, Dh), 0, 2, 1, 3)
    k = (lambda x, n, axis: torch.repeat_interleave(x, n, dim=axis))(k_cache[:, :, Sk - W:, :], rep, axis=1)
    v = (lambda x, n, axis: torch.repeat_interleave(x, n, dim=axis))(v_cache[:, :, Sk - W:, :], rep, axis=1)
    scores = torch.einsum("bhqd,bhkd->bhqk", q, k) * (Dh ** -0.5)
    p = _softmax(scores, axis=-1)
    o = torch.einsum("bhqk,bhkd->bhqd", p, v)
    return (lambda x, *d: x.permute(*d))(o, 0, 2, 1, 3).reshape(B, Sq, Hq * Dh) @ wo
```

```python
import struct, sys

KN = "standalone__sliding_block_cached__sampling_kernel"
RN = "reduce_heads_kernel"

def f32(x):
    return struct.unpack("<I", struct.pack("<f", x))[0]

class E:
    def __init__(self):
        self.lines = []
        self.vm = []
    def __call__(self, s=""):
        self.lines.append("    " + s if s and not s.endswith(":") else s)
    def c(self, s):
        self.lines.append("    ; " + s)
    def vmop(self, s, tag):
        self(s)
        self.vm.append(tag)
    def wait_vm(self, tag):
        idx = max([i for i, t in enumerate(self.vm) if t == tag], default=-1)
        if idx < 0:
            return
        n = len(self.vm) - 1 - idx
        self(f"s_waitcnt vmcnt({min(n, 63)})")
        self.vm = self.vm[idx + 1:]
    def text(self):
        return "\n".join(self.lines) + "\n"

SLOT = 6144
NSLOT = 6
RING = SLOT * NSLOT
MISC = 4 * RING
PART = MISC
QBF = MISC + 12288
RMAX = QBF + 1536
RSUM = RMAX + 256
LDS_BYTES = RSUM + 256

S_W = 3
S_X, S_K, S_V, S_WQ, S_WO, S_OUT, S_DBG, S_WS = 4, 6, 8, 10, 12, 14, 16, 18
R_K, R_V, R_WQ, R_WO, R_X, R_WS, R_OUT, R_DBG = 20, 24, 28, 32, 36, 40, 44, 48
S_B, S_H, S_RING, S_OFF, S_T0, S_T1 = 52, 53, 54, 55, 56, 57
S_KW = 58
S_QW = 59
S_TP = 60
S_SCALE, S_L2E = 70, 71
S_ST = 72

V_L = 1
V_KV = 2
V_WQ = 8
V_WO = 14
V_KA = 19
V_VA = 21
V_WA = 25
V_PW = 26
V_PR = 27
V_BW = 28
V_BR = 29
V_BO = 30
V_RW = 31
V_RR = 32
V_M = 33
V_T = 34
V_ST = 39
V_RD = 40
V_ACC = 64
V_QB = 112
V_S = 136
V_P = 200
V_XR = 232
NV = 256

def srd(e, r, base, off, nbytes):
    if off is None:
        e(f"s_mov_b32 s{r}, s{base}")
        e(f"s_and_b32 s{r+1}, s{base+1}, 0xffff")
    else:
        e(f"s_add_u32 s{r}, s{base}, s{off}")
        e(f"s_addc_u32 s{r+1}, s{base+1}, 0")
        e(f"s_and_b32 s{r+1}, s{r+1}, 0xffff")
    if isinstance(nbytes, str):
        e(f"s_mov_b32 s{r+2}, {nbytes}")
    else:
        e(f"s_mov_b32 s{r+2}, {nbytes}")
    e(f"s_mov_b32 s{r+3}, 0x20000")

def gen(nb=4, depth=6, wo_first=7, wo_step=2, f_kv="nt", f_wq="nt", f_wo="nt", f_x="", hmap=1,
        stagger=1, stamps=0, qrot=1):
    e = E()
    nst = [0]
    def stamp():
        if stamps:
            e(f"s_memrealtime s[{S_ST+2*nst[0]}:{S_ST+2*nst[0]+1}]")
            nst[0] += 1

    e(f"{KN}:")
    e("s_cmp_ge_u32 s2, 256")
    e("s_cbranch_scc1 L_end")
    stamp()
    e("s_load_dwordx16 s[4:19], s[0:1], 0")
    e(f"v_lshrrev_b32 v{V_T}, 6, v0")
    e(f"v_and_b32 v{V_L}, 63, v0")
    e(f"v_readfirstlane_b32 s{S_W}, v{V_T}")
    if hmap:
        e(f"s_and_b32 s{S_H}, s2, 7")
        e(f"s_lshl_b32 s{S_H}, s{S_H}, 2")
        e(f"s_bfe_u32 s{S_T0}, s2, 0x20003")
        e(f"s_add_u32 s{S_H}, s{S_H}, s{S_T0}")
    else:
        e(f"s_and_b32 s{S_H}, s2, 31")
    e(f"s_lshr_b32 s{S_B}, s2, 5")
    e(f"s_mul_i32 s{S_RING}, s{S_W}, {RING}")
    e(f"s_mul_i32 s{S_KW}, s{S_W}, {SLOT}")
    e(f"s_mul_i32 s{S_QW}, s{S_W}, {160*12288}")
    e.c("rotated wq tile order")
    if qrot:
        e(f"s_lshr_b32 s{S_T0}, s{S_B}, {1 if stagger else 0}")
        e(f"s_mul_i32 s{S_T0}, s{S_T0}, {10 if stagger else 5}")
        e(f"s_add_u32 s{S_T0}, s{S_T0}, 2")
        e(f"s_lshr_b32 s{S_TP}, s{S_T0}, 2")
    else:
        e(f"s_mov_b32 s{S_TP}, 0")
    for p in range(1, 10):
        e(f"s_add_u32 s{S_TP+p}, s{S_TP+p-1}, 1")
        e(f"s_cmp_eq_u32 s{S_TP+p}, 10")
        e(f"s_cselect_b32 s{S_TP+p}, 0, s{S_TP+p}")
    e(f"s_mov_b32 s{S_SCALE}, {f32(192 ** -0.5):#x}")
    e(f"s_mov_b32 s{S_L2E}, {f32(1.4426950408889634):#x}")
    T = V_T
    e.c("DMA source offsets")
    e(f"v_lshrrev_b32 v{T}, 3, v{V_L}")
    e(f"v_and_b32 v{T+1}, 7, v{V_L}")
    for i in range(6):
        e(f"v_add_u32 v{T+2}, {8*i}, v{T}")
        e(f"v_mul_u32_u24 v{T+3}, 43, v{T+2}")
        e(f"v_lshrrev_b32 v{T+3}, 7, v{T+3}")
        e(f"v_and_b32 v{T+4}, 6, v{T+3}")
        e(f"v_xor_b32 v{T+4}, v{T+4}, v{T+1}")
        e(f"v_lshlrev_b32 v{T+4}, 4, v{T+4}")
        e(f"v_lshl_add_u32 v{V_KV+i}, v{T+2}, 7, v{T+4}")
        e(f"v_mul_u32_u24 v{T+3}, {12288-384}, v{T+3}")
        e(f"v_add_u32 v{V_WQ+i}, v{V_KV+i}, v{T+3}")
    e.c("g = lane>>4, s = lane&3")
    G, SS = T, T + 1
    e(f"v_lshrrev_b32 v{G}, 4, v{V_L}")
    e(f"v_and_b32 v{SS}, 3, v{V_L}")
    e.c("x operand offset")
    XO = V_RD
    e(f"v_mul_u32_u24 v{XO}, 1280, v{SS}")
    e(f"v_lshl_add_u32 v{XO}, v{G}, 3, v{XO}")
    e(f"s_mul_i32 s{S_T0}, s{S_W}, 320")
    e(f"v_add_u32 v{XO}, s{S_T0}, v{XO}")
    e("s_waitcnt lgkmcnt(0)")
    e(f"s_mul_i32 s{S_T0}, s{S_B}, 5120")
    srd(e, R_X, S_X, S_T0, 5120)
    e(f"s_mul_i32 s{S_T0}, s{S_H}, 384")
    e(f"s_sub_u32 s{S_T1}, {640*12288}, s{S_T0}")
    srd(e, R_WQ, S_WQ, S_T0, f"s{S_T1}")
    e(f"s_lshl_b32 s{S_T0}, s{S_B}, 5")
    e(f"s_add_u32 s{S_T0}, s{S_T0}, s{S_H}")
    e(f"s_mul_i32 s{S_T0}, s{S_T0}, 1572864")
    e(f"s_add_u32 s{S_T0}, s{S_T0}, {3072*384}")
    srd(e, R_K, S_K, S_T0, 393216)
    srd(e, R_V, S_V, S_T0, 393216)

    def issue(tile, slot):
        kind, t = tile
        if kind in "KV":
            r = R_K if kind == "K" else R_V
            e(f"s_add_u32 s{S_OFF}, s{S_KW}, {t*4*SLOT}")
            for i in range(6):
                e(f"s_add_u32 m0, s{S_RING}, {slot*SLOT + i*1024}")
                e("s_nop 0")
                e.vmop(f"buffer_load_dwordx4 v{V_KV+i}, s[{r}:{r+3}], s{S_OFF} offen {f_kv} lds", tile)
        elif kind == "Q":
            e(f"s_mul_i32 s{S_OFF}, s{S_TP+t}, {16*12288}")
            e(f"s_add_u32 s{S_OFF}, s{S_OFF}, s{S_QW}")
            for i in range(6):
                e(f"s_add_u32 m0, s{S_RING}, {slot*SLOT + i*1024}")
                e("s_nop 0")
                e.vmop(f"buffer_load_dwordx4 v{V_WQ+i}, s[{R_WQ}:{R_WQ+3}], s{S_OFF} offen {f_wq} lds", tile)
        elif kind == "O":
            e(f"s_mov_b32 s{S_OFF}, {t*16*1280}")
            for i in range(5):
                e(f"s_add_u32 m0, s{S_RING}, {slot*SLOT + i*1024}")
                e("s_nop 0")
                e.vmop(f"buffer_load_dwordx4 v{V_WO+i}, s[{R_WO}:{R_WO+3}], s{S_OFF} offen {f_wo} lds", tile)

    def xloads():
        for p in range(10):
            e(f"s_lshl_b32 s{S_OFF}, s{S_TP+p}, 5")
            e.vmop(f"buffer_load_dwordx2 v[{V_XR+2*p}:{V_XR+2*p+1}], v{XO}, s[{R_X}:{R_X+3}], s{S_OFF} offen {f_x}", "x")

    def late_setup():
        e.c("remaining address registers and descriptors")
        e(f"s_mul_i32 s{S_T0}, s{S_H}, 245760")
        srd(e, R_WO, S_WO, S_T0, 245760)
        e(f"s_mul_i32 s{S_T0}, s{S_W}, 320")
        for i in range(5):
            e(f"v_add_u32 v{T+2}, {64*i}, v{V_L}")
            e(f"v_mul_u32_u24 v{T+3}, 205, v{T+2}")
            e(f"v_lshrrev_b32 v{T+3}, 12, v{T+3}")
            e(f"v_mul_u32_u24 v{T+3}, {1280-320}, v{T+3}")
            e(f"v_lshl_add_u32 v{T+3}, v{T+2}, 4, v{T+3}")
            e(f"v_add_u32 v{V_WO+i}, s{S_T0}, v{T+3}")
        e.c("K operand read addresses")
        e(f"v_and_b32 v{T+2}, 15, v{V_L}")
        e(f"v_and_b32 v{T+3}, 6, v{T+2}")
        e(f"v_xor_b32 v{T+3}, v{T+3}, v{G}")
        e(f"v_lshlrev_b32 v{T+3}, 4, v{T+3}")
        e(f"v_mul_u32_u24 v{T+2}, 384, v{T+2}")
        e(f"v_add3_u32 v{V_KA}, v{T+2}, v{T+3}, s{S_RING}")
        e(f"v_xor_b32 v{V_KA+1}, 64, v{V_KA}")
        e.c("transposing read addresses: key = lane>>2, c = lane&3")
        e(f"v_lshrrev_b32 v{T+2}, 2, v{V_L}")
        e(f"v_and_b32 v{T+3}, 6, v{T+2}")
        e(f"v_lshlrev_b32 v{T+3}, 4, v{T+3}")
        e(f"v_lshl_add_u32 v{T+3}, v{SS}, 3, v{T+3}")
        e(f"v_mul_u32_u24 v{T+4}, 384, v{T+2}")
        e(f"v_add3_u32 v{V_VA}, v{T+4}, v{T+3}, s{S_RING}")
        for q in range(1, 4):
            e(f"v_xor_b32 v{V_VA+q}, {32*q}, v{V_VA}")
        e(f"v_mul_u32_u24 v{T+4}, 320, v{T+2}")
        e(f"v_lshl_add_u32 v{T+4}, v{SS}, 3, v{T+4}")
        e(f"v_add_u32 v{V_WA}, s{S_RING}, v{T+4}")
        e.c("cross-wave exchange addresses")
        e(f"s_mul_i32 s{S_T0}, s{S_W}, 3072")
        e(f"s_add_u32 s{S_T0}, s{S_T0}, {PART}")
        e(f"v_mul_u32_u24 v{T+2}, 768, v{SS}")
        e(f"v_lshl_add_u32 v{T+2}, v{G}, 4, v{T+2}")
        e(f"v_add_u32 v{V_PW}, s{S_T0}, v{T+2}")
        e(f"v_lshlrev_b32 v{T+2}, 4, v0")
        e(f"v_add_u32 v{V_PR}, {PART}, v{T+2}")
        e(f"v_lshlrev_b32 v{T+2}, 3, v0")
        e(f"v_add_u32 v{V_BW}, {QBF}, v{T+2}")
        e(f"v_mul_u32_u24 v{T+2}, 384, v{SS}")
        e(f"v_add_u32 v{T+2}, {QBF}, v{T+2}")
        e(f"v_lshl_add_u32 v{V_BR}, v{G}, 4, v{T+2}")
        e(f"v_lshl_add_u32 v{V_BO}, v{G}, 3, v{T+2}")
        e(f"v_lshlrev_b32 v{T+2}, 6, v{SS}")
        e(f"v_add_u32 v{V_RR}, {RMAX}, v{T+2}")
        e(f"s_lshl_b32 s{S_T0}, s{S_W}, 4")
        e(f"v_lshl_add_u32 v{T+2}, v{G}, 2, v{V_RR}")
        e(f"v_add_u32 v{V_RW}, s{S_T0}, v{T+2}")

    def tr_reads(slot):
        for dt in range(12):
            e(f"ds_read_b64_tr_b16 v[{V_RD+2*dt}:{V_RD+2*dt+1}], v{V_VA + (dt & 3)} offset:{slot*SLOT + 128*(dt >> 2)}")

    def pv_mfma(breg, first):
        for dt in range(12):
            a = V_ACC + 4 * dt
            cc = "0" if first else f"v[{a}:{a+3}]"
            e(f"v_mfma_f32_16x16x16_bf16 v[{a}:{a+3}], v[{V_RD+2*dt}:{V_RD+2*dt+1}], v[{breg}:{breg+1}], {cc}")

    def consume_q(p, slot, nxt):
        e.wait_vm(("Q", p))
        tr_reads(slot)
        e("s_waitcnt lgkmcnt(0)")
        if nxt is not None:
            issue(nxt, slot)
        pv_mfma(V_XR + 2 * p, p == 0)

    kslot = {0: 4, 1: 5, 2: 0, 3: 1, 4: 2, 5: 3}
    def prologue_a():
        xloads()
        for p in range(6):
            issue(("Q", p), p)
        late_setup()
        for p in range(10):
            nxt = ("Q", p + 6) if p < 4 else ("K", p - 4)
            consume_q(p, p % 6, nxt)
    def prologue_b():
        xloads()
        for t in range(nb):
            issue(("K", t), kslot[t])
        nq = 6 - nb
        qs = [kslot[t] for t in range(nb, 6)]
        slot_of = {p: qs[(p - (10 - nq)) % nq] for p in range(10)}
        for p in range(nq):
            issue(("Q", p), slot_of[p])
        late_setup()
        for p in range(10):
            nxt = ("Q", p + nq) if p + nq < 10 else ("K", nb + p - (10 - nq))
            consume_q(p, slot_of[p], nxt)

    if stagger:
        e(f"s_bitcmp1_b32 s{S_B}, 0")
        e("s_cbranch_scc1 L_grp_b")
        prologue_a()
        e("s_branch L_merge")
        e("L_grp_b:")
        e.vm = []
        prologue_b()
        e("L_merge:")
    else:
        prologue_a()
    e.vm = [("K", t) for t in range(6) for _ in range(6)]
    stamp()

    def reduce_partials(label):
        e.c("sum the four waves' partial rows, round to bf16")
        e("s_nop 7")
        e("s_mov_b32 exec_lo, 0x000f000f")
        e("s_mov_b32 exec_hi, 0x000f000f")
        for dt in range(12):
            a = V_ACC + 4 * dt
            e(f"ds_write_b128 v{V_PW}, v[{a}:{a+3}] offset:{64*dt}")
        e("s_mov_b64 exec, -1")
        e("s_waitcnt lgkmcnt(0)")
        e("s_barrier")
        e(f"s_cmp_eq_u32 s{S_W}, 3")
        e(f"s_cbranch_scc1 {label}")
        for w in range(4):
            e(f"ds_read_b128 v[{V_RD+4*w}:{V_RD+4*w+3}], v{V_PR} offset:{3072*w}")
        e("s_waitcnt lgkmcnt(0)")
        for r in range(4):
            e(f"v_add_f32 v{V_RD+r}, v{V_RD+r}, v{V_RD+4+r}")
        for r in range(4):
            e(f"v_add_f32 v{V_RD+8+r}, v{V_RD+8+r}, v{V_RD+12+r}")
        for r in range(4):
            e(f"v_add_f32 v{V_RD+r}, v{V_RD+r}, v{V_RD+8+r}")
        e(f"v_cvt_pk_bf16_f32 v{V_RD+4}, v{V_RD}, v{V_RD+1}")
        e(f"v_cvt_pk_bf16_f32 v{V_RD+5}, v{V_RD+2}, v{V_RD+3}")
        e(f"ds_write_b64 v{V_BW}, v[{V_RD+4}:{V_RD+5}]")
        e("s_waitcnt lgkmcnt(0)")
        e(f"{label}:")
        e("s_barrier")

    reduce_partials("L_qred")
    for j in range(6):
        e(f"ds_read_b128 v[{V_QB+4*j}:{V_QB+4*j+3}], v{V_BR} offset:{64*j}")
    e(f"v_mov_b32 v{V_M}, 0xff800000")
    e("s_waitcnt lgkmcnt(0)")
    stamp()

    kv = [("K", t) for t in range(16)] + [("V", t) for t in range(16)]
    seq = []
    wo_i = 0
    for n, tl in enumerate(kv):
        seq.append(tl)
        if n + 1 >= wo_first and (n + 1 - wo_first) % wo_step == 0 and wo_i < 12:
            seq.append(("O", wo_i)); wo_i += 1
    assert wo_i == 12
    slot_of = {("K", t): kslot[t] for t in range(6)}
    free = []
    st = {"issued": 6}
    def issue_upto(n):
        while st["issued"] < min(n, len(seq)) and free:
            tl = seq[st["issued"]]
            sl = free.pop(0)
            slot_of[tl] = sl
            issue(tl, sl)
            st["issued"] += 1

    def score_post(t):
        s = V_S + 4 * t
        a, b = T + 2, T + 3
        for rnd in range(2):
            e(f"v_cvt_pk_bf16_f32 v{a}, v{s}, v{s+1}")
            e(f"v_cvt_pk_bf16_f32 v{b}, v{s+2}, v{s+3}")
            e(f"v_lshlrev_b32 v{s}, 16, v{a}")
            e(f"v_and_b32 v{s+1}, 0xffff0000, v{a}")
            e(f"v_lshlrev_b32 v{s+2}, 16, v{b}")
            e(f"v_and_b32 v{s+3}, 0xffff0000, v{b}")
            if rnd == 0:
                for r in range(4):
                    e(f"v_mul_f32 v{s+r}, s{S_SCALE}, v{s+r}")
        e(f"v_max3_f32 v{V_M}, v{V_M}, v{s}, v{s+1}")
        e(f"v_max3_f32 v{V_M}, v{V_M}, v{s+2}, v{s+3}")

    def softmax(pos):
        e.c("softmax over the 1024 keys of each query row")
        e("s_nop 7")
        score_post(15)
        e(f"ds_write_b32 v{V_RW}, v{V_M}")
        e("s_waitcnt lgkmcnt(0)")
        e("s_barrier")
        for i in range(4):
            e(f"ds_read_b128 v[{V_RD+4*i}:{V_RD+4*i+3}], v{V_RR} offset:{16*i}")
        e("s_waitcnt lgkmcnt(0)")
        for i in range(8):
            e(f"v_max3_f32 v{V_M}, v{V_M}, v{V_RD+2*i}, v{V_RD+2*i+1}")
        e(f"v_mul_f32 v{V_M}, s{S_L2E}, v{V_M}")
        issue_upto(pos + 1 + 5)
        l0, l1 = T + 2, T + 3
        for r in range(64):
            e(f"v_fma_f32 v{V_S+r}, v{V_S+r}, s{S_L2E}, -v{V_M}")
        for r in range(64):
            e(f"v_exp_f32 v{V_S+r}, v{V_S+r}")
        e(f"v_add_f32 v{l0}, v{V_S}, v{V_S+1}")
        e(f"v_add_f32 v{l1}, v{V_S+2}, v{V_S+3}")
        for r in range(4, 64, 2):
            e(f"v_add_f32 v{l0}, v{l0}, v{V_S+r}")
            e(f"v_add_f32 v{l1}, v{l1}, v{V_S+r+1}")
        e(f"v_add_f32 v{l0}, v{l0}, v{l1}")
        e(f"ds_write_b32 v{V_RW}, v{l0} offset:{RSUM-RMAX}")
        e("s_waitcnt lgkmcnt(0)")
        e("s_barrier")
        for i in range(4):
            e(f"ds_read_b128 v[{V_RD+4*i}:{V_RD+4*i+3}], v{V_RR} offset:{RSUM-RMAX+16*i}")
        issue_upto(pos + 1 + 6)
        e("s_waitcnt lgkmcnt(0)")
        for i in range(8):
            e(f"v_add_f32 v{V_RD+i}, v{V_RD+i}, v{V_RD+8+i}")
        for i in range(4):
            e(f"v_add_f32 v{V_RD+i}, v{V_RD+i}, v{V_RD+4+i}")
        e(f"v_add_f32 v{V_RD}, v{V_RD}, v{V_RD+1}")
        e(f"v_add_f32 v{V_RD+2}, v{V_RD+2}, v{V_RD+3}")
        e(f"v_add_f32 v{V_RD}, v{V_RD}, v{V_RD+2}")
        e(f"v_rcp_f32 v{l0}, v{V_RD}")
        e("s_nop 0")
        for r in range(64):
            e(f"v_mul_f32 v{V_S+r}, v{l0}, v{V_S+r}")
        for r in range(32):
            e(f"v_cvt_pk_bf16_f32 v{V_P+r}, v{V_S+2*r}, v{V_S+2*r+1}")
        e("s_nop 1")

    for pos, tl in enumerate(seq):
        kind, t = tl
        sl = slot_of[tl]
        e.c(f"consume {kind}{t} from slot {sl}")
        e.wait_vm(tl)
        if kind == "K":
            for j in range(6):
                e(f"ds_read_b128 v[{V_RD+4*j}:{V_RD+4*j+3}], v{V_KA + (j & 1)} offset:{sl*SLOT + 128*(j >> 1)}")
            if t > 0:
                e("s_nop 1")
                score_post(t - 1)
            e("s_waitcnt lgkmcnt(0)")
            s = V_S + 4 * t
            for j in range(6):
                cc = "0" if j == 0 else f"v[{s}:{s+3}]"
                e(f"v_mfma_f32_16x16x32_bf16 v[{s}:{s+3}], v[{V_RD+4*j}:{V_RD+4*j+3}], v[{V_QB+4*j}:{V_QB+4*j+3}], {cc}")
            free.append(sl)
            issue_upto(pos + 1 + depth)
            if t == 15:
                stamp()
                softmax(pos)
                stamp()
        elif kind == "V":
            tr_reads(sl)
            e("s_waitcnt lgkmcnt(0)")
            pv_mfma(V_P + 2 * t, t == 0)
            free.append(sl)
            issue_upto(pos + 1 + depth)
        else:
            j, half = t >> 1, t & 1
            for nt in range(10):
                a = (j * 10 + nt) * 4 + 2 * half
                e(f"ds_read_b64_tr_b16 a[{a}:{a+1}], v{V_WA} offset:{sl*SLOT + 32*nt}")
            e("s_waitcnt lgkmcnt(0)")
            free.append(sl)
            issue_upto(pos + 1 + depth)
    assert st["issued"] == len(seq)
    stamp()

    e.c("output projection of this head")
    e(f"s_lshl_b32 s{S_T0}, s{S_B}, 5")
    e(f"s_add_u32 s{S_T0}, s{S_T0}, s{S_H}")
    e(f"s_mul_i32 s{S_T0}, s{S_T0}, 10240")
    srd(e, R_WS, S_WS, S_T0, 10240)
    e(f"v_lshrrev_b32 v{G}, 4, v{V_L}")
    e(f"v_and_b32 v{SS}, 3, v{V_L}")
    e(f"v_mul_u32_u24 v{T+2}, 2560, v{SS}")
    e(f"v_lshl_add_u32 v{T+2}, v{G}, 4, v{T+2}")
    e(f"s_mul_i32 s{S_T0}, s{S_W}, 640")
    e(f"v_add_u32 v{V_ST}, s{S_T0}, v{T+2}")
    reduce_partials("L_ored")
    for j in range(6):
        e(f"ds_read2_b64 v[{V_QB+4*j}:{V_QB+4*j+3}], v{V_BO} offset0:{8*j} offset1:{8*j+4}")
    e("s_waitcnt lgkmcnt(0)")
    for j in range(6):
        for nt in range(10):
            d = V_S + 4 * nt
            a = (j * 10 + nt) * 4
            cc = "0" if j == 0 else f"v[{d}:{d+3}]"
            e(f"v_mfma_f32_16x16x32_bf16 v[{d}:{d+3}], a[{a}:{a+3}], v[{V_QB+4*j}:{V_QB+4*j+3}], {cc}")
    e("s_mov_b32 exec_lo, 0x000f000f")
    e("s_mov_b32 exec_hi, 0x000f000f")
    for nt in range(10):
        d = V_S + 4 * nt
        if nt >= 8:
            e("s_nop 3")
        e(f"buffer_store_dwordx4 v[{d}:{d+3}], v{V_ST}, s[{R_WS}:{R_WS+3}], 0 offen offset:{64*nt}")
    e("s_mov_b64 exec, -1")
    if stamps:
        e("s_waitcnt vmcnt(0)")
        stamp()
        e("s_waitcnt lgkmcnt(0)")
        e(f"s_lshl_b32 s{S_T0}, s2, 2")
        e(f"s_add_u32 s{S_T0}, s{S_T0}, s{S_W}")
        e(f"s_lshl_b32 s{S_T0}, s{S_T0}, 6")
        e(f"s_add_u32 s{S_T0}, s{S_T0}, 0x1000000")
        srd(e, R_WS, S_WS, S_T0, 64)
        e(f"v_mov_b32 v{T+2}, 0")
        e("s_mov_b64 exec, 1")
        for i in range(nst[0]):
            e(f"v_mov_b32 v{T+3}, s{S_ST+2*i}")
            e(f"buffer_store_dword v{T+3}, v{T+2}, s[{R_WS}:{R_WS+3}], 0 offen offset:{4*i}")
        e(f"s_getreg_b32 s{S_T0}, hwreg(HW_REG_XCC_ID)")
        e(f"v_mov_b32 v{T+3}, s{S_T0}")
        e(f"buffer_store_dword v{T+3}, v{T+2}, s[{R_WS}:{R_WS+3}], 0 offen offset:60")
    e("L_end:")
    e("s_endpgm")
    main = e.text()

    r = E()
    r(f"{RN}:")
    r("s_cmp_ge_u32 s2, 80")
    r("s_cbranch_scc1 L_rend")
    r("s_load_dwordx2 s[4:5], s[0:1], 40")
    r("s_load_dwordx2 s[6:7], s[0:1], 56")
    r("s_mul_i32 s3, s2, 205")
    r("s_lshr_b32 s3, s3, 11")
    r("s_mul_i32 s16, s3, 10")
    r("s_sub_u32 s16, s2, s16")
    r("s_lshl_b32 s17, s16, 10")
    r("v_lshlrev_b32 v1, 4, v0")
    r("v_add_u32 v1, s17, v1")
    r("s_mul_i32 s18, s3, 327680")
    r("s_waitcnt lgkmcnt(0)")
    srd(r, 8, 6, 18, 327680)
    srd(r, 12, 4, None, 40960)
    for h in range(32):
        r(f"s_mov_b32 s19, {h*10240}")
        r(f"buffer_load_dwordx4 v[{4+4*h}:{7+4*h}], v1, s[8:11], s19 offen")
    r("s_lshl_b32 s17, s2, 9")
    r("v_lshlrev_b32 v2, 3, v0")
    r("v_add_u32 v2, s17, v2")
    for h in range(1, 32):
        r(f"s_waitcnt vmcnt({31-h})")
        for k in range(4):
            r(f"v_add_f32 v{4+k}, v{4+k}, v{4+4*h+k}")
    r("v_cvt_pk_bf16_f32 v4, v4, v5")
    r("v_cvt_pk_bf16_f32 v5, v6, v7")
    r("buffer_store_dwordx2 v[4:5], v2, s[12:15], 0 offen")
    r("L_rend:")
    r("s_endpgm")
    red = r.text()

    def kd(name, vgpr, accum, sgpr):
        return f""".amdhsa_kernel {name}
  .amdhsa_next_free_vgpr {vgpr}
  .amdhsa_next_free_sgpr {sgpr}
  .amdhsa_accum_offset {accum}
  .amdhsa_group_segment_fixed_size 0
  .amdhsa_kernarg_size 64
  .amdhsa_user_sgpr_count 2
  .amdhsa_user_sgpr_kernarg_segment_ptr 1
  .amdhsa_system_sgpr_workgroup_id_x 1
.end_amdhsa_kernel
"""
    out = f"""; Fused q-projection + sliding-window attention + output projection, 256 workgroups = (batch, head).
; @launch kernel={KN} grid=(256,1,1) block=(256,1,1) lds={LDS_BYTES}
; @launch kernel={RN} grid=(80,1,1) block=(64,1,1) lds=0
.amdgcn_target "amdgcn-amd-amdhsa--gfx950"
.text
.globl {KN}
.p2align 8
.type {KN},@function
{main}
.globl {RN}
.p2align 8
.type {RN},@function
{red}
.section .rodata,"a"
.p2align 6
{kd(KN, 256 + 240, 256, 96)}
.p2align 6
{kd(RN, 136, 136, 32)}"""
    return out

if __name__ == "__main__":
    kw = eval("dict(" + (sys.argv[1] if len(sys.argv) > 1 else "") + ")")
    sys.stdout.write(gen(**kw))
```

```python
import struct, sys

KN = "standalone__sliding_block_cached__sampling_kernel"
RN = "reduce_heads_kernel"

def f32(x):
    return struct.unpack("<I", struct.pack("<f", x))[0]

class E:
    def __init__(self):
        self.lines = []
        self.vm = []
    def __call__(self, s=""):
        self.lines.append("    " + s if s and not s.endswith(":") else s)
    def c(self, s):
        self.lines.append("    ; " + s)
    def vmop(self, s, tag):
        self(s)
        self.vm.append(tag)
    def wait_vm(self, tag):
        idx = max([i for i, t in enumerate(self.vm) if t == tag], default=-1)
        if idx < 0:
            return
        n = len(self.vm) - 1 - idx
        self(f"s_waitcnt vmcnt({min(n, 63)})")
        self.vm = self.vm[idx + 1:]
    def text(self):
        return "\n".join(self.lines) + "\n"

SLOT = 6144
NSLOT = 6
RING = SLOT * NSLOT
MISC = 4 * RING
PART = MISC
QBF = MISC + 12288
RMAX = QBF + 1536
RSUM = RMAX + 256
LDS_BYTES = RSUM + 256

S_W = 3
S_X, S_K, S_V, S_WQ, S_WO, S_OUT, S_DBG, S_WS = 4, 6, 8, 10, 12, 14, 16, 18
R_K, R_V, R_WQ, R_WO, R_X, R_WS, R_OUT, R_DBG = 20, 24, 28, 32, 36, 40, 44, 48
S_B, S_H, S_RING, S_OFF, S_T0, S_T1 = 52, 53, 54, 55, 56, 57
S_KW = 58
S_QW = 59
S_TP = 60
S_SCALE, S_L2E = 70, 71
S_M1, S_M2, S_M3 = 72, 74, 76
S_WIN = 78
S_ST = 80
NSTAMPS = 10

V_L = 1
V_KV = 2
V_WQ = 8
V_WO = 14
V_KA = 19
V_VA = 21
V_WA = 25
V_PW = 26
V_PR = 27
V_BW = 28
V_BR = 29
V_BO = 30
V_RW = 31
V_RR = 32
V_M = 33
V_T = 34
V_ST = 39
V_RD = 40
V_ACC = 64
V_QB = 112
V_S = 136
V_P = 200
V_XR = 232
V_TK = 252
V_DO = 253
NV = 256

def srd(e, r, base, off, nbytes):
    if off is None:
        e(f"s_mov_b32 s{r}, s{base}")
        e(f"s_and_b32 s{r+1}, s{base+1}, 0xffff")
    else:
        e(f"s_add_u32 s{r}, s{base}, s{off}")
        e(f"s_addc_u32 s{r+1}, s{base+1}, 0")
        e(f"s_and_b32 s{r+1}, s{r+1}, 0xffff")
    if isinstance(nbytes, str):
        e(f"s_mov_b32 s{r+2}, {nbytes}")
    else:
        e(f"s_mov_b32 s{r+2}, {nbytes}")
    e(f"s_mov_b32 s{r+3}, 0x20000")

def gen(nb=4, depth=6, wo_first=7, wo_step=2, f_kv="nt", f_wq="nt", f_wo="nt", f_x="", hmap=1,
        stagger=1, stamps=0, qrot=1, flag_pos=30):
    e = E()
    nst = [0]
    def stamp():
        if stamps:
            e(f"s_memrealtime s[{S_ST+2*nst[0]}:{S_ST+2*nst[0]+1}]")
            nst[0] += 1

    e(f"{KN}:")
    e("s_cmp_ge_u32 s2, 256")
    e("s_cbranch_scc1 L_end")
    stamp()
    e("s_load_dwordx16 s[4:19], s[0:1], 0")
    e(f"v_lshrrev_b32 v{V_T}, 6, v0")
    e(f"v_and_b32 v{V_L}, 63, v0")
    e(f"v_readfirstlane_b32 s{S_W}, v{V_T}")
    if hmap:
        e(f"s_and_b32 s{S_H}, s2, 7")
        e(f"s_lshl_b32 s{S_H}, s{S_H}, 2")
        e(f"s_bfe_u32 s{S_T0}, s2, 0x20003")
        e(f"s_add_u32 s{S_H}, s{S_H}, s{S_T0}")
    else:
        e(f"s_and_b32 s{S_H}, s2, 31")
    e(f"s_lshr_b32 s{S_B}, s2, 5")
    e(f"s_mul_i32 s{S_RING}, s{S_W}, {RING}")
    e(f"s_mul_i32 s{S_KW}, s{S_W}, {SLOT}")
    e(f"s_mul_i32 s{S_QW}, s{S_W}, {160*12288}")
    e.c("rotated wq tile order")
    if qrot:
        e(f"s_lshr_b32 s{S_T0}, s{S_B}, {1 if stagger else 0}")
        e(f"s_mul_i32 s{S_T0}, s{S_T0}, {10 if stagger else 5}")
        e(f"s_add_u32 s{S_T0}, s{S_T0}, 2")
        e(f"s_lshr_b32 s{S_TP}, s{S_T0}, 2")
    else:
        e(f"s_mov_b32 s{S_TP}, 0")
    for p in range(1, 10):
        e(f"s_add_u32 s{S_TP+p}, s{S_TP+p-1}, 1")
        e(f"s_cmp_eq_u32 s{S_TP+p}, 10")
        e(f"s_cselect_b32 s{S_TP+p}, 0, s{S_TP+p}")
    e(f"s_mov_b32 s{S_SCALE}, {f32(192 ** -0.5):#x}")
    e(f"s_mov_b32 s{S_L2E}, {f32(1.4426950408889634):#x}")
    T = V_T
    e.c("DMA source offsets")
    e(f"v_lshrrev_b32 v{T}, 3, v{V_L}")
    e(f"v_and_b32 v{T+1}, 7, v{V_L}")
    for i in range(6):
        e(f"v_add_u32 v{T+2}, {8*i}, v{T}")
        e(f"v_mul_u32_u24 v{T+3}, 43, v{T+2}")
        e(f"v_lshrrev_b32 v{T+3}, 7, v{T+3}")
        e(f"v_and_b32 v{T+4}, 6, v{T+3}")
        e(f"v_xor_b32 v{T+4}, v{T+4}, v{T+1}")
        e(f"v_lshlrev_b32 v{T+4}, 4, v{T+4}")
        e(f"v_lshl_add_u32 v{V_KV+i}, v{T+2}, 7, v{T+4}")
        e(f"v_mul_u32_u24 v{T+3}, {12288-384}, v{T+3}")
        e(f"v_add_u32 v{V_WQ+i}, v{V_KV+i}, v{T+3}")
    e.c("g = lane>>4, s = lane&3")
    G, SS = T, T + 1
    e(f"v_lshrrev_b32 v{G}, 4, v{V_L}")
    e(f"v_and_b32 v{SS}, 3, v{V_L}")
    e.c("x operand offset")
    XO = V_RD
    e(f"v_mul_u32_u24 v{XO}, 1280, v{SS}")
    e(f"v_lshl_add_u32 v{XO}, v{G}, 3, v{XO}")
    e(f"s_mul_i32 s{S_T0}, s{S_W}, 320")
    e(f"v_add_u32 v{XO}, s{S_T0}, v{XO}")
    e("s_waitcnt lgkmcnt(0)")
    e(f"s_mul_i32 s{S_T0}, s{S_B}, 5120")
    srd(e, R_X, S_X, S_T0, 5120)
    e(f"s_mul_i32 s{S_T0}, s{S_H}, 384")
    e(f"s_sub_u32 s{S_T1}, {640*12288}, s{S_T0}")
    srd(e, R_WQ, S_WQ, S_T0, f"s{S_T1}")
    e(f"s_lshl_b32 s{S_T0}, s{S_B}, 5")
    e(f"s_add_u32 s{S_T0}, s{S_T0}, s{S_H}")
    e(f"s_mul_i32 s{S_T0}, s{S_T0}, 1572864")
    e(f"s_add_u32 s{S_T0}, s{S_T0}, {3072*384}")
    srd(e, R_K, S_K, S_T0, 393216)
    srd(e, R_V, S_V, S_T0, 393216)

    def issue(tile, slot):
        kind, t = tile
        if kind in "KV":
            r = R_K if kind == "K" else R_V
            e(f"s_add_u32 s{S_OFF}, s{S_KW}, {t*4*SLOT}")
            for i in range(6):
                e(f"s_add_u32 m0, s{S_RING}, {slot*SLOT + i*1024}")
                e("s_nop 0")
                e.vmop(f"buffer_load_dwordx4 v{V_KV+i}, s[{r}:{r+3}], s{S_OFF} offen {f_kv} lds", tile)
        elif kind == "Q":
            e(f"s_mul_i32 s{S_OFF}, s{S_TP+t}, {16*12288}")
            e(f"s_add_u32 s{S_OFF}, s{S_OFF}, s{S_QW}")
            for i in range(6):
                e(f"s_add_u32 m0, s{S_RING}, {slot*SLOT + i*1024}")
                e("s_nop 0")
                e.vmop(f"buffer_load_dwordx4 v{V_WQ+i}, s[{R_WQ}:{R_WQ+3}], s{S_OFF} offen {f_wq} lds", tile)
        elif kind == "O":
            e(f"s_mov_b32 s{S_OFF}, {t*16*1280}")
            for i in range(5):
                e(f"s_add_u32 m0, s{S_RING}, {slot*SLOT + i*1024}")
                e("s_nop 0")
                e.vmop(f"buffer_load_dwordx4 v{V_WO+i}, s[{R_WO}:{R_WO+3}], s{S_OFF} offen {f_wo} lds", tile)

    def xloads():
        for p in range(10):
            e(f"s_lshl_b32 s{S_OFF}, s{S_TP+p}, 5")
            e.vmop(f"buffer_load_dwordx2 v[{V_XR+2*p}:{V_XR+2*p+1}], v{XO}, s[{R_X}:{R_X+3}], s{S_OFF} offen {f_x}", "x")

    def late_setup():
        e.c("remaining address registers and descriptors")
        e(f"s_mul_i32 s{S_T0}, s{S_H}, 245760")
        srd(e, R_WO, S_WO, S_T0, 245760)
        e(f"s_mul_i32 s{S_T0}, s{S_W}, 320")
        for i in range(5):
            e(f"v_add_u32 v{T+2}, {64*i}, v{V_L}")
            e(f"v_mul_u32_u24 v{T+3}, 205, v{T+2}")
            e(f"v_lshrrev_b32 v{T+3}, 12, v{T+3}")
            e(f"v_mul_u32_u24 v{T+3}, {1280-320}, v{T+3}")
            e(f"v_lshl_add_u32 v{T+3}, v{T+2}, 4, v{T+3}")
            e(f"v_add_u32 v{V_WO+i}, s{S_T0}, v{T+3}")
        e.c("K operand read addresses")
        e(f"v_and_b32 v{T+2}, 15, v{V_L}")
        e(f"v_and_b32 v{T+3}, 6, v{T+2}")
        e(f"v_xor_b32 v{T+3}, v{T+3}, v{G}")
        e(f"v_lshlrev_b32 v{T+3}, 4, v{T+3}")
        e(f"v_mul_u32_u24 v{T+2}, 384, v{T+2}")
        e(f"v_add3_u32 v{V_KA}, v{T+2}, v{T+3}, s{S_RING}")
        e(f"v_xor_b32 v{V_KA+1}, 64, v{V_KA}")
        e.c("transposing read addresses: key = lane>>2, c = lane&3")
        e(f"v_lshrrev_b32 v{T+2}, 2, v{V_L}")
        e(f"v_and_b32 v{T+3}, 6, v{T+2}")
        e(f"v_lshlrev_b32 v{T+3}, 4, v{T+3}")
        e(f"v_lshl_add_u32 v{T+3}, v{SS}, 3, v{T+3}")
        e(f"v_mul_u32_u24 v{T+4}, 384, v{T+2}")
        e(f"v_add3_u32 v{V_VA}, v{T+4}, v{T+3}, s{S_RING}")
        for q in range(1, 4):
            e(f"v_xor_b32 v{V_VA+q}, {32*q}, v{V_VA}")
        e(f"v_mul_u32_u24 v{T+4}, 320, v{T+2}")
        e(f"v_lshl_add_u32 v{T+4}, v{SS}, 3, v{T+4}")
        e(f"v_add_u32 v{V_WA}, s{S_RING}, v{T+4}")
        e.c("cross-wave exchange addresses")
        e(f"s_mul_i32 s{S_T0}, s{S_W}, 3072")
        e(f"s_add_u32 s{S_T0}, s{S_T0}, {PART}")
        e(f"v_mul_u32_u24 v{T+2}, 768, v{SS}")
        e(f"v_lshl_add_u32 v{T+2}, v{G}, 4, v{T+2}")
        e(f"v_add_u32 v{V_PW}, s{S_T0}, v{T+2}")
        e(f"v_lshlrev_b32 v{T+2}, 4, v0")
        e(f"v_add_u32 v{V_PR}, {PART}, v{T+2}")
        e(f"v_lshlrev_b32 v{T+2}, 3, v0")
        e(f"v_add_u32 v{V_BW}, {QBF}, v{T+2}")
        e(f"v_mul_u32_u24 v{T+2}, 384, v{SS}")
        e(f"v_add_u32 v{T+2}, {QBF}, v{T+2}")
        e(f"v_lshl_add_u32 v{V_BR}, v{G}, 4, v{T+2}")
        e(f"v_lshl_add_u32 v{V_BO}, v{G}, 3, v{T+2}")
        e(f"v_lshlrev_b32 v{T+2}, 6, v{SS}")
        e(f"v_add_u32 v{V_RR}, {RMAX}, v{T+2}")
        e(f"s_lshl_b32 s{S_T0}, s{S_W}, 4")
        e(f"v_lshl_add_u32 v{T+2}, v{G}, 2, v{V_RR}")
        e(f"v_add_u32 v{V_RW}, s{S_T0}, v{T+2}")

    def tr_reads(slot):
        for dt in range(12):
            e(f"ds_read_b64_tr_b16 v[{V_RD+2*dt}:{V_RD+2*dt+1}], v{V_VA + (dt & 3)} offset:{slot*SLOT + 128*(dt >> 2)}")

    def pv_mfma(breg, first):
        for dt in range(12):
            a = V_ACC + 4 * dt
            cc = "0" if first else f"v[{a}:{a+3}]"
            e(f"v_mfma_f32_16x16x16_bf16 v[{a}:{a+3}], v[{V_RD+2*dt}:{V_RD+2*dt+1}], v[{breg}:{breg+1}], {cc}")

    def consume_q(p, slot, nxt):
        e.wait_vm(("Q", p))
        tr_reads(slot)
        e("s_waitcnt lgkmcnt(0)")
        if nxt is not None:
            issue(nxt, slot)
        pv_mfma(V_XR + 2 * p, p == 0)

    kslot = {0: 4, 1: 5, 2: 0, 3: 1, 4: 2, 5: 3}
    def prologue_a():
        xloads()
        for p in range(6):
            issue(("Q", p), p)
        late_setup()
        for p in range(10):
            nxt = ("Q", p + 6) if p < 4 else ("K", p - 4)
            consume_q(p, p % 6, nxt)
    def prologue_b():
        xloads()
        for t in range(nb):
            issue(("K", t), kslot[t])
        nq = 6 - nb
        qs = [kslot[t] for t in range(nb, 6)]
        slot_of = {p: qs[(p - (10 - nq)) % nq] for p in range(10)}
        for p in range(nq):
            issue(("Q", p), slot_of[p])
        late_setup()
        for p in range(10):
            nxt = ("Q", p + nq) if p + nq < 10 else ("K", nb + p - (10 - nq))
            consume_q(p, slot_of[p], nxt)

    if stagger:
        e(f"s_bitcmp1_b32 s{S_B}, 0")
        e("s_cbranch_scc1 L_grp_b")
        prologue_a()
        e("s_branch L_merge")
        e("L_grp_b:")
        e.vm = []
        prologue_b()
        e("L_merge:")
    else:
        prologue_a()
    e.vm = [("K", t) for t in range(6) for _ in range(6)]
    stamp()

    def reduce_partials(label):
        e.c("sum the four waves' partial rows, round to bf16")
        e("s_nop 7")
        e("s_mov_b32 exec_lo, 0x000f000f")
        e("s_mov_b32 exec_hi, 0x000f000f")
        for dt in range(12):
            a = V_ACC + 4 * dt
            e(f"ds_write_b128 v{V_PW}, v[{a}:{a+3}] offset:{64*dt}")
        e("s_mov_b64 exec, -1")
        e("s_waitcnt lgkmcnt(0)")
        e("s_barrier")
        e(f"s_cmp_eq_u32 s{S_W}, 3")
        e(f"s_cbranch_scc1 {label}")
        for w in range(4):
            e(f"ds_read_b128 v[{V_RD+4*w}:{V_RD+4*w+3}], v{V_PR} offset:{3072*w}")
        e("s_waitcnt lgkmcnt(0)")
        for r in range(4):
            e(f"v_add_f32 v{V_RD+r}, v{V_RD+r}, v{V_RD+4+r}")
        for r in range(4):
            e(f"v_add_f32 v{V_RD+8+r}, v{V_RD+8+r}, v{V_RD+12+r}")
        for r in range(4):
            e(f"v_add_f32 v{V_RD+r}, v{V_RD+r}, v{V_RD+8+r}")
        e(f"v_cvt_pk_bf16_f32 v{V_RD+4}, v{V_RD}, v{V_RD+1}")
        e(f"v_cvt_pk_bf16_f32 v{V_RD+5}, v{V_RD+2}, v{V_RD+3}")
        e(f"ds_write_b64 v{V_BW}, v[{V_RD+4}:{V_RD+5}]")
        e("s_waitcnt lgkmcnt(0)")
        e(f"{label}:")
        e("s_barrier")

    reduce_partials("L_qred")
    for j in range(6):
        e(f"ds_read_b128 v[{V_QB+4*j}:{V_QB+4*j+3}], v{V_BR} offset:{64*j}")
    e(f"v_mov_b32 v{V_M}, 0xff800000")
    e("s_waitcnt lgkmcnt(0)")
    stamp()

    kv = [("K", t) for t in range(16)] + [("V", t) for t in range(16)]
    seq = []
    wo_i = 0
    for n, tl in enumerate(kv):
        seq.append(tl)
        if n + 1 >= wo_first and (n + 1 - wo_first) % wo_step == 0 and wo_i < 12:
            seq.append(("O", wo_i)); wo_i += 1
    assert wo_i == 12
    slot_of = {("K", t): kslot[t] for t in range(6)}
    free = []
    st = {"issued": 6}
    def issue_upto(n):
        while st["issued"] < min(n, len(seq)) and free:
            tl = seq[st["issued"]]
            sl = free.pop(0)
            slot_of[tl] = sl
            issue(tl, sl)
            st["issued"] += 1

    def score_post(t):
        s = V_S + 4 * t
        a, b = T + 2, T + 3
        for rnd in range(2):
            e(f"v_cvt_pk_bf16_f32 v{a}, v{s}, v{s+1}")
            e(f"v_cvt_pk_bf16_f32 v{b}, v{s+2}, v{s+3}")
            e(f"v_lshlrev_b32 v{s}, 16, v{a}")
            e(f"v_and_b32 v{s+1}, 0xffff0000, v{a}")
            e(f"v_lshlrev_b32 v{s+2}, 16, v{b}")
            e(f"v_and_b32 v{s+3}, 0xffff0000, v{b}")
            if rnd == 0:
                for r in range(4):
                    e(f"v_mul_f32 v{s+r}, s{S_SCALE}, v{s+r}")
        e(f"v_max3_f32 v{V_M}, v{V_M}, v{s}, v{s+1}")
        e(f"v_max3_f32 v{V_M}, v{V_M}, v{s+2}, v{s+3}")

    def softmax(pos):
        e.c("softmax over the 1024 keys of each query row")
        e("s_nop 7")
        score_post(15)
        e(f"ds_write_b32 v{V_RW}, v{V_M}")
        e("s_waitcnt lgkmcnt(0)")
        e("s_barrier")
        for i in range(4):
            e(f"ds_read_b128 v[{V_RD+4*i}:{V_RD+4*i+3}], v{V_RR} offset:{16*i}")
        e("s_waitcnt lgkmcnt(0)")
        for i in range(8):
            e(f"v_max3_f32 v{V_M}, v{V_M}, v{V_RD+2*i}, v{V_RD+2*i+1}")
        e(f"v_mul_f32 v{V_M}, s{S_L2E}, v{V_M}")
        issue_upto(pos + 1 + 5)
        l0, l1 = T + 2, T + 3
        for r in range(64):
            e(f"v_fma_f32 v{V_S+r}, v{V_S+r}, s{S_L2E}, -v{V_M}")
        for r in range(64):
            e(f"v_exp_f32 v{V_S+r}, v{V_S+r}")
        e(f"v_add_f32 v{l0}, v{V_S}, v{V_S+1}")
        e(f"v_add_f32 v{l1}, v{V_S+2}, v{V_S+3}")
        for r in range(4, 64, 2):
            e(f"v_add_f32 v{l0}, v{l0}, v{V_S+r}")
            e(f"v_add_f32 v{l1}, v{l1}, v{V_S+r+1}")
        e(f"v_add_f32 v{l0}, v{l0}, v{l1}")
        e(f"ds_write_b32 v{V_RW}, v{l0} offset:{RSUM-RMAX}")
        e("s_waitcnt lgkmcnt(0)")
        e("s_barrier")
        for i in range(4):
            e(f"ds_read_b128 v[{V_RD+4*i}:{V_RD+4*i+3}], v{V_RR} offset:{RSUM-RMAX+16*i}")
        issue_upto(pos + 1 + 6)
        e("s_waitcnt lgkmcnt(0)")
        for i in range(8):
            e(f"v_add_f32 v{V_RD+i}, v{V_RD+i}, v{V_RD+8+i}")
        for i in range(4):
            e(f"v_add_f32 v{V_RD+i}, v{V_RD+i}, v{V_RD+4+i}")
        e(f"v_add_f32 v{V_RD}, v{V_RD}, v{V_RD+1}")
        e(f"v_add_f32 v{V_RD+2}, v{V_RD+2}, v{V_RD+3}")
        e(f"v_add_f32 v{V_RD}, v{V_RD}, v{V_RD+2}")
        e(f"v_rcp_f32 v{l0}, v{V_RD}")
        e("s_nop 0")
        for r in range(64):
            e(f"v_mul_f32 v{V_S+r}, v{l0}, v{V_S+r}")
        for r in range(32):
            e(f"v_cvt_pk_bf16_f32 v{V_P+r}, v{V_S+2*r}, v{V_S+2*r+1}")
        e("s_nop 1")

    hooks = {}
    lab = [0]
    def wave0_block(body):
        lab[0] += 1
        e(f"s_cmp_lg_u32 s{S_W}, 0")
        e(f"s_cbranch_scc1 L_w0_{lab[0]}")
        body()
        e(f"L_w0_{lab[0]}:")
    def winner_block(body):
        lab[0] += 1
        e(f"s_cmp_lg_u32 s{S_WIN}, 0")
        e(f"s_cbranch_scc1 L_w0_{lab[0]}")
        body()
        e(f"L_w0_{lab[0]}:")
    def h_ticket():
        e.c("first workgroup of a batch to get here clears that batch's accumulator")
        srd(e, R_DBG, S_DBG, None, 256)
        e(f"s_lshl_b32 s{S_T0}, s{S_B}, 14")
        srd(e, R_WS, S_WS, S_T0, 16384)
        e(f"s_mov_b32 s{S_WIN}, 1")
        e(f"s_lshl_b32 s{S_T0}, s{S_B}, 2")
        e(f"v_mov_b32 v{V_DO}, s{S_T0}")
        e(f"v_mov_b32 v{V_TK}, 1")
        def body():
            e("s_mov_b64 exec, 1")
            e(f"buffer_atomic_add v{V_TK}, v{V_DO}, s[{R_DBG}:{R_DBG+3}], 0 offen sc0 sc1")
            e("s_mov_b64 exec, -1")
        wave0_block(body)
        hooks[st["issued"]] = h_clear
    def h_clear():
        e(f"v_readfirstlane_b32 s{S_WIN}, v{V_TK}")
        def body():
            for r in range(4):
                e(f"v_mov_b32 v{V_XR+r}, 0")
            e(f"v_lshlrev_b32 v{V_XR+4}, 4, v{V_L}")
            for i in range(11):
                e(f"s_mov_b32 s{S_OFF}, {1024*i}")
                e(f"buffer_store_dwordx4 v[{V_XR}:{V_XR+3}], v{V_XR+4}, s[{R_WS}:{R_WS+3}], s{S_OFF} offen sc1")
        e("s_nop 0")
        winner_block(body)
        hooks[st["issued"]] = h_publish
    def h_publish():
        def body():
            e(f"v_mov_b32 v{V_XR}, 1")
            e("s_mov_b64 exec, 1")
            e(f"buffer_store_dword v{V_XR}, v{V_DO}, s[{R_DBG}:{R_DBG+3}], 0 offen offset:128 sc1")
            e("s_mov_b64 exec, -1")
        winner_block(body)
    def h_flagload():
        def body():
            e(f"buffer_load_dword v{V_TK}, v{V_DO}, s[{R_DBG}:{R_DBG+3}], 0 offen offset:128 sc1")
        wave0_block(body)
        hooks[st["issued"]] = h_flagcheck
    def h_flagcheck():
        def body():
            e("L_spin:")
            e(f"v_readfirstlane_b32 s{S_T0}, v{V_TK}")
            e("s_nop 0")
            e(f"s_cmp_eq_u32 s{S_T0}, 1")
            e("s_cbranch_scc1 L_spin_done")
            e(f"buffer_load_dword v{V_TK}, v{V_DO}, s[{R_DBG}:{R_DBG+3}], 0 offen offset:128 sc1")
            e("s_waitcnt vmcnt(0)")
            e("s_branch L_spin")
            e("L_spin_done:")
        wave0_block(body)
    hooks[0] = h_ticket
    hooks[flag_pos] = h_flagload
    for pos, tl in enumerate(seq):
        kind, t = tl
        sl = slot_of[tl]
        e.c(f"consume {kind}{t} from slot {sl}")
        e.wait_vm(tl)
        if pos in hooks:
            assert st["issued"] < len(seq) or hooks[pos] in (h_flagcheck, h_publish)
            hooks.pop(pos)()
        if kind == "K":
            for j in range(6):
                e(f"ds_read_b128 v[{V_RD+4*j}:{V_RD+4*j+3}], v{V_KA + (j & 1)} offset:{sl*SLOT + 128*(j >> 1)}")
            if t > 0:
                e("s_nop 1")
                score_post(t - 1)
            e("s_waitcnt lgkmcnt(0)")
            s = V_S + 4 * t
            for j in range(6):
                cc = "0" if j == 0 else f"v[{s}:{s+3}]"
                e(f"v_mfma_f32_16x16x32_bf16 v[{s}:{s+3}], v[{V_RD+4*j}:{V_RD+4*j+3}], v[{V_QB+4*j}:{V_QB+4*j+3}], {cc}")
            free.append(sl)
            issue_upto(pos + 1 + depth)
            if t == 15:
                stamp()
                softmax(pos)
                stamp()
        elif kind == "V":
            tr_reads(sl)
            e("s_waitcnt lgkmcnt(0)")
            pv_mfma(V_P + 2 * t, t == 0)
            free.append(sl)
            issue_upto(pos + 1 + depth)
        else:
            j, half = t >> 1, t & 1
            for nt in range(10):
                a = (j * 10 + nt) * 4 + 2 * half
                e(f"ds_read_b64_tr_b16 a[{a}:{a+1}], v{V_WA} offset:{sl*SLOT + 32*nt}")
            e("s_waitcnt lgkmcnt(0)")
            free.append(sl)
            issue_upto(pos + 1 + depth)
    assert st["issued"] == len(seq) and not hooks, hooks
    stamp()

    e.c("output projection of this head, added into the batch accumulator")
    e(f"v_lshrrev_b32 v{G}, 4, v{V_L}")
    e(f"v_and_b32 v{SS}, 3, v{V_L}")
    e(f"v_mul_u32_u24 v{T+2}, 2560, v{SS}")
    e(f"v_lshl_add_u32 v{T+2}, v{G}, 4, v{T+2}")
    e(f"v_and_b32 v{T+3}, 12, v{V_L}")
    e(f"s_mul_i32 s{S_T0}, s{S_W}, 640")
    e(f"v_add3_u32 v{V_ST}, v{T+2}, v{T+3}, s{S_T0}")
    for m, val in ((S_M1, 0x00f000f0), (S_M2, 0x0f000f00), (S_M3, 0xf000f000)):
        e(f"s_mov_b32 s{m}, {val:#x}")
        e(f"s_mov_b32 s{m+1}, {val:#x}")
    reduce_partials("L_ored")
    stamp()
    for j in range(6):
        e(f"ds_read2_b64 v[{V_QB+4*j}:{V_QB+4*j+3}], v{V_BO} offset0:{8*j} offset1:{8*j+4}")
    e("s_waitcnt lgkmcnt(0)")
    def out_post(nt):
        d = V_S + 4 * nt
        e(f"v_cndmask_b32 v{d}, v{d}, v{d+1}, s[{S_M1}:{S_M1+1}]")
        e(f"v_cndmask_b32 v{d+2}, v{d+2}, v{d+3}, s[{S_M3}:{S_M3+1}]")
        e(f"v_cndmask_b32 v{d}, v{d}, v{d+2}, vcc")
        e(f"buffer_atomic_add_f32 v{d}, v{V_ST}, s[{R_WS}:{R_WS+3}], 0 offen offset:{64*nt} sc1")
    e("s_mov_b32 vcc_lo, 0xff00ff00")
    e("s_mov_b32 vcc_hi, 0xff00ff00")
    for nt in range(10):
        d = V_S + 4 * nt
        for j in range(6):
            a = (j * 10 + nt) * 4
            cc = "0" if j == 0 else f"v[{d}:{d+3}]"
            e(f"v_mfma_f32_16x16x32_bf16 v[{d}:{d+3}], a[{a}:{a+3}], v[{V_QB+4*j}:{V_QB+4*j+3}], {cc}")
        if nt > 0:
            e("s_nop 1")
            out_post(nt - 1)
    e("s_nop 3")
    out_post(9)
    stamp()
    e("s_waitcnt vmcnt(0)")
    e("s_barrier")
    stamp()
    e(f"s_cmp_lg_u32 s{S_W}, 0")
    e("s_cbranch_scc1 L_fin")
    e(f"v_mov_b32 v{V_TK}, 1")
    e(f"v_mov_b32 v{T+2}, 10240")
    e("s_mov_b64 exec, 1")
    e(f"buffer_atomic_add v{V_TK}, v{T+2}, s[{R_WS}:{R_WS+3}], 0 offen sc0 sc1")
    e("s_mov_b64 exec, -1")
    e(f"s_mul_i32 s{S_T0}, s{S_B}, 5120")
    srd(e, R_OUT, S_OUT, S_T0, 5120)
    e(f"v_lshlrev_b32 v{T+2}, 4, v{V_L}")
    e(f"v_lshlrev_b32 v{T+3}, 3, v{V_L}")
    e("s_waitcnt vmcnt(0)")
    e(f"v_readfirstlane_b32 s{S_T0}, v{V_TK}")
    e("s_nop 0")
    e(f"s_cmp_lg_u32 s{S_T0}, 31")
    e("s_cbranch_scc1 L_fin")
    e.c("last workgroup of the batch: accumulator -> bf16 output")
    for i in range(10):
        e(f"s_mov_b32 s{S_OFF}, {1024*i}")
        e(f"buffer_load_dwordx4 v[{V_S+4*i}:{V_S+4*i+3}], v{T+2}, s[{R_WS}:{R_WS+3}], s{S_OFF} offen sc1")
    for i in range(10):
        d = V_S + 4 * i
        e(f"s_waitcnt vmcnt({9})")
        e(f"v_cvt_pk_bf16_f32 v{d}, v{d}, v{d+1}")
        e(f"v_cvt_pk_bf16_f32 v{d+1}, v{d+2}, v{d+3}")
        e(f"s_movk_i32 s{S_OFF}, {512*i}")
        e(f"buffer_store_dwordx2 v[{d}:{d+1}], v{T+3}, s[{R_OUT}:{R_OUT+3}], s{S_OFF} offen")
    e("L_fin:")
    if stamps:
        e("s_waitcnt vmcnt(0)")
        stamp()
        e("s_waitcnt lgkmcnt(0)")
        e(f"s_lshl_b32 s{S_T0}, s2, 2")
        e(f"s_add_u32 s{S_T0}, s{S_T0}, s{S_W}")
        e(f"s_lshl_b32 s{S_T0}, s{S_T0}, 6")
        e(f"s_add_u32 s{S_T0}, s{S_T0}, 0x1000000")
        srd(e, R_WS, S_WS, S_T0, 64)
        e(f"v_mov_b32 v{T+2}, 0")
        e("s_mov_b64 exec, 1")
        for i in range(nst[0]):
            e(f"v_mov_b32 v{T+3}, s{S_ST+2*i}")
            e(f"buffer_store_dword v{T+3}, v{T+2}, s[{R_WS}:{R_WS+3}], 0 offen offset:{4*i}")
        e(f"s_getreg_b32 s{S_T0}, hwreg(HW_REG_XCC_ID)")
        e(f"v_mov_b32 v{T+3}, s{S_T0}")
        e(f"buffer_store_dword v{T+3}, v{T+2}, s[{R_WS}:{R_WS+3}], 0 offen offset:60")
    e("L_end:")
    e("s_endpgm")
    main = e.text()

    def kd(name, vgpr, accum, sgpr):
        return f""".amdhsa_kernel {name}
  .amdhsa_next_free_vgpr {vgpr}
  .amdhsa_next_free_sgpr {sgpr}
  .amdhsa_accum_offset {accum}
  .amdhsa_group_segment_fixed_size 0
  .amdhsa_kernarg_size 64
  .amdhsa_user_sgpr_count 2
  .amdhsa_user_sgpr_kernarg_segment_ptr 1
  .amdhsa_system_sgpr_workgroup_id_x 1
.end_amdhsa_kernel
"""
    out = f"""; Fused q-projection + sliding-window attention + output projection, 256 workgroups = (batch, head).
; @launch grid=(256,1,1) block=(256,1,1) lds={LDS_BYTES}
.amdgcn_target "amdgcn-amd-amdhsa--gfx950"
.text
.globl {KN}
.p2align 8
.type {KN},@function
{main}
.section .rodata,"a"
.p2align 6
{kd(KN, 256 + 240, 256, 102)}"""
    return out

if __name__ == "__main__":
    kw = eval("dict(" + (sys.argv[1] if len(sys.argv) > 1 else "") + ")")
    sys.stdout.write(gen(**kw))
```

```python
import struct, sys, copy

KN = "standalone__sliding_block_cached__sampling_kernel"
TRACE_NAMES = []

def f32(x):
    return struct.unpack("<I", struct.pack("<f", x))[0]

class E:
    def __init__(self):
        self.lines = []
        self.vm = []
    def __call__(self, s=""):
        self.lines.append("    " + s if s and not s.endswith(":") else s)
    def c(self, s):
        self.lines.append("    ; " + s)
    def vmop(self, s, tag):
        self(s)
        self.vm.append(tag)
    def wait_vm(self, tag):
        idx = max([i for i, t in enumerate(self.vm) if t == tag], default=-1)
        if idx < 0:
            return
        n = len(self.vm) - 1 - idx
        self(f"s_waitcnt vmcnt({min(n, 63)})")
        self.vm = self.vm[idx + 1:]
    def text(self):
        return "\n".join(self.lines) + "\n"

SLOT = 6144
NSLOT = 6
RING = SLOT * NSLOT
MISC = 4 * RING
PART = MISC
PROW = 784
PWAVE = 4 * PROW
BROW = 400
QBF = MISC + 4 * PWAVE
RMAX = QBF + 4 * BROW
RSUM = RMAX + 256
LDS_BYTES = RSUM + 256

INBOX_B = 40 * 8192
HINT = 8 * INBOX_B

S_W = 3
S_X, S_K, S_V, S_WQ, S_WO, S_OUT, S_DBG, S_WS = 4, 6, 8, 10, 12, 14, 16, 18
R_K, R_V, R_WQ, R_WO, R_X, R_IN, R_OUT, R_DBG = 20, 24, 28, 32, 36, 40, 44, 48
R_RD = 28
R_HT = 36
S_B, S_H, S_RING, S_OFF, S_T0, S_T1 = 52, 53, 54, 55, 56, 57
S_KW = 58
S_QW = 59
S_TP = 60
S_SCALE, S_L2E = 70, 71
S_CT = 72
S_SPIN = 73
S_XL = 74
S_M1, S_M3 = 76, 78
S_TR = 100

V_L = 1
V_KV = 2
V_WQ = 8
V_WO = 14
V_KA = 19
V_VA = 21
V_WA = 25
V_PW = 26
V_PR = 27
V_BW = 28
V_BR = 29
V_BO = 30
V_RW = 31
V_RR = 32
V_M = 33
V_T = 34
V_ST = 39
V_RD = 40
V_ACC = 64
V_QB = 112
V_S = 136
V_P = 200
V_XR = 232
V_TK = 252
V_DO = 253
V_TR = 254
V_XO = 255
V_ST2 = 255

def srd(e, r, base, off, nbytes):
    if off is None:
        e(f"s_mov_b32 s{r}, s{base}")
        e(f"s_and_b32 s{r+1}, s{base+1}, 0xffff")
    else:
        e(f"s_add_u32 s{r}, s{base}, s{off}")
        e(f"s_addc_u32 s{r+1}, s{base+1}, 0")
        e(f"s_and_b32 s{r+1}, s{r+1}, 0xffff")
    e(f"s_mov_b32 s{r+2}, {nbytes}")
    e(f"s_mov_b32 s{r+3}, 0x20000")

def nloads(tile):
    return 5 if tile[0] == "O" else 6

def gen(nb=4, nq0=1, nfl=10, nflq=11, backlog=1, wo_first=7, wo_step=2, f_kv="nt", f_wq="", f_wo="", f_x="",
        hmap=1, stagger=1, rota=(0, 2, 4, 6), rotb=(8, 9, 1, 5), krot=(0, 8), trace=0, flag_pos=30, hint=1,
        spin_max=20000, align_at=41, nflt=10, qsprinkle=0, fine=0):
    del TRACE_NAMES[:]
    T = V_T
    G, SS = T, T + 1

    class Ctx:
        pass
    cx = Ctx()
    cx.e = E()

    def tr_begin():
        if trace:
            cx.e(f"s_memrealtime s[{S_TR}:{S_TR+1}]")
    def tr_end(name):
        if trace:
            if name not in TRACE_NAMES:
                TRACE_NAMES.append(name)
            cx.e(f"v_writelane_b32 v{V_TR + 0}, s{S_TR}, {TRACE_NAMES.index(name)}")
    def tr(name):
        if trace:
            tr_begin()
            cx.e("s_waitcnt lgkmcnt(0)")
            tr_end(name)

    e = cx.e
    e(f"{KN}:")
    e("s_cmp_ge_u32 s2, 256")
    e("s_cbranch_scc1 L_end")
    tr_begin()
    if trace:
        e("s_memtime s[96:97]")
    e("s_load_dwordx16 s[4:19], s[0:1], 0")
    e(f"v_lshrrev_b32 v{T}, 6, v0")
    e(f"v_and_b32 v{V_L}, 63, v0")
    e(f"v_readfirstlane_b32 s{S_W}, v{T}")
    if trace:
        e(f"v_mov_b32 v{V_TR}, 0")
    if hmap:
        e(f"s_and_b32 s{S_H}, s2, 7")
        e(f"s_lshl_b32 s{S_H}, s{S_H}, 2")
        e(f"s_bfe_u32 s{S_T0}, s2, 0x20003")
        e(f"s_add_u32 s{S_H}, s{S_H}, s{S_T0}")
    else:
        e(f"s_and_b32 s{S_H}, s2, 31")
    e(f"s_lshr_b32 s{S_B}, s2, 5")
    e(f"s_mul_i32 s{S_RING}, s{S_W}, {RING}")
    e(f"s_mul_i32 s{S_QW}, s{S_W}, {160*12288}")
    e.c("first key tile of this wave, rotated per workgroup")
    e(f"s_lshr_b32 s{S_T0}, s2, 3")
    e(f"s_mul_i32 s{S_T0}, s{S_T0}, {krot[0]}")
    e(f"s_and_b32 s{S_T1}, s2, 7")
    e(f"s_mul_i32 s{S_T1}, s{S_T1}, {krot[1]}")
    e(f"s_add_u32 s{S_T0}, s{S_T0}, s{S_T1}")
    e(f"s_add_u32 s{S_T0}, s{S_T0}, s{S_W}")
    e(f"s_and_b32 s{S_T0}, s{S_T0}, 63")
    e(f"s_mul_i32 s{S_KW}, s{S_T0}, {SLOT}")
    e.c("first wq tile, rotated per batch so that the sharers of a head start on different rows")
    if stagger:
        rots = [rota[0], rotb[0], rota[1], rotb[1], rota[2], rotb[2], rota[3], rotb[3]]
    else:
        rots = [0, 1, 3, 4, 5, 6, 8, 9]
    packed = sum(r << (4 * i) for i, r in enumerate(rots))
    e(f"s_lshl_b32 s{S_T0}, s{S_B}, 2")
    e(f"s_lshr_b32 s{S_T0}, {packed:#x}, s{S_T0}")
    e(f"s_and_b32 s{S_TP}, s{S_T0}, 15")
    for p in range(1, 10):
        e(f"s_add_u32 s{S_TP+p}, s{S_TP+p-1}, 1")
        e(f"s_cmp_eq_u32 s{S_TP+p}, 10")
        e(f"s_cselect_b32 s{S_TP+p}, 0, s{S_TP+p}")
    e.c("DMA source offsets (16-byte chunks XOR-swizzled inside each 128-byte line)")
    e(f"v_lshrrev_b32 v{T}, 3, v{V_L}")
    e(f"v_and_b32 v{T+1}, 7, v{V_L}")
    for i in range(6):
        e(f"v_add_u32 v{T+2}, {8*i}, v{T}")
        e(f"v_mul_u32_u24 v{T+3}, 43, v{T+2}")
        e(f"v_lshrrev_b32 v{T+3}, 7, v{T+3}")
        e(f"v_and_b32 v{T+4}, 6, v{T+3}")
        e(f"v_xor_b32 v{T+4}, v{T+4}, v{T+1}")
        e(f"v_lshlrev_b32 v{T+4}, 4, v{T+4}")
        e(f"v_lshl_add_u32 v{V_KV+i}, v{T+2}, 7, v{T+4}")
        e(f"v_mul_u32_u24 v{T+3}, {12288-384}, v{T+3}")
        e(f"v_add_u32 v{V_WQ+i}, v{V_KV+i}, v{T+3}")
    e(f"v_lshrrev_b32 v{G}, 4, v{V_L}")
    e(f"v_and_b32 v{SS}, 3, v{V_L}")
    e.c("x staging: 80 chunks of 16 bytes, LDS image [row][320 bytes]")
    e(f"v_mul_u32_u24 v{T+2}, 205, v{V_L}")
    e(f"v_lshrrev_b32 v{T+2}, 12, v{T+2}")
    e(f"v_mul_u32_u24 v{T+2}, {1280-320}, v{T+2}")
    e(f"v_lshl_add_u32 v{T+2}, v{V_L}, 4, v{T+2}")
    e(f"s_mul_i32 s{S_T0}, s{S_W}, 320")
    e(f"v_add_u32 v{V_XO}, s{S_T0}, v{T+2}")
    e(f"v_lshlrev_b32 v{T+2}, 4, v{V_L}")
    e(f"v_add_u32 v{T+2}, {3*1280 + 64}, v{T+2}")
    e(f"v_add_u32 v{V_TK}, s{S_T0}, v{T+2}")
    e(f"s_mul_i32 s{S_XL}, s{S_W}, {PWAVE}")
    e(f"s_add_u32 s{S_XL}, s{S_XL}, {PART}")
    e("s_waitcnt lgkmcnt(0)")
    tr_end("start")
    e(f"s_mul_i32 s{S_T0}, s{S_H}, 384")
    e(f"s_sub_u32 s{S_T1}, {640*12288}, s{S_T0}")
    srd(e, R_WQ, S_WQ, S_T0, f"s{S_T1}")

    def issue_one(tile, slot, i):
        e = cx.e
        kind, t = tile
        if kind in "KV":
            r, vo, fl = (R_K if kind == "K" else R_V), V_KV, f_kv
            if i == 0:
                e(f"s_add_u32 s{S_OFF}, s{S_KW}, {t*4*SLOT}")
                e(f"s_sub_u32 s{S_T1}, s{S_OFF}, {64*SLOT}")
                e(f"s_cselect_b32 s{S_OFF}, s{S_OFF}, s{S_T1}")
        elif kind == "Q":
            r, vo, fl = R_WQ, V_WQ, f_wq
            if i == 0:
                e(f"s_mul_i32 s{S_OFF}, s{S_TP+t}, {16*12288}")
                e(f"s_add_u32 s{S_OFF}, s{S_OFF}, s{S_QW}")
        else:
            r, vo, fl = R_WO, V_WO, f_wo
            if i == 0:
                e(f"s_mov_b32 s{S_OFF}, {t*16*1280}")
        e(f"s_add_u32 m0, s{S_RING}, {slot*SLOT + i*1024}")
        e("s_nop 0")
        e.vmop(f"buffer_load_dwordx4 v{vo+i}, s[{r}:{r+3}], s{S_OFF} offen {fl} lds", (tile, i))

    def xloads():
        e = cx.e
        e(f"s_mul_i32 s{S_T0}, s{S_B}, 5120")
        srd(e, R_X, S_X, S_T0, 5120)
        e(f"s_mov_b32 m0, s{S_XL}")
        e("s_nop 0")
        e.vmop(f"buffer_load_dwordx4 v{V_XO}, s[{R_X}:{R_X+3}], 0 offen {f_x} lds", ("x", 0))
        e(f"s_add_u32 m0, s{S_XL}, 1024")
        e("s_mov_b64 exec, 0xffff")
        e.vmop(f"buffer_load_dwordx4 v{V_TK}, s[{R_X}:{R_X+3}], 0 offen {f_x} lds", ("x", 1))
        e("s_mov_b64 exec, -1")

    def kv_srds():
        e = cx.e
        e(f"s_lshl_b32 s{S_T0}, s{S_B}, 5")
        e(f"s_add_u32 s{S_T0}, s{S_T0}, s{S_H}")
        e(f"s_mul_i32 s{S_T0}, s{S_T0}, 1572864")
        e(f"s_add_u32 s{S_T0}, s{S_T0}, {3072*384}")
        srd(e, R_K, S_K, S_T0, 393216)
        srd(e, R_V, S_V, S_T0, 393216)

    def xreads():
        e = cx.e
        e(f"v_mul_u32_u24 v{T+2}, 320, v{SS}")
        e(f"v_lshl_add_u32 v{T+2}, v{G}, 3, v{T+2}")
        e(f"v_add_u32 v{T+2}, s{S_XL}, v{T+2}")
        e.wait_vm(("x", 1))
        for p in range(10):
            e(f"v_lshl_add_u32 v{T+3}, s{S_TP+p}, 5, v{T+2}")
            e(f"ds_read_b64 v[{V_XR+2*p}:{V_XR+2*p+1}], v{T+3}")

    def late_setup():
        e = cx.e
        e.c("remaining address registers and descriptors")
        e(f"s_mov_b32 s{S_SCALE}, {f32(192 ** -0.5):#x}")
        e(f"s_mov_b32 s{S_L2E}, {f32(1.4426950408889634):#x}")
        e(f"s_mul_i32 s{S_T0}, s{S_H}, 245760")
        srd(e, R_WO, S_WO, S_T0, 245760)
        e(f"s_mul_i32 s{S_T0}, s{S_W}, 320")
        for i in range(5):
            e(f"v_add_u32 v{T+2}, {64*i}, v{V_L}")
            e(f"v_mul_u32_u24 v{T+3}, 205, v{T+2}")
            e(f"v_lshrrev_b32 v{T+3}, 12, v{T+3}")
            e(f"v_mul_u32_u24 v{T+3}, {1280-320}, v{T+3}")
            e(f"v_lshl_add_u32 v{T+3}, v{T+2}, 4, v{T+3}")
            e(f"v_add_u32 v{V_WO+i}, s{S_T0}, v{T+3}")
        e.c("K operand read addresses")
        e(f"v_and_b32 v{T+2}, 15, v{V_L}")
        e(f"v_and_b32 v{T+3}, 6, v{T+2}")
        e(f"v_xor_b32 v{T+3}, v{T+3}, v{G}")
        e(f"v_lshlrev_b32 v{T+3}, 4, v{T+3}")
        e(f"v_mul_u32_u24 v{T+2}, 384, v{T+2}")
        e(f"v_add3_u32 v{V_KA}, v{T+2}, v{T+3}, s{S_RING}")
        e(f"v_xor_b32 v{V_KA+1}, 64, v{V_KA}")
        e.c("transposing read addresses: row = lane>>2, column group = lane&3")
        e(f"v_lshrrev_b32 v{T+2}, 2, v{V_L}")
        e(f"v_and_b32 v{T+3}, 6, v{T+2}")
        e(f"v_lshlrev_b32 v{T+3}, 4, v{T+3}")
        e(f"v_lshl_add_u32 v{T+3}, v{SS}, 3, v{T+3}")
        e(f"v_mul_u32_u24 v{T+4}, 384, v{T+2}")
        e(f"v_add3_u32 v{V_VA}, v{T+4}, v{T+3}, s{S_RING}")
        for q in range(1, 4):
            e(f"v_xor_b32 v{V_VA+q}, {32*q}, v{V_VA}")
        e(f"v_mul_u32_u24 v{T+4}, 320, v{T+2}")
        e(f"v_lshl_add_u32 v{T+4}, v{SS}, 3, v{T+4}")
        e(f"v_add_u32 v{V_WA}, s{S_RING}, v{T+4}")
        e.c("cross-wave exchange addresses")
        e(f"v_mul_u32_u24 v{T+2}, {PROW}, v{SS}")
        e(f"v_lshl_add_u32 v{T+2}, v{G}, 4, v{T+2}")
        e(f"v_add_u32 v{V_PW}, s{S_XL}, v{T+2}")
        e(f"v_mul_u32_u24 v{T+3}, 1366, v0")
        e(f"v_lshrrev_b32 v{T+3}, 16, v{T+3}")
        e(f"v_lshlrev_b32 v{T+3}, 4, v{T+3}")
        e(f"v_lshl_add_u32 v{T+2}, v0, 4, v{T+3}")
        e(f"v_add_u32 v{V_PR}, {PART}, v{T+2}")
        e(f"v_lshl_add_u32 v{T+2}, v0, 3, v{T+3}")
        e(f"v_add_u32 v{V_BW}, {QBF}, v{T+2}")
        e(f"v_mul_u32_u24 v{T+2}, {BROW}, v{SS}")
        e(f"v_add_u32 v{T+2}, {QBF}, v{T+2}")
        e(f"v_lshl_add_u32 v{V_BR}, v{G}, 4, v{T+2}")
        e(f"v_lshl_add_u32 v{V_BO}, v{G}, 3, v{T+2}")
        e(f"v_lshlrev_b32 v{T+2}, 6, v{SS}")
        e(f"v_add_u32 v{V_RR}, {RMAX}, v{T+2}")
        e(f"s_lshl_b32 s{S_T0}, s{S_W}, 4")
        e(f"v_lshl_add_u32 v{T+2}, v{G}, 2, v{V_RR}")
        e(f"v_add_u32 v{V_RW}, s{S_T0}, v{T+2}")
        e.c("inbox slot of this head: [batch][tile][head][16 lanes x 16 bytes]")
        e(f"s_mul_i32 s{S_T0}, s{S_B}, {INBOX_B}")
        e(f"s_lshl_b32 s{S_T1}, s{S_H}, 8")
        e(f"s_add_u32 s{S_T0}, s{S_T0}, s{S_T1}")
        e(f"s_sub_u32 s{S_T1}, {INBOX_B}, s{S_T1}")
        srd(e, R_IN, S_WS, S_T0, f"s{S_T1}")
        e(f"v_lshl_add_u32 v{T+2}, v{G}, 2, v{SS}")
        e(f"v_lshlrev_b32 v{T+2}, 4, v{T+2}")
        e(f"s_mul_i32 s{S_T0}, s{S_W}, {10*8192}")
        e(f"v_add_u32 v{V_ST}, s{S_T0}, v{T+2}")
        e(f"v_and_b32 v{T+2}, 12, v{V_L}")
        e(f"v_lshl_add_u32 v{V_ST}, v{T+2}, 11, v{V_ST}")
        e(f"v_and_b32 v{T+2}, 8, v{V_L}")
        e(f"v_lshl_add_u32 v{V_ST2}, v{T+2}, 24, v{V_ST}")
        srd(e, R_DBG, S_DBG, None, 256)
        e(f"s_lshl_b32 s{S_T0}, s{S_B}, 2")
        e(f"v_mov_b32 v{V_DO}, s{S_T0}")
        e.c("tile this wave reduces at the end: wave 0 -> head, wave 1 -> 32 + head")
        e(f"s_lshl_b32 s{S_CT}, s{S_W}, 5")
        e(f"s_add_u32 s{S_CT}, s{S_CT}, s{S_H}")

    kv = [("K", t) for t in range(16)] + [("V", t) for t in range(16)]
    seq = []
    wo_i = 0
    for n, tl in enumerate(kv):
        seq.append(tl)
        if n + 1 >= wo_first and (n + 1 - wo_first) % wo_step == 0 and wo_i < 12:
            seq.append(("O", wo_i)); wo_i += 1
    assert wo_i == 12 and all(t[0] == "K" for t in seq[:7])

    class Stream:
        def __init__(self, order, slots):
            self.flat = [(tl, i) for tl in order for i in range(nloads(tl))]
            self.slot = slots
            self.next = 0
            self.busy = set()
        def can_issue(self):
            if self.next >= len(self.flat):
                return False
            tl, i = self.flat[self.next]
            return i > 0 or self.slot[tl] not in self.busy
        def issue_next(self):
            tl, i = self.flat[self.next]
            if i == 0:
                assert self.slot[tl] not in self.busy
                self.busy.add(self.slot[tl])
            issue_one(tl, self.slot[tl], i)
            self.next += 1
        def gated(self, n):
            vm = cx.e.vm
            if len(vm) >= n:
                cx.e.wait_vm(vm[len(vm) - n])
            self.issue_next()
        def top_up(self, n):
            while len(cx.e.vm) < n and self.can_issue():
                self.issue_next()
        def wait_tile(self, tl, n):
            last = (tl, nloads(tl) - 1)
            while self.flat.index(last) >= self.next:
                self.gated(n)
            while last in cx.e.vm:
                vm = cx.e.vm
                if self.can_issue() and (len(vm) < n or vm.index(last) >= len(vm) - n):
                    if len(vm) < n:
                        self.top_up(n)
                    else:
                        self.gated(n)
                else:
                    cx.e.wait_vm(last)
        def release(self, tl, n):
            self.busy.discard(self.slot[tl])
            if len(cx.e.vm) < n:
                self.top_up(n)
            else:
                for _ in range(backlog):
                    if self.can_issue():
                        self.gated(n)
        def sprinkle(self):
            if self.can_issue():
                self.issue_next()
        def next_tile(self):
            tl, i = self.flat[self.next]
            if i > 0:
                tl = self.flat[self.next + nloads(tl) - i][0]
            return tl

    main_slots = {tl: n % NSLOT for n, tl in enumerate(seq)}

    def tr_reads(slot):
        for dt in range(12):
            cx.e(f"ds_read_b64_tr_b16 v[{V_RD+2*dt}:{V_RD+2*dt+1}], v{V_VA + (dt & 3)} offset:{slot*SLOT + 128*(dt >> 2)}")

    def pv_mfma(breg, first):
        for dt in range(12):
            a = V_ACC + 4 * dt
            cc = "0" if first else f"v[{a}:{a+3}]"
            cx.e(f"v_mfma_f32_16x16x16_bf16 v[{a}:{a+3}], v[{V_RD+2*dt}:{V_RD+2*dt+1}], v[{breg}:{breg+1}], {cc}")

    def reduce_partials(label, st):
        e = cx.e
        e.c("sum the four waves' partial rows, round to bf16")
        e("s_mov_b32 exec_lo, 0x000f000f")
        e("s_mov_b32 exec_hi, 0x000f000f")
        for dt in range(12):
            a = V_ACC + 4 * dt
            e(f"ds_write_b128 v{V_PW}, v[{a}:{a+3}] offset:{64*dt}")
        e("s_mov_b64 exec, -1")
        if st:
            st.sprinkle()
        e("s_waitcnt lgkmcnt(0)")
        e("s_barrier")
        tr(label[2] + ".b1")
        e(f"s_cmp_eq_u32 s{S_W}, 3")
        e(f"s_cbranch_scc1 {label}")
        for w in range(4):
            e(f"ds_read_b128 v[{V_RD+4*w}:{V_RD+4*w+3}], v{V_PR} offset:{PWAVE*w}")
        e("s_waitcnt lgkmcnt(0)")
        for r in range(4):
            e(f"v_add_f32 v{V_RD+r}, v{V_RD+r}, v{V_RD+4+r}")
        for r in range(4):
            e(f"v_add_f32 v{V_RD+8+r}, v{V_RD+8+r}, v{V_RD+12+r}")
        for r in range(4):
            e(f"v_add_f32 v{V_RD+r}, v{V_RD+r}, v{V_RD+8+r}")
        e(f"v_cvt_pk_bf16_f32 v{V_RD+4}, v{V_RD}, v{V_RD+1}")
        e(f"v_cvt_pk_bf16_f32 v{V_RD+5}, v{V_RD+2}, v{V_RD+3}")
        e(f"ds_write_b64 v{V_BW}, v[{V_RD+4}:{V_RD+5}]")
        e("s_waitcnt lgkmcnt(0)")
        e(f"{label}:")
        e("s_barrier")

    def score_post(t):
        e = cx.e
        s = V_S + 4 * t
        a, b = T + 2, T + 3
        for rnd in range(2):
            e(f"v_cvt_pk_bf16_f32 v{a}, v{s}, v{s+1}")
            e(f"v_cvt_pk_bf16_f32 v{b}, v{s+2}, v{s+3}")
            e(f"v_lshlrev_b32 v{s}, 16, v{a}")
            e(f"v_and_b32 v{s+1}, 0xffff0000, v{a}")
            e(f"v_lshlrev_b32 v{s+2}, 16, v{b}")
            e(f"v_and_b32 v{s+3}, 0xffff0000, v{b}")
            if rnd == 0:
                for r in range(4):
                    e(f"v_mul_f32 v{s+r}, s{S_SCALE}, v{s+r}")
        e(f"v_max3_f32 v{V_M}, v{V_M}, v{s}, v{s+1}")
        e(f"v_max3_f32 v{V_M}, v{V_M}, v{s+2}, v{s+3}")

    lab = [0]
    def cond_block(cmp, body):
        lab[0] += 1
        n = lab[0]
        cx.e(cmp)
        cx.e(f"s_cbranch_scc1 L_skip_{n}")
        body()
        cx.e(f"L_skip_{n}:")

    def softmax(st):
        e = cx.e
        e.c("softmax over the 1024 keys of each query row")
        e("s_nop 7")
        score_post(15)
        st.sprinkle()
        e(f"ds_write_b32 v{V_RW}, v{V_M}")
        e("s_waitcnt lgkmcnt(0)")
        e("s_barrier")
        for i in range(4):
            e(f"ds_read_b128 v[{V_RD+4*i}:{V_RD+4*i+3}], v{V_RR} offset:{16*i}")
        def cleared():
            e.c("all four waves' inbox slots are emptied: count this workgroup")
            e(f"v_mov_b32 v{V_TK}, 1")
            e("s_mov_b64 exec, 1")
            e(f"buffer_atomic_add v{V_TK}, v{V_DO}, s[{R_DBG}:{R_DBG+3}], 0 offen sc1")
            e("s_mov_b64 exec, -1")
        cond_block(f"s_cmp_lg_u32 s{S_W}, 0", cleared)
        e("s_waitcnt lgkmcnt(0)")
        for i in range(8):
            e(f"v_max3_f32 v{V_M}, v{V_M}, v{V_RD+2*i}, v{V_RD+2*i+1}")
        e(f"v_mul_f32 v{V_M}, s{S_L2E}, v{V_M}")
        st.sprinkle()
        l0, l1 = T + 2, T + 3
        for r in range(64):
            e(f"v_fma_f32 v{V_S+r}, v{V_S+r}, s{S_L2E}, -v{V_M}")
        st.sprinkle()
        for r in range(64):
            e(f"v_exp_f32 v{V_S+r}, v{V_S+r}")
            if r == 31:
                st.sprinkle()
        st.sprinkle()
        e(f"v_add_f32 v{l0}, v{V_S}, v{V_S+1}")
        e(f"v_add_f32 v{l1}, v{V_S+2}, v{V_S+3}")
        for r in range(4, 64, 2):
            e(f"v_add_f32 v{l0}, v{l0}, v{V_S+r}")
            e(f"v_add_f32 v{l1}, v{l1}, v{V_S+r+1}")
        e(f"v_add_f32 v{l0}, v{l0}, v{l1}")
        e(f"ds_write_b32 v{V_RW}, v{l0} offset:{RSUM-RMAX}")
        e("s_waitcnt lgkmcnt(0)")
        e("s_barrier")
        for i in range(4):
            e(f"ds_read_b128 v[{V_RD+4*i}:{V_RD+4*i+3}], v{V_RR} offset:{RSUM-RMAX+16*i}")
        st.sprinkle()
        e("s_waitcnt lgkmcnt(0)")
        for i in range(8):
            e(f"v_add_f32 v{V_RD+i}, v{V_RD+i}, v{V_RD+8+i}")
        for i in range(4):
            e(f"v_add_f32 v{V_RD+i}, v{V_RD+i}, v{V_RD+4+i}")
        e(f"v_add_f32 v{V_RD}, v{V_RD}, v{V_RD+1}")
        e(f"v_add_f32 v{V_RD+2}, v{V_RD+2}, v{V_RD+3}")
        e(f"v_add_f32 v{V_RD}, v{V_RD}, v{V_RD+2}")
        e(f"v_rcp_f32 v{l0}, v{V_RD}")
        e("s_nop 0")
        for r in range(64):
            e(f"v_mul_f32 v{V_S+r}, v{l0}, v{V_S+r}")
        st.sprinkle()
        for r in range(32):
            e(f"v_cvt_pk_bf16_f32 v{V_P+r}, v{V_S+2*r}, v{V_S+2*r+1}")
        e("s_nop 1")

    def consume(st, tl):
        e = cx.e
        kind, t = tl
        sl = st.slot[tl]
        tr_begin()
        if kind == "K":
            for j in range(6):
                e(f"ds_read_b128 v[{V_RD+4*j}:{V_RD+4*j+3}], v{V_KA + (j & 1)} offset:{sl*SLOT + 128*(j >> 1)}")
            if t > 0:
                e("s_nop 1")
                score_post(t - 1)
            e("s_waitcnt lgkmcnt(0)")
            tr_end(f"K{t}")
            s = V_S + 4 * t
            for j in range(6):
                cc = "0" if j == 0 else f"v[{s}:{s+3}]"
                e(f"v_mfma_f32_16x16x32_bf16 v[{s}:{s+3}], v[{V_RD+4*j}:{V_RD+4*j+3}], v[{V_QB+4*j}:{V_QB+4*j+3}], {cc}")
            st.release(tl, nfl)
            if t == 15:
                softmax(st)
                tr("sm")
        elif kind == "V":
            tr_reads(sl)
            e("s_waitcnt lgkmcnt(0)")
            tr_end(f"V{t}")
            pv_mfma(V_P + 2 * t, t == 0)
            st.release(tl, nfl)
        elif kind == "Q":
            tr_reads(sl)
            e("s_waitcnt lgkmcnt(0)")
            tr_end(f"Q{t}")
            st.busy.discard(sl)
            st.top_up(nflq if t < 8 else nflt)
            pv_mfma(V_XR + 2 * t, t == 0)
        else:
            j, half = t >> 1, t & 1
            for nt in range(10):
                a = (j * 10 + nt) * 4 + 2 * half
                e(f"ds_read_b64_tr_b16 a[{a}:{a+1}], v{V_WA} offset:{sl*SLOT + 32*nt}")
            e("s_waitcnt lgkmcnt(0)")
            tr_end(f"O{t & ~1}")
            st.release(tl, nfl)

    def clear_inbox():
        e = cx.e
        e.c("empty this wave's inbox slots")
        for r in range(4):
            e(f"v_mov_b32 v{V_XR+r}, -1")
        for m in range(3):
            e(f"s_mov_b32 s{S_TP+m}, {4*8192*m}")
            e(f"buffer_store_dwordx4 v[{V_XR}:{V_XR+3}], v{V_ST if m < 2 else V_ST2}, s[{R_IN}:{R_IN+3}], s{S_TP+m} offen sc1")
        e.c("descriptors of the final reduction")
        e(f"s_mul_i32 s{S_T0}, s{S_B}, 40")
        e(f"s_add_u32 s{S_T0}, s{S_T0}, s{S_CT}")
        e(f"s_lshl_b32 s{S_T0}, s{S_T0}, 13")
        srd(e, R_RD, S_WS, S_T0, 8192)
        e(f"s_lshl_b32 s{S_T0}, s{S_B}, 8")
        e(f"s_add_u32 s{S_T0}, s{S_T0}, {HINT}")
        srd(e, R_HT, S_WS, S_T0, 4)
        e(f"s_mul_i32 s{S_T0}, s{S_B}, 5120")
        srd(e, R_OUT, S_OUT, S_T0, 5120)
        e(f"v_lshlrev_b32 v{V_XR+5}, 4, v{V_L}")
        e(f"v_add_u32 v{V_XR+6}, 4096, v{V_XR+5}")
        e.c("output byte offset: row s = lane&3, column 16*tile + 4*((lane>>2)&3) + {0,2,1,3}[lane>>4]")
        e(f"v_and_b32 v{V_XR+7}, 3, v{V_L}")
        e(f"v_mul_u32_u24 v{V_XR+7}, 1280, v{V_XR+7}")
        e(f"v_and_b32 v{V_XR+8}, 12, v{V_L}")
        e(f"v_lshl_add_u32 v{V_XR+7}, v{V_XR+8}, 1, v{V_XR+7}")
        e(f"v_bfe_u32 v{V_XR+8}, v{V_L}, 4, 1")
        e(f"v_lshl_add_u32 v{V_XR+7}, v{V_XR+8}, 2, v{V_XR+7}")
        e(f"v_lshrrev_b32 v{V_XR+8}, 5, v{V_L}")
        e(f"v_lshl_add_u32 v{V_XR+7}, v{V_XR+8}, 1, v{V_XR+7}")
        e(f"s_lshl_b32 s{S_T0}, s{S_CT}, 5")
        e(f"v_add_u32 v{V_XR+7}, s{S_T0}, v{V_XR+7}")
        if hint:
            def z():
                e(f"v_mov_b32 v{V_XR+4}, 0")
                e("s_mov_b64 exec, 1")
                e(f"buffer_store_dword v{V_XR+4}, off, s[{R_HT}:{R_HT+3}], 0 sc1")
                e("s_mov_b64 exec, -1")
            cond_block(f"s_cmp_lg_u32 s{S_CT}, 0", z)

    MERGE = 6
    def group(kind):
        if kind == "A":
            order = [("Q", p) for p in range(10)] + seq
            slots = dict(main_slots)
            slots.update({("Q", p): (p - 10) % NSLOT for p in range(10)})
        else:
            nq = NSLOT - nb
            order = [("Q", p) for p in range(nq0)] + seq[:nb] + [("Q", p) for p in range(nq0, 10)] + seq[nb:]
            slots = dict(main_slots)
            slots.update({("Q", p): nb + (p - (10 - nq)) % nq for p in range(10)})
        st = Stream(order, slots)
        st.next = 6
        st.busy.add(slots[("Q", 0)])
        cx.e.vm = list(first_vm)
        st.top_up(nflq)
        late_setup()
        xreads()
        for p in range(10):
            st.wait_tile(("Q", p), nflq)
            consume(st, ("Q", p))
        reduce_partials(f"L_qred_{kind}", st if qsprinkle else None)
        for j in range(6):
            cx.e(f"ds_read_b128 v[{V_QB+4*j}:{V_QB+4*j+3}], v{V_BR} offset:{64*j}")
        cx.e(f"v_mov_b32 v{V_M}, 0xff800000")
        st.sprinkle()
        cx.e("s_waitcnt lgkmcnt(0)")
        tr("qrdy")
        for pos in range(MERGE):
            tl = seq[pos]
            cx.e.c(f"consume {tl[0]}{tl[1]}")
            st.wait_tile(tl, nfl)
            consume(st, tl)
            if pos == 1:
                clear_inbox()
        return st

    e.c("first wq tile and the x operand, common to both start orders")
    q0a = (0 - 10) % NSLOT
    q0b = nb + (0 - (10 - (NSLOT - nb))) % (NSLOT - nb)
    if stagger and q0a != q0b:
        e(f"s_mov_b32 s{S_T0}, {q0a*SLOT}")
        e(f"s_bitcmp1_b32 s{S_B}, 0")
        e(f"s_cmov_b32 s{S_T0}, {q0b*SLOT}")
        e(f"s_add_u32 s{S_SPIN}, s{S_RING}, s{S_T0}")
    else:
        e(f"s_add_u32 s{S_SPIN}, s{S_RING}, {q0a*SLOT}")
    xloads()
    e(f"s_mul_i32 s{S_OFF}, s{S_TP}, {16*12288}")
    e(f"s_add_u32 s{S_OFF}, s{S_OFF}, s{S_QW}")
    for i in range(6):
        e(f"s_add_u32 m0, s{S_SPIN}, {i*1024}")
        e("s_nop 0")
        e.vmop(f"buffer_load_dwordx4 v{V_WQ+i}, s[{R_WQ}:{R_WQ+3}], s{S_OFF} offen {f_wq} lds", (("Q", 0), i))
    kv_srds()
    first_vm = list(e.vm)
    if stagger:
        e(f"s_bitcmp1_b32 s{S_B}, 0")
        e("s_cbranch_scc1 L_grp_b")
        head = cx.e
        cx.e = ea = E()
        sa = group("A")
        cx.e = eb = E()
        sb = group("B")
        X = max(sa.next, sb.next)
        for st, em in ((sa, ea), (sb, eb)):
            cx.e = em
            while st.next < X:
                st.gated(nfl)
        assert sa.busy == sb.busy and sa.flat[X:] == sb.flat[X:]
        n = max(len(ea.vm), len(eb.vm))
        assert sa.flat[X - n:X] == sb.flat[X - n:X]
        e = cx.e = head
        e.lines += ea.lines
        e("s_branch L_merge")
        e("L_grp_b:")
        e.lines += eb.lines
        e("L_merge:")
        e.vm = list(sa.flat[X - n:X])
        st = sa
    else:
        st = group("A")
        e = cx.e

    hooks = {}
    def h_flagload():
        def body():
            e(f"buffer_load_dword v{V_TK}, v{V_DO}, s[{R_DBG}:{R_DBG+3}], 0 offen sc1")
        cond_block(f"s_cmp_gt_u32 s{S_W}, 1", body)
        hooks[seq.index(st.next_tile())] = h_flagcheck
    def h_flagcheck():
        def body():
            e.c("every head of this batch has emptied its inbox slots")
            e(f"s_mov_b32 s{S_SPIN}, {spin_max}")
            e("L_spin:")
            e(f"v_readfirstlane_b32 s{S_T0}, v{V_TK}")
            e(f"s_sub_u32 s{S_SPIN}, s{S_SPIN}, 1")
            e("s_cbranch_scc1 L_spin_done")
            e(f"s_cmp_eq_u32 s{S_T0}, 32")
            e("s_cbranch_scc1 L_spin_done")
            e(f"buffer_load_dword v{V_TK}, v{V_DO}, s[{R_DBG}:{R_DBG+3}], 0 offen sc1")
            e("s_waitcnt vmcnt(0)")
            e("s_branch L_spin")
            e("L_spin_done:")
        cond_block(f"s_cmp_gt_u32 s{S_W}, 1", body)
    hooks[flag_pos] = h_flagload
    for pos in range(MERGE, len(seq)):
        tl = seq[pos]
        if pos == align_at:
            e.c("the rest of the kernel sits in one 4 KiB code page")
            e("s_branch L_tailpage")
            e(".p2align 12")
            e("L_tailpage:")
        e.c(f"consume {tl[0]}{tl[1]}")
        st.wait_tile(tl, nfl)
        if pos in hooks:
            hooks.pop(pos)()
        if pos == len(seq) - 1 and hint:
            def h():
                e(f"v_mov_b32 v{V_TK}, 1")
                e("s_mov_b64 exec, 1")
                e(f"buffer_atomic_add v{V_TK}, off, s[{R_HT}:{R_HT+3}], 0 sc1")
                e("s_mov_b64 exec, -1")
            cond_block(f"s_cmp_lg_u32 s{S_W}, 0", h)
        consume(st, tl)
    assert st.next == len(st.flat) and not hooks, hooks

    e.c("output projection of this head")
    reduce_partials("L_ored", None)
    tr_begin()
    for j in range(6):
        e(f"ds_read2_b64 v[{V_QB+4*j}:{V_QB+4*j+3}], v{V_BO} offset0:{8*j} offset1:{8*j+4}")
    e(f"v_mov_b32 v{V_M}, -2")
    if trace:
        e("s_memtime s[98:99]" if fine else "s_memtime s[94:95]")
    e("s_waitcnt lgkmcnt(0)")
    tr_end("obr")
    def out_mfma(nt, j):
        d = V_S + 4 * nt
        a = (j * 10 + nt) * 4
        cc = "0" if j == 0 else f"v[{d}:{d+3}]"
        e(f"v_mfma_f32_16x16x32_bf16 v[{d}:{d+3}], a[{a}:{a+3}], v[{V_QB+4*j}:{V_QB+4*j+3}], {cc}")
    def D_(nt):
        return V_S + 4 * nt
    ready = {}
    for nt in range(10):
        m, c = nt >> 2, nt & 3
        d = D_(4 * m)
        ops = [f"v_min_u32_dpp v{d+r}, v{D_(nt)+r}, v{V_M} quad_perm:[0,1,2,3] row_mask:0xf bank_mask:{1 << c:#x}" for r in range(4)]
        if c == 3 or nt == 9:
            ops.append(f"buffer_store_dwordx4 v[{d}:{d+3}], v{V_ST if m < 2 else V_ST2}, s[{R_IN}:{R_IN+3}], s{S_TP+m} offen sc1")
        ready[nt] = ops
    pend = []
    since = {}
    def flush_one():
        if pend:
            e(pend.pop(0))
            for k_ in since:
                since[k_] += 1
    for nt in range(10):
        for j in range(6):
            out_mfma(nt, j)
            for k_ in since:
                since[k_] += 1
            if j == 5:
                since[nt] = 0
                if fine:
                    e(f"s_memtime s[{78+2*nt}:{79+2*nt}]")
            if fine and nt == 0 and j == 0:
                e(f"s_memtime s[76:77]")
            for k_ in sorted(ready):
                if since.get(k_, -1) >= 8:
                    pend += ready.pop(k_)
            flush_one()
    while pend or len(ready) > 1:
        for k_ in sorted(ready):
            if k_ < 9 and since[k_] >= 8:
                pend += ready.pop(k_)
        if pend:
            flush_one()
        else:
            e("s_nop 0")
            for k_ in since:
                since[k_] += 1
    if since[9] < 8:
        e(f"s_nop {7 - since[9]}")
    for op in ready.pop(9):
        e(op)
    assert not ready
    if trace:
        e("s_memtime s[74:75]")
    tr("sent")
    if trace:
        e("s_sub_u32 s74, s74, s98" if fine else "s_sub_u32 s74, s74, s94")
        e(f"v_writelane_b32 v{V_TR}, s74, 62")
        if fine:
            for i in range(11):
                e(f"s_sub_u32 s{76+2*i}, s{76+2*i}, s98")
                e(f"v_writelane_b32 v{V_TR}, s{76+2*i}, {1+i}")
        else:
            e("s_sub_u32 s94, s94, s96")
            e(f"v_writelane_b32 v{V_TR}, s94, 61")
    e(f"s_cmp_ge_u32 s{S_CT}, 40")
    e("s_cbranch_scc1 L_fin")
    e.c("reduce one 16-column tile over the 32 heads")
    e(f"s_mov_b32 s{S_SPIN}, {spin_max}")
    if hint:
        e("L_hint:")
        e(f"buffer_load_dword v{V_TK}, off, s[{R_HT}:{R_HT+3}], 0 sc1")
        e(f"s_sub_u32 s{S_SPIN}, s{S_SPIN}, 1")
        e("s_cbranch_scc1 L_poll")
        e("s_waitcnt vmcnt(0)")
        e(f"v_readfirstlane_b32 s{S_T0}, v{V_TK}")
        e("s_nop 0")
        e(f"s_cmp_lt_u32 s{S_T0}, 32")
        e("s_cbranch_scc1 L_hint")
        tr("hint")
    D = V_S
    A = V_RD
    e("L_poll:")
    for i in range(8):
        e(f"buffer_load_dwordx4 v[{D+4*i}:{D+4*i+3}], v{V_XR + 5 + (i >> 2)}, s[{R_RD}:{R_RD+3}], 0 offen offset:{1024*(i & 3)} sc1")
    e("s_waitcnt vmcnt(6)")
    for r in range(4):
        e(f"v_add_f32 v{A+r}, v{D+r}, v{D+4+r}")
    for i in range(2, 8):
        e(f"s_waitcnt vmcnt({7-i})")
        for r in range(4):
            e(f"v_add_f32 v{A+r}, v{A+r}, v{D+4*i+r}")
    e(f"v_cmp_u_f32 vcc, v{A}, v{A+1}")
    e(f"v_cmp_u_f32 s[{S_T0}:{S_T0+1}], v{A+2}, v{A+3}")
    e("s_nop 0")
    e(f"s_or_b64 vcc, vcc, s[{S_T0}:{S_T0+1}]")
    e("s_cbranch_vccz L_ready")
    e.c("a NaN sum: retry while an empty marker is present")
    e(f"v_max3_u32 v{A+4}, v{D}, v{D+1}, v{D+2}")
    for i in range(3, 31, 2):
        e(f"v_max3_u32 v{A+4}, v{A+4}, v{D+i}, v{D+i+1}")
    e(f"v_max_u32 v{A+4}, v{A+4}, v{D+31}")
    e(f"v_cmp_eq_u32 vcc, -1, v{A+4}")
    e(f"s_sub_u32 s{S_SPIN}, s{S_SPIN}, 1")
    e("s_cbranch_scc1 L_ready")
    e("s_cbranch_vccnz L_poll")
    e("L_ready:")
    e(f"v_permlane32_swap_b32 v{A}, v{A+1}")
    e(f"v_permlane32_swap_b32 v{A+2}, v{A+3}")
    e("s_nop 0")
    e(f"v_add_f32 v{A}, v{A}, v{A+1}")
    e(f"v_add_f32 v{A+2}, v{A+2}, v{A+3}")
    e("s_nop 1")
    e(f"v_permlane16_swap_b32 v{A}, v{A+2}")
    e("s_nop 0")
    e(f"v_add_f32 v{A}, v{A}, v{A+2}")
    e(f"v_cvt_pk_bf16_f32 v{A}, v{A}, v{A}")
    e(f"buffer_store_short v{A}, v{V_XR+7}, s[{R_OUT}:{R_OUT+3}], 0 offen")
    e("L_fin:")
    if trace:
        e("s_waitcnt vmcnt(0)")
        tr("end")
        e(f"s_getreg_b32 s{S_T0}, hwreg(HW_REG_XCC_ID)")
        e(f"v_writelane_b32 v{V_TR}, s{S_T0}, 63")
        e(f"s_lshl_b32 s{S_T0}, s2, 2")
        e(f"s_add_u32 s{S_T0}, s{S_T0}, s{S_W}")
        e(f"s_lshl_b32 s{S_T0}, s{S_T0}, 8")
        e(f"s_add_u32 s{S_T0}, s{S_T0}, 0x2000000")
        srd(e, R_OUT, S_WS, S_T0, 256)
        e(f"v_lshlrev_b32 v{T+4}, 2, v{V_L}")
        e(f"buffer_store_dword v{V_TR}, v{T+4}, s[{R_OUT}:{R_OUT+3}], 0 offen")
        assert len(TRACE_NAMES) <= 60, len(TRACE_NAMES)
    e("L_end:")
    e("s_endpgm")

    return f"""; Fused q-projection + sliding-window attention + output projection, 256 workgroups = (batch, head).
; @launch grid=(256,1,1) block=(256,1,1) lds={LDS_BYTES}
.amdgcn_target "amdgcn-amd-amdhsa--gfx950"
.text
.globl {KN}
.p2align 12
.p2align 8
.type {KN},@function
{e.text()}
.section .rodata,"a"
.p2align 6
.amdhsa_kernel {KN}
  .amdhsa_next_free_vgpr 496
  .amdhsa_next_free_sgpr 102
  .amdhsa_accum_offset 256
  .amdhsa_group_segment_fixed_size 0
  .amdhsa_kernarg_size 64
  .amdhsa_user_sgpr_count 2
  .amdhsa_user_sgpr_kernarg_segment_ptr 1
  .amdhsa_system_sgpr_workgroup_id_x 1
.end_amdhsa_kernel
"""

if __name__ == "__main__":
    kw = eval("dict(" + (sys.argv[1] if len(sys.argv) > 1 else "") + ")")
    sys.stdout.write(gen(**kw))
```

```python
import struct, sys, copy

KN = "standalone__sliding_block_cached__sampling_kernel"
TRACE_NAMES = []

def f32(x):
    return struct.unpack("<I", struct.pack("<f", x))[0]

class E:
    def __init__(self):
        self.lines = []
        self.vm = []
    def __call__(self, s=""):
        self.lines.append("    " + s if s and not s.endswith(":") else s)
    def c(self, s):
        self.lines.append("    ; " + s)
    def vmop(self, s, tag):
        self(s)
        self.vm.append(tag)
    def wait_vm(self, tag):
        idx = max([i for i, t in enumerate(self.vm) if t == tag], default=-1)
        if idx < 0:
            return
        n = len(self.vm) - 1 - idx
        self(f"s_waitcnt vmcnt({min(n, 63)})")
        self.vm = self.vm[idx + 1:]
    def text(self):
        return "\n".join(self.lines) + "\n"

SLOT = 6144
NSLOT = 6
RING = SLOT * NSLOT
MISC = 4 * RING
PART = MISC
PROW = 784
PWAVE = 4 * PROW
BROW = 400
QBF = MISC + 4 * PWAVE
RMAX = QBF + 4 * BROW
RSUM = RMAX + 256
LDS_BYTES = RSUM + 256

INBOX_B = 40 * 8192
HINT = 8 * INBOX_B

S_W = 3
S_X, S_K, S_V, S_WQ, S_WO, S_OUT, S_DBG, S_WS = 4, 6, 8, 10, 12, 14, 16, 18
R_K, R_V, R_WQ, R_WO, R_X, R_IN, R_OUT, R_DBG = 20, 24, 28, 32, 36, 40, 44, 48
R_RD = 28
R_HT = 36
S_B, S_H, S_RING, S_OFF, S_T0, S_T1 = 52, 53, 54, 55, 56, 57
S_KW = 58
S_QW = 59
S_TP = 60
S_SCALE, S_L2E = 70, 71
S_CT = 72
S_SPIN = 73
S_XL = 74
S_M1, S_M3 = 76, 78
S_TR = 100

V_L = 1
V_KV = 2
V_WQ = 8
V_WO = 14
V_KA = 19
V_VA = 21
V_WA = 25
V_PW = 26
V_PR = 27
V_BW = 28
V_BR = 29
V_BO = 30
V_RW = 31
V_RR = 32
V_M = 33
V_T = 34
V_ST = 39
V_RD = 40
V_ACC = 64
V_QB = 112
V_S = 136
V_P = 200
V_XR = 232
V_TK = 252
V_DO = 253
V_TR = 254
V_XO = 255
V_ST2 = 255

def srd(e, r, base, off, nbytes):
    if off is None:
        e(f"s_mov_b32 s{r}, s{base}")
        e(f"s_and_b32 s{r+1}, s{base+1}, 0xffff")
    else:
        e(f"s_add_u32 s{r}, s{base}, s{off}")
        e(f"s_addc_u32 s{r+1}, s{base+1}, 0")
        e(f"s_and_b32 s{r+1}, s{r+1}, 0xffff")
    e(f"s_mov_b32 s{r+2}, {nbytes}")
    e(f"s_mov_b32 s{r+3}, 0x20000")

def nloads(tile):
    return 5 if tile[0] == "O" else 6

def gen(nb=4, nq0=1, nfl=10, nflq=11, backlog=1, wo_first=7, wo_step=2, f_kv="nt", f_wq="", f_wo="", f_x="",
        hmap=1, stagger=1, rota=(0, 2, 4, 6), rotb=(8, 9, 1, 5), krot=(0, 8), trace=0, flag_pos=30, hint=1,
        spin_max=20000, align_at=41, nflt=10, qsprinkle=0, fine=0, dbgtime=0):
    del TRACE_NAMES[:]
    T = V_T
    G, SS = T, T + 1

    class Ctx:
        pass
    cx = Ctx()
    cx.e = E()

    def tr_begin():
        if trace:
            cx.e(f"s_memrealtime s[{S_TR}:{S_TR+1}]")
    def tr_end(name):
        if trace:
            if name not in TRACE_NAMES:
                TRACE_NAMES.append(name)
            cx.e(f"v_writelane_b32 v{V_TR + 0}, s{S_TR}, {TRACE_NAMES.index(name)}")
    DT = {"start": 0, "qrdy": 1, "sm": 2, "V15": 3, "sent": 4, "end": 5, "Q0": 6}
    def dt(name):
        if dbgtime:
            cx.e(f"s_memrealtime s[{80+2*DT[name]}:{81+2*DT[name]}]")
    def tr(name):
        if trace:
            tr_begin()
            cx.e("s_waitcnt lgkmcnt(0)")
            tr_end(name)

    e = cx.e
    e(f"{KN}:")
    e("s_cmp_ge_u32 s2, 256")
    e("s_cbranch_scc1 L_end")
    dt("start")
    tr_begin()
    if trace:
        e("s_memtime s[96:97]")
    e("s_load_dwordx16 s[4:19], s[0:1], 0")
    e(f"v_lshrrev_b32 v{T}, 6, v0")
    e(f"v_and_b32 v{V_L}, 63, v0")
    e(f"v_readfirstlane_b32 s{S_W}, v{T}")
    if trace:
        e(f"v_mov_b32 v{V_TR}, 0")
    if hmap:
        e(f"s_and_b32 s{S_H}, s2, 7")
        e(f"s_lshl_b32 s{S_H}, s{S_H}, 2")
        e(f"s_bfe_u32 s{S_T0}, s2, 0x20003")
        e(f"s_add_u32 s{S_H}, s{S_H}, s{S_T0}")
    else:
        e(f"s_and_b32 s{S_H}, s2, 31")
    e(f"s_lshr_b32 s{S_B}, s2, 5")
    e(f"s_mul_i32 s{S_RING}, s{S_W}, {RING}")
    e(f"s_mul_i32 s{S_QW}, s{S_W}, {160*12288}")
    e.c("first key tile of this wave, rotated per workgroup")
    e(f"s_lshr_b32 s{S_T0}, s2, 3")
    e(f"s_mul_i32 s{S_T0}, s{S_T0}, {krot[0]}")
    e(f"s_and_b32 s{S_T1}, s2, 7")
    e(f"s_mul_i32 s{S_T1}, s{S_T1}, {krot[1]}")
    e(f"s_add_u32 s{S_T0}, s{S_T0}, s{S_T1}")
    e(f"s_add_u32 s{S_T0}, s{S_T0}, s{S_W}")
    e(f"s_and_b32 s{S_T0}, s{S_T0}, 63")
    e(f"s_mul_i32 s{S_KW}, s{S_T0}, {SLOT}")
    e.c("first wq tile, rotated per batch so that the sharers of a head start on different rows")
    if stagger:
        rots = [rota[0], rotb[0], rota[1], rotb[1], rota[2], rotb[2], rota[3], rotb[3]]
    else:
        rots = [0, 1, 3, 4, 5, 6, 8, 9]
    packed = sum(r << (4 * i) for i, r in enumerate(rots))
    e(f"s_lshl_b32 s{S_T0}, s{S_B}, 2")
    e(f"s_lshr_b32 s{S_T0}, {packed:#x}, s{S_T0}")
    e(f"s_and_b32 s{S_TP}, s{S_T0}, 15")
    for p in range(1, 10):
        e(f"s_add_u32 s{S_TP+p}, s{S_TP+p-1}, 1")
        e(f"s_cmp_eq_u32 s{S_TP+p}, 10")
        e(f"s_cselect_b32 s{S_TP+p}, 0, s{S_TP+p}")
    e.c("DMA source offsets (16-byte chunks XOR-swizzled inside each 128-byte line)")
    e(f"v_lshrrev_b32 v{T}, 3, v{V_L}")
    e(f"v_and_b32 v{T+1}, 7, v{V_L}")
    for i in range(6):
        e(f"v_add_u32 v{T+2}, {8*i}, v{T}")
        e(f"v_mul_u32_u24 v{T+3}, 43, v{T+2}")
        e(f"v_lshrrev_b32 v{T+3}, 7, v{T+3}")
        e(f"v_and_b32 v{T+4}, 6, v{T+3}")
        e(f"v_xor_b32 v{T+4}, v{T+4}, v{T+1}")
        e(f"v_lshlrev_b32 v{T+4}, 4, v{T+4}")
        e(f"v_lshl_add_u32 v{V_KV+i}, v{T+2}, 7, v{T+4}")
        e(f"v_mul_u32_u24 v{T+3}, {12288-384}, v{T+3}")
        e(f"v_add_u32 v{V_WQ+i}, v{V_KV+i}, v{T+3}")
    e(f"v_lshrrev_b32 v{G}, 4, v{V_L}")
    e(f"v_and_b32 v{SS}, 3, v{V_L}")
    e.c("x staging: 80 chunks of 16 bytes, LDS image [row][320 bytes]")
    e(f"v_mul_u32_u24 v{T+2}, 205, v{V_L}")
    e(f"v_lshrrev_b32 v{T+2}, 12, v{T+2}")
    e(f"v_mul_u32_u24 v{T+2}, {1280-320}, v{T+2}")
    e(f"v_lshl_add_u32 v{T+2}, v{V_L}, 4, v{T+2}")
    e(f"s_mul_i32 s{S_T0}, s{S_W}, 320")
    e(f"v_add_u32 v{V_XO}, s{S_T0}, v{T+2}")
    e(f"v_lshlrev_b32 v{T+2}, 4, v{V_L}")
    e(f"v_add_u32 v{T+2}, {3*1280 + 64}, v{T+2}")
    e(f"v_add_u32 v{V_TK}, s{S_T0}, v{T+2}")
    e(f"s_mul_i32 s{S_XL}, s{S_W}, {PWAVE}")
    e(f"s_add_u32 s{S_XL}, s{S_XL}, {PART}")
    e("s_waitcnt lgkmcnt(0)")
    tr_end("start")
    e(f"s_mul_i32 s{S_T0}, s{S_H}, 384")
    e(f"s_sub_u32 s{S_T1}, {640*12288}, s{S_T0}")
    srd(e, R_WQ, S_WQ, S_T0, f"s{S_T1}")

    def issue_one(tile, slot, i):
        e = cx.e
        kind, t = tile
        if kind in "KV":
            r, vo, fl = (R_K if kind == "K" else R_V), V_KV, f_kv
            if i == 0:
                e(f"s_add_u32 s{S_OFF}, s{S_KW}, {t*4*SLOT}")
                e(f"s_sub_u32 s{S_T1}, s{S_OFF}, {64*SLOT}")
                e(f"s_cselect_b32 s{S_OFF}, s{S_OFF}, s{S_T1}")
        elif kind == "Q":
            r, vo, fl = R_WQ, V_WQ, f_wq
            if i == 0:
                e(f"s_mul_i32 s{S_OFF}, s{S_TP+t}, {16*12288}")
                e(f"s_add_u32 s{S_OFF}, s{S_OFF}, s{S_QW}")
        else:
            r, vo, fl = R_WO, V_WO, f_wo
            if i == 0:
                e(f"s_mov_b32 s{S_OFF}, {t*16*1280}")
        e(f"s_add_u32 m0, s{S_RING}, {slot*SLOT + i*1024}")
        e("s_nop 0")
        e.vmop(f"buffer_load_dwordx4 v{vo+i}, s[{r}:{r+3}], s{S_OFF} offen {fl} lds", (tile, i))

    def xloads():
        e = cx.e
        e(f"s_mul_i32 s{S_T0}, s{S_B}, 5120")
        srd(e, R_X, S_X, S_T0, 5120)
        e(f"s_mov_b32 m0, s{S_XL}")
        e("s_nop 0")
        e.vmop(f"buffer_load_dwordx4 v{V_XO}, s[{R_X}:{R_X+3}], 0 offen {f_x} lds", ("x", 0))
        e(f"s_add_u32 m0, s{S_XL}, 1024")
        e("s_mov_b64 exec, 0xffff")
        e.vmop(f"buffer_load_dwordx4 v{V_TK}, s[{R_X}:{R_X+3}], 0 offen {f_x} lds", ("x", 1))
        e("s_mov_b64 exec, -1")

    def kv_srds():
        e = cx.e
        e(f"s_lshl_b32 s{S_T0}, s{S_B}, 5")
        e(f"s_add_u32 s{S_T0}, s{S_T0}, s{S_H}")
        e(f"s_mul_i32 s{S_T0}, s{S_T0}, 1572864")
        e(f"s_add_u32 s{S_T0}, s{S_T0}, {3072*384}")
        srd(e, R_K, S_K, S_T0, 393216)
        srd(e, R_V, S_V, S_T0, 393216)

    def xreads():
        e = cx.e
        e(f"v_mul_u32_u24 v{T+2}, 320, v{SS}")
        e(f"v_lshl_add_u32 v{T+2}, v{G}, 3, v{T+2}")
        e(f"v_add_u32 v{T+2}, s{S_XL}, v{T+2}")
        e.wait_vm(("x", 1))
        for p in range(10):
            e(f"v_lshl_add_u32 v{T+3}, s{S_TP+p}, 5, v{T+2}")
            e(f"ds_read_b64 v[{V_XR+2*p}:{V_XR+2*p+1}], v{T+3}")

    def late_setup():
        e = cx.e
        e.c("remaining address registers and descriptors")
        e(f"s_mov_b32 s{S_SCALE}, {f32(192 ** -0.5):#x}")
        e(f"s_mov_b32 s{S_L2E}, {f32(1.4426950408889634):#x}")
        e(f"s_mul_i32 s{S_T0}, s{S_H}, 245760")
        srd(e, R_WO, S_WO, S_T0, 245760)
        e(f"s_mul_i32 s{S_T0}, s{S_W}, 320")
        for i in range(5):
            e(f"v_add_u32 v{T+2}, {64*i}, v{V_L}")
            e(f"v_mul_u32_u24 v{T+3}, 205, v{T+2}")
            e(f"v_lshrrev_b32 v{T+3}, 12, v{T+3}")
            e(f"v_mul_u32_u24 v{T+3}, {1280-320}, v{T+3}")
            e(f"v_lshl_add_u32 v{T+3}, v{T+2}, 4, v{T+3}")
            e(f"v_add_u32 v{V_WO+i}, s{S_T0}, v{T+3}")
        e.c("K operand read addresses")
        e(f"v_and_b32 v{T+2}, 15, v{V_L}")
        e(f"v_and_b32 v{T+3}, 6, v{T+2}")
        e(f"v_xor_b32 v{T+3}, v{T+3}, v{G}")
        e(f"v_lshlrev_b32 v{T+3}, 4, v{T+3}")
        e(f"v_mul_u32_u24 v{T+2}, 384, v{T+2}")
        e(f"v_add3_u32 v{V_KA}, v{T+2}, v{T+3}, s{S_RING}")
        e(f"v_xor_b32 v{V_KA+1}, 64, v{V_KA}")
        e.c("transposing read addresses: row = lane>>2, column group = lane&3")
        e(f"v_lshrrev_b32 v{T+2}, 2, v{V_L}")
        e(f"v_and_b32 v{T+3}, 6, v{T+2}")
        e(f"v_lshlrev_b32 v{T+3}, 4, v{T+3}")
        e(f"v_lshl_add_u32 v{T+3}, v{SS}, 3, v{T+3}")
        e(f"v_mul_u32_u24 v{T+4}, 384, v{T+2}")
        e(f"v_add3_u32 v{V_VA}, v{T+4}, v{T+3}, s{S_RING}")
        for q in range(1, 4):
            e(f"v_xor_b32 v{V_VA+q}, {32*q}, v{V_VA}")
        e(f"v_mul_u32_u24 v{T+4}, 320, v{T+2}")
        e(f"v_lshl_add_u32 v{T+4}, v{SS}, 3, v{T+4}")
        e(f"v_add_u32 v{V_WA}, s{S_RING}, v{T+4}")
        e.c("cross-wave exchange addresses")
        e(f"v_mul_u32_u24 v{T+2}, {PROW}, v{SS}")
        e(f"v_lshl_add_u32 v{T+2}, v{G}, 4, v{T+2}")
        e(f"v_add_u32 v{V_PW}, s{S_XL}, v{T+2}")
        e(f"v_mul_u32_u24 v{T+3}, 1366, v0")
        e(f"v_lshrrev_b32 v{T+3}, 16, v{T+3}")
        e(f"v_lshlrev_b32 v{T+3}, 4, v{T+3}")
        e(f"v_lshl_add_u32 v{T+2}, v0, 4, v{T+3}")
        e(f"v_add_u32 v{V_PR}, {PART}, v{T+2}")
        e(f"v_lshl_add_u32 v{T+2}, v0, 3, v{T+3}")
        e(f"v_add_u32 v{V_BW}, {QBF}, v{T+2}")
        e(f"v_mul_u32_u24 v{T+2}, {BROW}, v{SS}")
        e(f"v_add_u32 v{T+2}, {QBF}, v{T+2}")
        e(f"v_lshl_add_u32 v{V_BR}, v{G}, 4, v{T+2}")
        e(f"v_lshl_add_u32 v{V_BO}, v{G}, 3, v{T+2}")
        e(f"v_lshlrev_b32 v{T+2}, 6, v{SS}")
        e(f"v_add_u32 v{V_RR}, {RMAX}, v{T+2}")
        e(f"s_lshl_b32 s{S_T0}, s{S_W}, 4")
        e(f"v_lshl_add_u32 v{T+2}, v{G}, 2, v{V_RR}")
        e(f"v_add_u32 v{V_RW}, s{S_T0}, v{T+2}")
        e.c("inbox slot of this head: [batch][tile][head][16 lanes x 16 bytes]")
        e(f"s_mul_i32 s{S_T0}, s{S_B}, {INBOX_B}")
        e(f"s_lshl_b32 s{S_T1}, s{S_H}, 8")
        e(f"s_add_u32 s{S_T0}, s{S_T0}, s{S_T1}")
        e(f"s_sub_u32 s{S_T1}, {INBOX_B}, s{S_T1}")
        srd(e, R_IN, S_WS, S_T0, f"s{S_T1}")
        e(f"v_lshl_add_u32 v{T+2}, v{G}, 2, v{SS}")
        e(f"v_lshlrev_b32 v{T+2}, 4, v{T+2}")
        e(f"s_mul_i32 s{S_T0}, s{S_W}, {10*8192}")
        e(f"v_add_u32 v{V_ST}, s{S_T0}, v{T+2}")
        e(f"v_and_b32 v{T+2}, 12, v{V_L}")
        e(f"v_lshl_add_u32 v{V_ST}, v{T+2}, 11, v{V_ST}")
        e(f"v_and_b32 v{T+2}, 8, v{V_L}")
        e(f"v_lshl_add_u32 v{V_ST2}, v{T+2}, 24, v{V_ST}")
        srd(e, R_DBG, S_DBG, None, 256)
        e(f"s_lshl_b32 s{S_T0}, s{S_B}, 2")
        e(f"v_mov_b32 v{V_DO}, s{S_T0}")
        e.c("tile this wave reduces at the end: wave 0 -> head, wave 1 -> 32 + head")
        e(f"s_lshl_b32 s{S_CT}, s{S_W}, 5")
        e(f"s_add_u32 s{S_CT}, s{S_CT}, s{S_H}")

    kv = [("K", t) for t in range(16)] + [("V", t) for t in range(16)]
    seq = []
    wo_i = 0
    for n, tl in enumerate(kv):
        seq.append(tl)
        if n + 1 >= wo_first and (n + 1 - wo_first) % wo_step == 0 and wo_i < 12:
            seq.append(("O", wo_i)); wo_i += 1
    assert wo_i == 12 and all(t[0] == "K" for t in seq[:7])

    class Stream:
        def __init__(self, order, slots):
            self.flat = [(tl, i) for tl in order for i in range(nloads(tl))]
            self.slot = slots
            self.next = 0
            self.busy = set()
        def can_issue(self):
            if self.next >= len(self.flat):
                return False
            tl, i = self.flat[self.next]
            return i > 0 or self.slot[tl] not in self.busy
        def issue_next(self):
            tl, i = self.flat[self.next]
            if i == 0:
                assert self.slot[tl] not in self.busy
                self.busy.add(self.slot[tl])
            issue_one(tl, self.slot[tl], i)
            self.next += 1
        def gated(self, n):
            vm = cx.e.vm
            if len(vm) >= n:
                cx.e.wait_vm(vm[len(vm) - n])
            self.issue_next()
        def top_up(self, n):
            while len(cx.e.vm) < n and self.can_issue():
                self.issue_next()
        def wait_tile(self, tl, n):
            last = (tl, nloads(tl) - 1)
            while self.flat.index(last) >= self.next:
                self.gated(n)
            while last in cx.e.vm:
                vm = cx.e.vm
                if self.can_issue() and (len(vm) < n or vm.index(last) >= len(vm) - n):
                    if len(vm) < n:
                        self.top_up(n)
                    else:
                        self.gated(n)
                else:
                    cx.e.wait_vm(last)
        def release(self, tl, n):
            self.busy.discard(self.slot[tl])
            if len(cx.e.vm) < n:
                self.top_up(n)
            else:
                for _ in range(backlog):
                    if self.can_issue():
                        self.gated(n)
        def sprinkle(self):
            if self.can_issue():
                self.issue_next()
        def next_tile(self):
            tl, i = self.flat[self.next]
            if i > 0:
                tl = self.flat[self.next + nloads(tl) - i][0]
            return tl

    main_slots = {tl: n % NSLOT for n, tl in enumerate(seq)}

    def tr_reads(slot):
        for dt in range(12):
            cx.e(f"ds_read_b64_tr_b16 v[{V_RD+2*dt}:{V_RD+2*dt+1}], v{V_VA + (dt & 3)} offset:{slot*SLOT + 128*(dt >> 2)}")

    def pv_mfma(breg, first):
        for dt in range(12):
            a = V_ACC + 4 * dt
            cc = "0" if first else f"v[{a}:{a+3}]"
            cx.e(f"v_mfma_f32_16x16x16_bf16 v[{a}:{a+3}], v[{V_RD+2*dt}:{V_RD+2*dt+1}], v[{breg}:{breg+1}], {cc}")

    def reduce_partials(label, st):
        e = cx.e
        e.c("sum the four waves' partial rows, round to bf16")
        e("s_mov_b32 exec_lo, 0x000f000f")
        e("s_mov_b32 exec_hi, 0x000f000f")
        for dt in range(12):
            a = V_ACC + 4 * dt
            e(f"ds_write_b128 v{V_PW}, v[{a}:{a+3}] offset:{64*dt}")
        e("s_mov_b64 exec, -1")
        if st:
            st.sprinkle()
        e("s_waitcnt lgkmcnt(0)")
        e("s_barrier")
        tr(label[2] + ".b1")
        e(f"s_cmp_eq_u32 s{S_W}, 3")
        e(f"s_cbranch_scc1 {label}")
        for w in range(4):
            e(f"ds_read_b128 v[{V_RD+4*w}:{V_RD+4*w+3}], v{V_PR} offset:{PWAVE*w}")
        e("s_waitcnt lgkmcnt(0)")
        for r in range(4):
            e(f"v_add_f32 v{V_RD+r}, v{V_RD+r}, v{V_RD+4+r}")
        for r in range(4):
            e(f"v_add_f32 v{V_RD+8+r}, v{V_RD+8+r}, v{V_RD+12+r}")
        for r in range(4):
            e(f"v_add_f32 v{V_RD+r}, v{V_RD+r}, v{V_RD+8+r}")
        e(f"v_cvt_pk_bf16_f32 v{V_RD+4}, v{V_RD}, v{V_RD+1}")
        e(f"v_cvt_pk_bf16_f32 v{V_RD+5}, v{V_RD+2}, v{V_RD+3}")
        e(f"ds_write_b64 v{V_BW}, v[{V_RD+4}:{V_RD+5}]")
        e("s_waitcnt lgkmcnt(0)")
        e(f"{label}:")
        e("s_barrier")

    def score_post(t):
        e = cx.e
        s = V_S + 4 * t
        a, b = T + 2, T + 3
        for rnd in range(2):
            e(f"v_cvt_pk_bf16_f32 v{a}, v{s}, v{s+1}")
            e(f"v_cvt_pk_bf16_f32 v{b}, v{s+2}, v{s+3}")
            e(f"v_lshlrev_b32 v{s}, 16, v{a}")
            e(f"v_and_b32 v{s+1}, 0xffff0000, v{a}")
            e(f"v_lshlrev_b32 v{s+2}, 16, v{b}")
            e(f"v_and_b32 v{s+3}, 0xffff0000, v{b}")
            if rnd == 0:
                for r in range(4):
                    e(f"v_mul_f32 v{s+r}, s{S_SCALE}, v{s+r}")
        e(f"v_max3_f32 v{V_M}, v{V_M}, v{s}, v{s+1}")
        e(f"v_max3_f32 v{V_M}, v{V_M}, v{s+2}, v{s+3}")

    lab = [0]
    def cond_block(cmp, body):
        lab[0] += 1
        n = lab[0]
        cx.e(cmp)
        cx.e(f"s_cbranch_scc1 L_skip_{n}")
        body()
        cx.e(f"L_skip_{n}:")

    def softmax(st):
        e = cx.e
        e.c("softmax over the 1024 keys of each query row")
        e("s_nop 7")
        score_post(15)
        st.sprinkle()
        e(f"ds_write_b32 v{V_RW}, v{V_M}")
        e("s_waitcnt lgkmcnt(0)")
        e("s_barrier")
        for i in range(4):
            e(f"ds_read_b128 v[{V_RD+4*i}:{V_RD+4*i+3}], v{V_RR} offset:{16*i}")
        def cleared():
            e.c("all four waves' inbox slots are emptied: count this workgroup")
            e(f"v_mov_b32 v{V_TK}, 1")
            e("s_mov_b64 exec, 1")
            e(f"buffer_atomic_add v{V_TK}, v{V_DO}, s[{R_DBG}:{R_DBG+3}], 0 offen sc1")
            e("s_mov_b64 exec, -1")
        cond_block(f"s_cmp_lg_u32 s{S_W}, 0", cleared)
        e("s_waitcnt lgkmcnt(0)")
        for i in range(8):
            e(f"v_max3_f32 v{V_M}, v{V_M}, v{V_RD+2*i}, v{V_RD+2*i+1}")
        e(f"v_mul_f32 v{V_M}, s{S_L2E}, v{V_M}")
        st.sprinkle()
        l0, l1 = T + 2, T + 3
        for r in range(64):
            e(f"v_fma_f32 v{V_S+r}, v{V_S+r}, s{S_L2E}, -v{V_M}")
        st.sprinkle()
        for r in range(64):
            e(f"v_exp_f32 v{V_S+r}, v{V_S+r}")
            if r == 31:
                st.sprinkle()
        st.sprinkle()
        e(f"v_add_f32 v{l0}, v{V_S}, v{V_S+1}")
        e(f"v_add_f32 v{l1}, v{V_S+2}, v{V_S+3}")
        for r in range(4, 64, 2):
            e(f"v_add_f32 v{l0}, v{l0}, v{V_S+r}")
            e(f"v_add_f32 v{l1}, v{l1}, v{V_S+r+1}")
        e(f"v_add_f32 v{l0}, v{l0}, v{l1}")
        e(f"ds_write_b32 v{V_RW}, v{l0} offset:{RSUM-RMAX}")
        e("s_waitcnt lgkmcnt(0)")
        e("s_barrier")
        for i in range(4):
            e(f"ds_read_b128 v[{V_RD+4*i}:{V_RD+4*i+3}], v{V_RR} offset:{RSUM-RMAX+16*i}")
        st.sprinkle()
        e("s_waitcnt lgkmcnt(0)")
        for i in range(8):
            e(f"v_add_f32 v{V_RD+i}, v{V_RD+i}, v{V_RD+8+i}")
        for i in range(4):
            e(f"v_add_f32 v{V_RD+i}, v{V_RD+i}, v{V_RD+4+i}")
        e(f"v_add_f32 v{V_RD}, v{V_RD}, v{V_RD+1}")
        e(f"v_add_f32 v{V_RD+2}, v{V_RD+2}, v{V_RD+3}")
        e(f"v_add_f32 v{V_RD}, v{V_RD}, v{V_RD+2}")
        e(f"v_rcp_f32 v{l0}, v{V_RD}")
        e("s_nop 0")
        for r in range(64):
            e(f"v_mul_f32 v{V_S+r}, v{l0}, v{V_S+r}")
        st.sprinkle()
        for r in range(32):
            e(f"v_cvt_pk_bf16_f32 v{V_P+r}, v{V_S+2*r}, v{V_S+2*r+1}")
        e("s_nop 1")

    def consume(st, tl):
        e = cx.e
        kind, t = tl
        sl = st.slot[tl]
        tr_begin()
        if kind == "K":
            for j in range(6):
                e(f"ds_read_b128 v[{V_RD+4*j}:{V_RD+4*j+3}], v{V_KA + (j & 1)} offset:{sl*SLOT + 128*(j >> 1)}")
            if t > 0:
                e("s_nop 1")
                score_post(t - 1)
            e("s_waitcnt lgkmcnt(0)")
            tr_end(f"K{t}")
            s = V_S + 4 * t
            for j in range(6):
                cc = "0" if j == 0 else f"v[{s}:{s+3}]"
                e(f"v_mfma_f32_16x16x32_bf16 v[{s}:{s+3}], v[{V_RD+4*j}:{V_RD+4*j+3}], v[{V_QB+4*j}:{V_QB+4*j+3}], {cc}")
            st.release(tl, nfl)
            if t == 15:
                softmax(st)
                tr("sm")
                dt("sm")
        elif kind == "V":
            tr_reads(sl)
            e("s_waitcnt lgkmcnt(0)")
            tr_end(f"V{t}")
            if t == 15:
                dt("V15")
            pv_mfma(V_P + 2 * t, t == 0)
            st.release(tl, nfl)
        elif kind == "Q":
            tr_reads(sl)
            e("s_waitcnt lgkmcnt(0)")
            tr_end(f"Q{t}")
            if t == 0:
                dt("Q0")
            st.busy.discard(sl)
            st.top_up(nflq if t < 8 else nflt)
            pv_mfma(V_XR + 2 * t, t == 0)
        else:
            j, half = t >> 1, t & 1
            for nt in range(10):
                a = (j * 10 + nt) * 4 + 2 * half
                e(f"ds_read_b64_tr_b16 a[{a}:{a+1}], v{V_WA} offset:{sl*SLOT + 32*nt}")
            e("s_waitcnt lgkmcnt(0)")
            tr_end(f"O{t & ~1}")
            st.release(tl, nfl)

    def clear_inbox():
        e = cx.e
        e.c("empty this wave's inbox slots")
        for r in range(4):
            e(f"v_mov_b32 v{V_XR+r}, -1")
        for m in range(3):
            e(f"s_mov_b32 s{S_TP+m}, {4*8192*m}")
            e(f"buffer_store_dwordx4 v[{V_XR}:{V_XR+3}], v{V_ST if m < 2 else V_ST2}, s[{R_IN}:{R_IN+3}], s{S_TP+m} offen sc1")
        e.c("descriptors of the final reduction")
        e(f"s_mul_i32 s{S_T0}, s{S_B}, 40")
        e(f"s_add_u32 s{S_T0}, s{S_T0}, s{S_CT}")
        e(f"s_lshl_b32 s{S_T0}, s{S_T0}, 13")
        srd(e, R_RD, S_WS, S_T0, 8192)
        e(f"s_lshl_b32 s{S_T0}, s{S_B}, 8")
        e(f"s_add_u32 s{S_T0}, s{S_T0}, {HINT}")
        srd(e, R_HT, S_WS, S_T0, 4)
        e(f"s_mul_i32 s{S_T0}, s{S_B}, 5120")
        srd(e, R_OUT, S_OUT, S_T0, 5120)
        e(f"v_lshlrev_b32 v{V_XR+5}, 4, v{V_L}")
        e(f"v_add_u32 v{V_XR+6}, 4096, v{V_XR+5}")
        e.c("output byte offset: row s = lane&3, column 16*tile + 4*((lane>>2)&3) + {0,2,1,3}[lane>>4]")
        e(f"v_and_b32 v{V_XR+7}, 3, v{V_L}")
        e(f"v_mul_u32_u24 v{V_XR+7}, 1280, v{V_XR+7}")
        e(f"v_and_b32 v{V_XR+8}, 12, v{V_L}")
        e(f"v_lshl_add_u32 v{V_XR+7}, v{V_XR+8}, 1, v{V_XR+7}")
        e(f"v_bfe_u32 v{V_XR+8}, v{V_L}, 4, 1")
        e(f"v_lshl_add_u32 v{V_XR+7}, v{V_XR+8}, 2, v{V_XR+7}")
        e(f"v_lshrrev_b32 v{V_XR+8}, 5, v{V_L}")
        e(f"v_lshl_add_u32 v{V_XR+7}, v{V_XR+8}, 1, v{V_XR+7}")
        e(f"s_lshl_b32 s{S_T0}, s{S_CT}, 5")
        e(f"v_add_u32 v{V_XR+7}, s{S_T0}, v{V_XR+7}")
        if hint:
            def z():
                e(f"v_mov_b32 v{V_XR+4}, 0")
                e("s_mov_b64 exec, 1")
                e(f"buffer_store_dword v{V_XR+4}, off, s[{R_HT}:{R_HT+3}], 0 sc1")
                e("s_mov_b64 exec, -1")
            cond_block(f"s_cmp_lg_u32 s{S_CT}, 0", z)

    MERGE = 6
    def group(kind):
        if kind == "A":
            order = [("Q", p) for p in range(10)] + seq
            slots = dict(main_slots)
            slots.update({("Q", p): (p - 10) % NSLOT for p in range(10)})
        else:
            nq = NSLOT - nb
            order = [("Q", p) for p in range(nq0)] + seq[:nb] + [("Q", p) for p in range(nq0, 10)] + seq[nb:]
            slots = dict(main_slots)
            slots.update({("Q", p): nb + (p - (10 - nq)) % nq for p in range(10)})
        st = Stream(order, slots)
        st.next = 6
        st.busy.add(slots[("Q", 0)])
        cx.e.vm = list(first_vm)
        st.top_up(nflq)
        late_setup()
        xreads()
        for p in range(10):
            st.wait_tile(("Q", p), nflq)
            consume(st, ("Q", p))
        reduce_partials(f"L_qred_{kind}", st if qsprinkle else None)
        for j in range(6):
            cx.e(f"ds_read_b128 v[{V_QB+4*j}:{V_QB+4*j+3}], v{V_BR} offset:{64*j}")
        cx.e(f"v_mov_b32 v{V_M}, 0xff800000")
        st.sprinkle()
        cx.e("s_waitcnt lgkmcnt(0)")
        tr("qrdy")
        dt("qrdy")
        for pos in range(MERGE):
            tl = seq[pos]
            cx.e.c(f"consume {tl[0]}{tl[1]}")
            st.wait_tile(tl, nfl)
            consume(st, tl)
            if pos == 1:
                clear_inbox()
        return st

    e.c("first wq tile and the x operand, common to both start orders")
    q0a = (0 - 10) % NSLOT
    q0b = nb + (0 - (10 - (NSLOT - nb))) % (NSLOT - nb)
    if stagger and q0a != q0b:
        e(f"s_mov_b32 s{S_T0}, {q0a*SLOT}")
        e(f"s_bitcmp1_b32 s{S_B}, 0")
        e(f"s_cmov_b32 s{S_T0}, {q0b*SLOT}")
        e(f"s_add_u32 s{S_SPIN}, s{S_RING}, s{S_T0}")
    else:
        e(f"s_add_u32 s{S_SPIN}, s{S_RING}, {q0a*SLOT}")
    xloads()
    e(f"s_mul_i32 s{S_OFF}, s{S_TP}, {16*12288}")
    e(f"s_add_u32 s{S_OFF}, s{S_OFF}, s{S_QW}")
    for i in range(6):
        e(f"s_add_u32 m0, s{S_SPIN}, {i*1024}")
        e("s_nop 0")
        e.vmop(f"buffer_load_dwordx4 v{V_WQ+i}, s[{R_WQ}:{R_WQ+3}], s{S_OFF} offen {f_wq} lds", (("Q", 0), i))
    kv_srds()
    first_vm = list(e.vm)
    if stagger:
        e(f"s_bitcmp1_b32 s{S_B}, 0")
        e("s_cbranch_scc1 L_grp_b")
        head = cx.e
        cx.e = ea = E()
        sa = group("A")
        cx.e = eb = E()
        sb = group("B")
        X = max(sa.next, sb.next)
        for st, em in ((sa, ea), (sb, eb)):
            cx.e = em
            while st.next < X:
                st.gated(nfl)
        assert sa.busy == sb.busy and sa.flat[X:] == sb.flat[X:]
        n = max(len(ea.vm), len(eb.vm))
        assert sa.flat[X - n:X] == sb.flat[X - n:X]
        e = cx.e = head
        e.lines += ea.lines
        e("s_branch L_merge")
        e("L_grp_b:")
        e.lines += eb.lines
        e("L_merge:")
        e.vm = list(sa.flat[X - n:X])
        st = sa
    else:
        st = group("A")
        e = cx.e

    hooks = {}
    def h_flagload():
        def body():
            e(f"buffer_load_dword v{V_TK}, v{V_DO}, s[{R_DBG}:{R_DBG+3}], 0 offen sc1")
        cond_block(f"s_cmp_gt_u32 s{S_W}, 1", body)
        hooks[seq.index(st.next_tile())] = h_flagcheck
    def h_flagcheck():
        def body():
            e.c("every head of this batch has emptied its inbox slots")
            e(f"s_mov_b32 s{S_SPIN}, {spin_max}")
            e("L_spin:")
            e(f"v_readfirstlane_b32 s{S_T0}, v{V_TK}")
            e(f"s_sub_u32 s{S_SPIN}, s{S_SPIN}, 1")
            e("s_cbranch_scc1 L_spin_done")
            e(f"s_cmp_ge_u32 s{S_T0}, 32")
            e("s_cbranch_scc1 L_spin_done")
            e(f"buffer_load_dword v{V_TK}, v{V_DO}, s[{R_DBG}:{R_DBG+3}], 0 offen sc1")
            e("s_waitcnt vmcnt(0)")
            e("s_branch L_spin")
            e("L_spin_done:")
        cond_block(f"s_cmp_gt_u32 s{S_W}, 1", body)
    hooks[flag_pos] = h_flagload
    for pos in range(MERGE, len(seq)):
        tl = seq[pos]
        if pos == align_at:
            e.c("the rest of the kernel sits in one 4 KiB code page")
            e("s_branch L_tailpage")
            e(".p2align 12")
            e("L_tailpage:")
        e.c(f"consume {tl[0]}{tl[1]}")
        st.wait_tile(tl, nfl)
        if pos in hooks:
            hooks.pop(pos)()
        if pos == len(seq) - 1 and hint:
            def h():
                e(f"v_mov_b32 v{V_TK}, 1")
                e("s_mov_b64 exec, 1")
                e(f"buffer_atomic_add v{V_TK}, off, s[{R_HT}:{R_HT+3}], 0 sc1")
                e("s_mov_b64 exec, -1")
            cond_block(f"s_cmp_lg_u32 s{S_W}, 0", h)
        consume(st, tl)
    assert st.next == len(st.flat) and not hooks, hooks

    e.c("output projection of this head")
    reduce_partials("L_ored", None)
    tr_begin()
    for j in range(6):
        e(f"ds_read2_b64 v[{V_QB+4*j}:{V_QB+4*j+3}], v{V_BO} offset0:{8*j} offset1:{8*j+4}")
    e(f"v_mov_b32 v{V_M}, -2")
    if trace:
        e("s_memtime s[98:99]" if fine else "s_memtime s[94:95]")
    e("s_waitcnt lgkmcnt(0)")
    tr_end("obr")
    def out_mfma(nt, j):
        d = V_S + 4 * nt
        a = (j * 10 + nt) * 4
        cc = "0" if j == 0 else f"v[{d}:{d+3}]"
        e(f"v_mfma_f32_16x16x32_bf16 v[{d}:{d+3}], a[{a}:{a+3}], v[{V_QB+4*j}:{V_QB+4*j+3}], {cc}")
    def D_(nt):
        return V_S + 4 * nt
    ready = {}
    for nt in range(10):
        m, c = nt >> 2, nt & 3
        d = D_(4 * m)
        ops = [f"v_min_u32_dpp v{d+r}, v{D_(nt)+r}, v{V_M} quad_perm:[0,1,2,3] row_mask:0xf bank_mask:{1 << c:#x}" for r in range(4)]
        if c == 3 or nt == 9:
            ops.append(f"buffer_store_dwordx4 v[{d}:{d+3}], v{V_ST if m < 2 else V_ST2}, s[{R_IN}:{R_IN+3}], s{S_TP+m} offen sc1")
        ready[nt] = ops
    pend = []
    since = {}
    def flush_one():
        if pend:
            e(pend.pop(0))
            for k_ in since:
                since[k_] += 1
    for nt in range(10):
        for j in range(6):
            out_mfma(nt, j)
            for k_ in since:
                since[k_] += 1
            if j == 5:
                since[nt] = 0
                if fine:
                    e(f"s_memtime s[{78+2*nt}:{79+2*nt}]")
            if fine and nt == 0 and j == 0:
                e(f"s_memtime s[76:77]")
            for k_ in sorted(ready):
                if since.get(k_, -1) >= 8:
                    pend += ready.pop(k_)
            flush_one()
    while pend or len(ready) > 1:
        for k_ in sorted(ready):
            if k_ < 9 and since[k_] >= 8:
                pend += ready.pop(k_)
        if pend:
            flush_one()
        else:
            e("s_nop 0")
            for k_ in since:
                since[k_] += 1
    if since[9] < 8:
        e(f"s_nop {7 - since[9]}")
    for op in ready.pop(9):
        e(op)
    assert not ready
    if trace:
        e("s_memtime s[74:75]")
    tr("sent")
    dt("sent")
    if trace:
        e("s_sub_u32 s74, s74, s98" if fine else "s_sub_u32 s74, s74, s94")
        e(f"v_writelane_b32 v{V_TR}, s74, 62")
        if fine:
            for i in range(11):
                e(f"s_sub_u32 s{76+2*i}, s{76+2*i}, s98")
                e(f"v_writelane_b32 v{V_TR}, s{76+2*i}, {1+i}")
        else:
            e("s_sub_u32 s94, s94, s96")
            e(f"v_writelane_b32 v{V_TR}, s94, 61")
    e(f"s_cmp_ge_u32 s{S_CT}, 40")
    e("s_cbranch_scc1 L_fin")
    e.c("reduce one 16-column tile over the 32 heads")
    e(f"s_mov_b32 s{S_SPIN}, {spin_max}")
    if hint:
        e("L_hint:")
        e(f"buffer_load_dword v{V_TK}, off, s[{R_HT}:{R_HT+3}], 0 sc1")
        e(f"s_sub_u32 s{S_SPIN}, s{S_SPIN}, 1")
        e("s_cbranch_scc1 L_poll")
        e("s_waitcnt vmcnt(0)")
        e(f"v_readfirstlane_b32 s{S_T0}, v{V_TK}")
        e("s_nop 0")
        e(f"s_cmp_lt_u32 s{S_T0}, 32")
        e("s_cbranch_scc1 L_hint")
        tr("hint")
    D = V_S
    A = V_RD
    e("L_poll:")
    for i in range(8):
        e(f"buffer_load_dwordx4 v[{D+4*i}:{D+4*i+3}], v{V_XR + 5 + (i >> 2)}, s[{R_RD}:{R_RD+3}], 0 offen offset:{1024*(i & 3)} sc1")
    e("s_waitcnt vmcnt(6)")
    for r in range(4):
        e(f"v_add_f32 v{A+r}, v{D+r}, v{D+4+r}")
    for i in range(2, 8):
        e(f"s_waitcnt vmcnt({7-i})")
        for r in range(4):
            e(f"v_add_f32 v{A+r}, v{A+r}, v{D+4*i+r}")
    e(f"v_cmp_u_f32 vcc, v{A}, v{A+1}")
    e(f"v_cmp_u_f32 s[{S_T0}:{S_T0+1}], v{A+2}, v{A+3}")
    e("s_nop 0")
    e(f"s_or_b64 vcc, vcc, s[{S_T0}:{S_T0+1}]")
    e("s_cbranch_vccz L_ready")
    e.c("a NaN sum: retry while an empty marker is present")
    e(f"v_max3_u32 v{A+4}, v{D}, v{D+1}, v{D+2}")
    for i in range(3, 31, 2):
        e(f"v_max3_u32 v{A+4}, v{A+4}, v{D+i}, v{D+i+1}")
    e(f"v_max_u32 v{A+4}, v{A+4}, v{D+31}")
    e(f"v_cmp_eq_u32 vcc, -1, v{A+4}")
    e(f"s_sub_u32 s{S_SPIN}, s{S_SPIN}, 1")
    e("s_cbranch_scc1 L_ready")
    e("s_cbranch_vccnz L_poll")
    e("L_ready:")
    e(f"v_permlane32_swap_b32 v{A}, v{A+1}")
    e(f"v_permlane32_swap_b32 v{A+2}, v{A+3}")
    e("s_nop 0")
    e(f"v_add_f32 v{A}, v{A}, v{A+1}")
    e(f"v_add_f32 v{A+2}, v{A+2}, v{A+3}")
    e("s_nop 1")
    e(f"v_permlane16_swap_b32 v{A}, v{A+2}")
    e("s_nop 0")
    e(f"v_add_f32 v{A}, v{A}, v{A+2}")
    e(f"v_cvt_pk_bf16_f32 v{A}, v{A}, v{A}")
    e(f"buffer_store_short v{A}, v{V_XR+7}, s[{R_OUT}:{R_OUT+3}], 0 offen")
    e("L_fin:")
    if dbgtime:
        e("s_waitcnt vmcnt(0)")
        dt("end")
        e("s_waitcnt lgkmcnt(0)")
        e("s_not_b32 s94, s80")
        e("s_mov_b64 exec, 1")
        for i, r in enumerate((94, 80, 92, 82, 84, 86, 88, 90)):
            e(f"v_mov_b32 v{T}, s{r}")
            e(f"buffer_atomic_umax v{T}, off, s[{R_DBG}:{R_DBG+3}], 0 offset:{32+4*i} sc1")
            e("s_nop 1")
        e("s_mov_b64 exec, -1")
    if trace:
        e("s_waitcnt vmcnt(0)")
        tr("end")
        e(f"s_getreg_b32 s{S_T0}, hwreg(HW_REG_XCC_ID)")
        e(f"v_writelane_b32 v{V_TR}, s{S_T0}, 63")
        e(f"s_lshl_b32 s{S_T0}, s2, 2")
        e(f"s_add_u32 s{S_T0}, s{S_T0}, s{S_W}")
        e(f"s_lshl_b32 s{S_T0}, s{S_T0}, 8")
        e(f"s_add_u32 s{S_T0}, s{S_T0}, 0x2000000")
        srd(e, R_OUT, S_WS, S_T0, 256)
        e(f"v_lshlrev_b32 v{T+4}, 2, v{V_L}")
        e(f"buffer_store_dword v{V_TR}, v{T+4}, s[{R_OUT}:{R_OUT+3}], 0 offen")
        assert len(TRACE_NAMES) <= 60, len(TRACE_NAMES)
    e("L_end:")
    e("s_endpgm")

    return f"""; Fused q-projection + sliding-window attention + output projection, 256 workgroups = (batch, head).
; @launch grid=(256,1,1) block=(256,1,1) lds={LDS_BYTES}
.amdgcn_target "amdgcn-amd-amdhsa--gfx950"
.text
.globl {KN}
.p2align 12
.p2align 8
.type {KN},@function
{e.text()}
.section .rodata,"a"
.p2align 6
.amdhsa_kernel {KN}
  .amdhsa_next_free_vgpr 496
  .amdhsa_next_free_sgpr 102
  .amdhsa_accum_offset 256
  .amdhsa_group_segment_fixed_size 0
  .amdhsa_kernarg_size 64
  .amdhsa_user_sgpr_count 2
  .amdhsa_user_sgpr_kernarg_segment_ptr 1
  .amdhsa_system_sgpr_workgroup_id_x 1
.end_amdhsa_kernel
"""

if __name__ == "__main__":
    kw = eval("dict(" + (sys.argv[1] if len(sys.argv) > 1 else "") + ")")
    sys.stdout.write(gen(**kw))
```

```python
import struct, sys, copy

KN = "standalone__sliding_block_cached__sampling_kernel"
TRACE_NAMES = []

def f32(x):
    return struct.unpack("<I", struct.pack("<f", x))[0]

class E:
    def __init__(self):
        self.lines = []
        self.vm = []
    def __call__(self, s=""):
        self.lines.append("    " + s if s and not s.endswith(":") else s)
    def c(self, s):
        self.lines.append("    ; " + s)
    def vmop(self, s, tag):
        self(s)
        self.vm.append(tag)
    def wait_vm(self, tag):
        idx = max([i for i, t in enumerate(self.vm) if t == tag], default=-1)
        if idx < 0:
            return
        n = len(self.vm) - 1 - idx
        self(f"s_waitcnt vmcnt({min(n, 63)})")
        self.vm = self.vm[idx + 1:]
    def text(self):
        return "\n".join(self.lines) + "\n"

SLOT = 6144
NSLOT = 6
RING = SLOT * NSLOT
MISC = 4 * RING
PART = MISC
PROW = 784
PWAVE = 4 * PROW
BROW = 400
QBF = MISC + 4 * PWAVE
RMAX = QBF + 4 * BROW
RSUM = RMAX + 256
LDS_BYTES = RSUM + 256

INBOX_B = 40 * 8192
HINT = 8 * INBOX_B

S_W = 3
S_X, S_K, S_V, S_WQ, S_WO, S_OUT, S_DBG, S_WS = 4, 6, 8, 10, 12, 14, 16, 18
R_K, R_V, R_WQ, R_WO, R_X, R_IN, R_OUT, R_DBG = 20, 24, 28, 32, 36, 40, 44, 48
R_RD = 28
R_HT = 36
S_B, S_H, S_RING, S_OFF, S_T0, S_T1 = 52, 53, 54, 55, 56, 57
S_KW = 58
S_QW = 59
S_TP = 60
S_SCALE, S_L2E = 70, 71
S_CT = 72
S_SPIN = 73
S_XL = 74
S_KS = 75
S_MODE = 79
S_CO = 78
S_TR = 100

V_L = 1
V_KV = 2
V_WQ = 8
V_WO = 14
V_KA = 19
V_VA = 21
V_WA = 25
V_PW = 26
V_PR = 27
V_BW = 28
V_BR = 29
V_BO = 30
V_RW = 31
V_RR = 32
V_M = 33
V_T = 34
V_ST = 39
V_RD = 40
V_ACC = 64
V_QB = 112
V_S = 136
V_P = 200
V_XR = 232
V_TK = 252
V_DO = 253
V_TR = 254
V_XO = 255
V_ST2 = 255

def srd(e, r, base, off, nbytes):
    if off is None:
        e(f"s_mov_b32 s{r}, s{base}")
        e(f"s_and_b32 s{r+1}, s{base+1}, 0xffff")
    else:
        e(f"s_add_u32 s{r}, s{base}, s{off}")
        e(f"s_addc_u32 s{r+1}, s{base+1}, 0")
        e(f"s_and_b32 s{r+1}, s{r+1}, 0xffff")
    e(f"s_mov_b32 s{r+2}, {nbytes}")
    e(f"s_mov_b32 s{r+3}, 0x20000")

def nloads(tile):
    return 5 if tile[0] == "O" else 6

def gen(nb=4, nq0=1, nfl=10, nflq=11, backlog=1, wo_first=7, wo_step=2, f_kv="nt", f_wq="", f_wo="", f_x="",
        hmap=1, stagger=1, rota=(0, 2, 4, 6), rotb=(8, 9, 1, 5), krot=(2, 9), kmul=(0, 0, 1), trace=0, hint=0,
        spin_max=20000, align_at=41, nflt=10, qsprinkle=0, fine=0, dbgtime=0, bxor=0, hxor=0, lev=None, split=None, skipq=0, noclear=0, nosync=0):
    del TRACE_NAMES[:]
    T = V_T
    G, SS = T, T + 1

    class Ctx:
        pass
    cx = Ctx()
    cx.e = E()

    def tr_begin():
        if trace:
            cx.e(f"s_memrealtime s[{S_TR}:{S_TR+1}]")
    def tr_end(name):
        if trace:
            if name not in TRACE_NAMES:
                TRACE_NAMES.append(name)
            cx.e(f"v_writelane_b32 v{V_TR + 0}, s{S_TR}, {TRACE_NAMES.index(name)}")
    DT = {"start": 0, "qrdy": 1, "sm": 2, "V15": 3, "sent": 4, "end": 5, "Q0": 6}
    def dt(name):
        if dbgtime:
            cx.e(f"s_memrealtime s[{80+2*DT[name]}:{81+2*DT[name]}]")
    def tr(name):
        if trace:
            tr_begin()
            cx.e("s_waitcnt lgkmcnt(0)")
            tr_end(name)

    e = cx.e
    e(f"{KN}:")
    e("s_cmp_ge_u32 s2, 256")
    e("s_cbranch_scc1 L_end")
    dt("start")
    tr_begin()
    if trace:
        e("s_memtime s[96:97]")
    e("s_load_dwordx16 s[4:19], s[0:1], 0")
    e(f"v_lshrrev_b32 v{T}, 6, v0")
    e(f"v_and_b32 v{V_L}, 63, v0")
    e(f"v_readfirstlane_b32 s{S_W}, v{T}")
    if trace:
        e(f"v_mov_b32 v{V_TR}, 0")
    if hmap:
        e(f"s_and_b32 s{S_H}, s2, 7")
        e(f"s_lshl_b32 s{S_H}, s{S_H}, 2")
        e(f"s_bfe_u32 s{S_T0}, s2, 0x20003")
        e(f"s_add_u32 s{S_H}, s{S_H}, s{S_T0}")
    else:
        e(f"s_and_b32 s{S_H}, s2, 31")
    e(f"s_lshr_b32 s{S_B}, s2, 5")
    if bxor:
        e(f"s_xor_b32 s{S_B}, s{S_B}, {bxor}")
    if hxor:
        e(f"s_xor_b32 s{S_H}, s{S_H}, {hxor}")
    e(f"s_mul_i32 s{S_RING}, s{S_W}, {RING}")
    e(f"s_mul_i32 s{S_QW}, s{S_W}, {160*12288}")
    e.c("key tile order of this wave: tile(t) = (c + a*(4t + wave)) mod 64, a odd, a and c per workgroup")
    e(f"s_lshr_b32 s{S_T0}, s2, 3")
    e(f"s_and_b32 s{S_T1}, s2, 7")
    e(f"s_mul_i32 s{S_KS}, s{S_T0}, {2*kmul[0]}")
    e(f"s_mul_i32 s{S_KW}, s{S_T1}, {2*kmul[1]}")
    e(f"s_add_u32 s{S_KS}, s{S_KS}, s{S_KW}")
    e(f"s_add_u32 s{S_KS}, s{S_KS}, {kmul[2]}")
    e(f"s_mul_i32 s{S_T0}, s{S_T0}, {krot[0]}")
    e(f"s_mul_i32 s{S_T1}, s{S_T1}, {krot[1]}")
    e(f"s_add_u32 s{S_T0}, s{S_T0}, s{S_T1}")
    e(f"s_mul_i32 s{S_T1}, s{S_KS}, s{S_W}")
    e(f"s_add_u32 s{S_KW}, s{S_T0}, s{S_T1}")
    e(f"s_lshl_b32 s{S_KS}, s{S_KS}, 2")
    e.c("first wq tile, rotated per batch so that the sharers of a head start on different rows")
    if stagger:
        rots = [rota[0], rotb[0], rota[1], rotb[1], rota[2], rotb[2], rota[3], rotb[3]]
    else:
        rots = [0, 1, 3, 4, 5, 6, 8, 9]
    packed = sum(r << (4 * i) for i, r in enumerate(rots))
    e(f"s_lshl_b32 s{S_T0}, s{S_B}, 2")
    e(f"s_lshr_b32 s{S_T0}, {packed:#x}, s{S_T0}")
    e(f"s_and_b32 s{S_TP}, s{S_T0}, 15")
    for p in range(1, 10):
        e(f"s_add_u32 s{S_TP+p}, s{S_TP+p-1}, 1")
        e(f"s_cmp_eq_u32 s{S_TP+p}, 10")
        e(f"s_cselect_b32 s{S_TP+p}, 0, s{S_TP+p}")
    e.c("DMA source offsets (16-byte chunks XOR-swizzled inside each 128-byte line)")
    e(f"v_lshrrev_b32 v{T}, 3, v{V_L}")
    e(f"v_and_b32 v{T+1}, 7, v{V_L}")
    for i in range(6):
        e(f"v_add_u32 v{T+2}, {8*i}, v{T}")
        e(f"v_mul_u32_u24 v{T+3}, 43, v{T+2}")
        e(f"v_lshrrev_b32 v{T+3}, 7, v{T+3}")
        e(f"v_and_b32 v{T+4}, 6, v{T+3}")
        e(f"v_xor_b32 v{T+4}, v{T+4}, v{T+1}")
        e(f"v_lshlrev_b32 v{T+4}, 4, v{T+4}")
        e(f"v_lshl_add_u32 v{V_KV+i}, v{T+2}, 7, v{T+4}")
        e(f"v_mul_u32_u24 v{T+3}, {12288-384}, v{T+3}")
        e(f"v_add_u32 v{V_WQ+i}, v{V_KV+i}, v{T+3}")
    e(f"v_lshrrev_b32 v{G}, 4, v{V_L}")
    e(f"v_and_b32 v{SS}, 3, v{V_L}")
    e.c("x staging: 80 chunks of 16 bytes, LDS image [row][320 bytes]")
    e(f"v_mul_u32_u24 v{T+2}, 205, v{V_L}")
    e(f"v_lshrrev_b32 v{T+2}, 12, v{T+2}")
    e(f"v_mul_u32_u24 v{T+2}, {1280-320}, v{T+2}")
    e(f"v_lshl_add_u32 v{T+2}, v{V_L}, 4, v{T+2}")
    e(f"s_mul_i32 s{S_T0}, s{S_W}, 320")
    e(f"v_add_u32 v{V_XO}, s{S_T0}, v{T+2}")
    e(f"v_lshlrev_b32 v{T+2}, 4, v{V_L}")
    e(f"v_add_u32 v{T+2}, {3*1280 + 64}, v{T+2}")
    e(f"v_add_u32 v{V_TK}, s{S_T0}, v{T+2}")
    e(f"s_mul_i32 s{S_XL}, s{S_W}, {PWAVE}")
    e(f"s_add_u32 s{S_XL}, s{S_XL}, {PART}")
    e("s_waitcnt lgkmcnt(0)")
    tr_end("start")
    e(f"s_mul_i32 s{S_T0}, s{S_H}, 384")
    e(f"s_sub_u32 s{S_T1}, {640*12288}, s{S_T0}")
    srd(e, R_WQ, S_WQ, S_T0, f"s{S_T1}")

    def issue_one(tile, slot, i):
        e = cx.e
        kind, t = tile
        if kind in "KV":
            r, vo, fl = (R_K if kind == "K" else R_V), V_KV, f_kv
            if i == 0:
                e(f"s_mul_i32 s{S_OFF}, s{S_KS}, {t}")
                e(f"s_add_u32 s{S_OFF}, s{S_OFF}, s{S_KW}")
                e(f"s_and_b32 s{S_OFF}, s{S_OFF}, 63")
                e(f"s_mul_i32 s{S_OFF}, s{S_OFF}, {SLOT}")
        elif kind == "Q":
            r, vo, fl = R_WQ, V_WQ, f_wq
            if i == 0:
                e(f"s_mul_i32 s{S_OFF}, s{S_TP+t}, {16*12288}")
                e(f"s_add_u32 s{S_OFF}, s{S_OFF}, s{S_QW}")
        else:
            r, vo, fl = R_WO, V_WO, f_wo
            if i == 0:
                e(f"s_mov_b32 s{S_OFF}, {t*16*1280}")
        e(f"s_add_u32 m0, s{S_RING}, {slot*SLOT + i*1024}")
        e("s_nop 0")
        e.vmop(f"buffer_load_dwordx4 v{vo+i}, s[{r}:{r+3}], s{S_OFF} offen {fl} lds", (tile, i))

    def xloads():
        e = cx.e
        e(f"s_mul_i32 s{S_T0}, s{S_B}, 5120")
        srd(e, R_X, S_X, S_T0, 5120)
        e(f"s_mov_b32 m0, s{S_XL}")
        e("s_nop 0")
        e.vmop(f"buffer_load_dwordx4 v{V_XO}, s[{R_X}:{R_X+3}], 0 offen {f_x} lds", ("x", 0))
        e(f"s_add_u32 m0, s{S_XL}, 1024")
        e("s_mov_b64 exec, 0xffff")
        e.vmop(f"buffer_load_dwordx4 v{V_TK}, s[{R_X}:{R_X+3}], 0 offen {f_x} lds", ("x", 1))
        e("s_mov_b64 exec, -1")

    def kv_srds():
        e = cx.e
        e(f"s_lshl_b32 s{S_T0}, s{S_B}, 5")
        e(f"s_add_u32 s{S_T0}, s{S_T0}, s{S_H}")
        e(f"s_mul_i32 s{S_T0}, s{S_T0}, 1572864")
        e(f"s_add_u32 s{S_T0}, s{S_T0}, {3072*384}")
        srd(e, R_K, S_K, S_T0, 393216)
        srd(e, R_V, S_V, S_T0, 393216)

    def xreads():
        e = cx.e
        e(f"v_mul_u32_u24 v{T+2}, 320, v{SS}")
        e(f"v_lshl_add_u32 v{T+2}, v{G}, 3, v{T+2}")
        e(f"v_add_u32 v{T+2}, s{S_XL}, v{T+2}")
        e.wait_vm(("x", 1))
        for p in range(10):
            e(f"v_lshl_add_u32 v{T+3}, s{S_TP+p}, 5, v{T+2}")
            e(f"ds_read_b64 v[{V_XR+2*p}:{V_XR+2*p+1}], v{T+3}")

    def late_setup():
        e = cx.e
        e.c("remaining address registers and descriptors")
        e(f"s_mov_b32 s{S_SCALE}, {f32(192 ** -0.5):#x}")
        e(f"s_mov_b32 s{S_L2E}, {f32(1.4426950408889634):#x}")
        e(f"s_mul_i32 s{S_T0}, s{S_H}, 245760")
        srd(e, R_WO, S_WO, S_T0, 245760)
        e(f"s_mul_i32 s{S_T0}, s{S_W}, 320")
        for i in range(5):
            e(f"v_add_u32 v{T+2}, {64*i}, v{V_L}")
            e(f"v_mul_u32_u24 v{T+3}, 205, v{T+2}")
            e(f"v_lshrrev_b32 v{T+3}, 12, v{T+3}")
            e(f"v_mul_u32_u24 v{T+3}, {1280-320}, v{T+3}")
            e(f"v_lshl_add_u32 v{T+3}, v{T+2}, 4, v{T+3}")
            e(f"v_add_u32 v{V_WO+i}, s{S_T0}, v{T+3}")
        e.c("K operand read addresses")
        e(f"v_and_b32 v{T+2}, 15, v{V_L}")
        e(f"v_and_b32 v{T+3}, 6, v{T+2}")
        e(f"v_xor_b32 v{T+3}, v{T+3}, v{G}")
        e(f"v_lshlrev_b32 v{T+3}, 4, v{T+3}")
        e(f"v_mul_u32_u24 v{T+2}, 384, v{T+2}")
        e(f"v_add3_u32 v{V_KA}, v{T+2}, v{T+3}, s{S_RING}")
        e(f"v_xor_b32 v{V_KA+1}, 64, v{V_KA}")
        e.c("transposing read addresses: row = lane>>2, column group = lane&3")
        e(f"v_lshrrev_b32 v{T+2}, 2, v{V_L}")
        e(f"v_and_b32 v{T+3}, 6, v{T+2}")
        e(f"v_lshlrev_b32 v{T+3}, 4, v{T+3}")
        e(f"v_lshl_add_u32 v{T+3}, v{SS}, 3, v{T+3}")
        e(f"v_mul_u32_u24 v{T+4}, 384, v{T+2}")
        e(f"v_add3_u32 v{V_VA}, v{T+4}, v{T+3}, s{S_RING}")
        for q in range(1, 4):
            e(f"v_xor_b32 v{V_VA+q}, {32*q}, v{V_VA}")
        e(f"v_mul_u32_u24 v{T+4}, 320, v{T+2}")
        e(f"v_lshl_add_u32 v{T+4}, v{SS}, 3, v{T+4}")
        e(f"v_add_u32 v{V_WA}, s{S_RING}, v{T+4}")
        e.c("cross-wave exchange addresses")
        e(f"v_mul_u32_u24 v{T+2}, {PROW}, v{SS}")
        e(f"v_lshl_add_u32 v{T+2}, v{G}, 4, v{T+2}")
        e(f"v_add_u32 v{V_PW}, s{S_XL}, v{T+2}")
        e(f"v_mul_u32_u24 v{T+3}, 1366, v0")
        e(f"v_lshrrev_b32 v{T+3}, 16, v{T+3}")
        e(f"v_lshlrev_b32 v{T+3}, 4, v{T+3}")
        e(f"v_lshl_add_u32 v{T+2}, v0, 4, v{T+3}")
        e(f"v_add_u32 v{V_PR}, {PART}, v{T+2}")
        e(f"v_lshl_add_u32 v{T+2}, v0, 3, v{T+3}")
        e(f"v_add_u32 v{V_BW}, {QBF}, v{T+2}")
        e(f"v_mul_u32_u24 v{T+2}, {BROW}, v{SS}")
        e(f"v_add_u32 v{T+2}, {QBF}, v{T+2}")
        e(f"v_lshl_add_u32 v{V_BR}, v{G}, 4, v{T+2}")
        e(f"v_lshl_add_u32 v{V_BO}, v{G}, 3, v{T+2}")
        e(f"v_lshlrev_b32 v{T+2}, 6, v{SS}")
        e(f"v_add_u32 v{V_RR}, {RMAX}, v{T+2}")
        e(f"s_lshl_b32 s{S_T0}, s{S_W}, 4")
        e(f"v_lshl_add_u32 v{T+2}, v{G}, 2, v{V_RR}")
        e(f"v_add_u32 v{V_RW}, s{S_T0}, v{T+2}")
        e.c("inbox slot of this head: [batch][tile][head][16 lanes x 16 bytes]")
        e(f"s_mul_i32 s{S_T0}, s{S_B}, {INBOX_B}")
        e(f"s_lshl_b32 s{S_T1}, s{S_H}, 8")
        e(f"s_add_u32 s{S_T0}, s{S_T0}, s{S_T1}")
        e(f"s_sub_u32 s{S_T1}, {INBOX_B}, s{S_T1}")
        srd(e, R_IN, S_WS, S_T0, f"s{S_T1}")
        e(f"v_lshl_add_u32 v{T+2}, v{G}, 2, v{SS}")
        e(f"v_lshlrev_b32 v{T+2}, 4, v{T+2}")
        e(f"s_mul_i32 s{S_T0}, s{S_W}, {10*8192}")
        e(f"v_add_u32 v{V_ST}, s{S_T0}, v{T+2}")
        e(f"v_and_b32 v{T+2}, 12, v{V_L}")
        e(f"v_lshl_add_u32 v{V_ST}, v{T+2}, 11, v{V_ST}")
        e(f"v_and_b32 v{T+2}, 8, v{V_L}")
        e(f"v_lshl_add_u32 v{V_ST2}, v{T+2}, 24, v{V_ST}")
        srd(e, R_DBG, S_DBG, None, 256)
        e.c("per-batch counter in d_debug; only lane 0 of wave 3 adds, the other lanes are out of range")
        e(f"s_and_b32 s{S_T0}, s{S_B}, 1")
        e(f"s_lshl_b32 s{S_T0}, s{S_T0}, 7")
        e(f"s_lshl_b32 s{S_T1}, s{S_B}, 1")
        e(f"s_and_b32 s{S_T1}, s{S_T1}, 12")
        e(f"s_add_u32 s{S_CO}, s{S_T0}, s{S_T1}")
        e(f"v_xor_b32 v{T+2}, 192, v0")
        e(f"v_lshlrev_b32 v{V_DO}, 8, v{T+2}")
        e.c("tile this wave reduces at the end: wave 0 -> head, wave 1 -> 32 + head")
        e(f"s_lshl_b32 s{S_CT}, s{S_W}, 5")
        e(f"s_add_u32 s{S_CT}, s{S_CT}, s{S_H}")

    kv = [("K", t) for t in range(16)] + [("V", t) for t in range(16)]
    seq = []
    wo_i = 0
    for n, tl in enumerate(kv):
        seq.append(tl)
        if n + 1 >= wo_first and (n + 1 - wo_first) % wo_step == 0 and wo_i < 12:
            seq.append(("O", wo_i)); wo_i += 1
    assert wo_i == 12 and all(t[0] == "K" for t in seq[:7])

    lab = [0]
    class Stream:
        def __init__(self, order, slots):
            self.flat = [(tl, i) for tl in order for i in range(nloads(tl))]
            self.slot = slots
            self.next = 0
            self.busy = set()
            self.dyn = False
        def can_issue(self):
            if self.next >= len(self.flat):
                return False
            tl, i = self.flat[self.next]
            return i > 0 or self.slot[tl] not in self.busy
        def issue_next(self):
            tl, i = self.flat[self.next]
            if i == 0:
                assert self.slot[tl] not in self.busy
                self.busy.add(self.slot[tl])
            issue_one(tl, self.slot[tl], i)
            self.next += 1
        def gated(self, n):
            vm = cx.e.vm
            if len(vm) >= n:
                cx.e.wait_vm(vm[len(vm) - n])
            if lev and self.dyn:
                lab[0] += 1
                k = lab[0]
                for m, d in enumerate(lev):
                    cx.e(f"s_cmp_le_u32 s{S_MODE}, {m}")
                    cx.e(f"s_cbranch_scc1 L_go_{k}")
                    cx.e(f"s_waitcnt vmcnt({n - 1 - d})")
                cx.e(f"L_go_{k}:")
            self.issue_next()
        def top_up(self, n):
            while len(cx.e.vm) < n and self.can_issue():
                self.issue_next()
        def wait_tile(self, tl, n):
            last = (tl, nloads(tl) - 1)
            while self.flat.index(last) >= self.next:
                self.gated(n)
            while last in cx.e.vm:
                vm = cx.e.vm
                if self.can_issue() and (len(vm) < n or vm.index(last) >= len(vm) - n):
                    if len(vm) < n:
                        self.top_up(n)
                    else:
                        self.gated(n)
                else:
                    cx.e.wait_vm(last)
        def release(self, tl, n):
            self.busy.discard(self.slot[tl])
            if len(cx.e.vm) < n:
                self.top_up(n)
            else:
                for _ in range(backlog):
                    if self.can_issue():
                        self.gated(n)
        def sprinkle(self):
            if self.can_issue():
                self.issue_next()
        def next_tile(self):
            tl, i = self.flat[self.next]
            if i > 0:
                tl = self.flat[self.next + nloads(tl) - i][0]
            return tl

    main_slots = {tl: n % NSLOT for n, tl in enumerate(seq)}

    def tr_reads(slot):
        for dt in range(12):
            cx.e(f"ds_read_b64_tr_b16 v[{V_RD+2*dt}:{V_RD+2*dt+1}], v{V_VA + (dt & 3)} offset:{slot*SLOT + 128*(dt >> 2)}")

    def pv_mfma(breg, first):
        for dt in range(12):
            a = V_ACC + 4 * dt
            cc = "0" if first else f"v[{a}:{a+3}]"
            cx.e(f"v_mfma_f32_16x16x16_bf16 v[{a}:{a+3}], v[{V_RD+2*dt}:{V_RD+2*dt+1}], v[{breg}:{breg+1}], {cc}")

    def reduce_partials(label, st):
        e = cx.e
        e.c("sum the four waves' partial rows, round to bf16")
        e("s_mov_b32 exec_lo, 0x000f000f")
        e("s_mov_b32 exec_hi, 0x000f000f")
        for dt in range(12):
            a = V_ACC + 4 * dt
            e(f"ds_write_b128 v{V_PW}, v[{a}:{a+3}] offset:{64*dt}")
        e("s_mov_b64 exec, -1")
        if st:
            st.sprinkle()
        e("s_waitcnt lgkmcnt(0)")
        e("s_barrier")
        tr(label[2] + ".b1")
        e(f"s_cmp_eq_u32 s{S_W}, 3")
        e(f"s_cbranch_scc1 {label}")
        for w in range(4):
            e(f"ds_read_b128 v[{V_RD+4*w}:{V_RD+4*w+3}], v{V_PR} offset:{PWAVE*w}")
        e("s_waitcnt lgkmcnt(0)")
        for r in range(4):
            e(f"v_add_f32 v{V_RD+r}, v{V_RD+r}, v{V_RD+4+r}")
        for r in range(4):
            e(f"v_add_f32 v{V_RD+8+r}, v{V_RD+8+r}, v{V_RD+12+r}")
        for r in range(4):
            e(f"v_add_f32 v{V_RD+r}, v{V_RD+r}, v{V_RD+8+r}")
        e(f"v_cvt_pk_bf16_f32 v{V_RD+4}, v{V_RD}, v{V_RD+1}")
        e(f"v_cvt_pk_bf16_f32 v{V_RD+5}, v{V_RD+2}, v{V_RD+3}")
        e(f"ds_write_b64 v{V_BW}, v[{V_RD+4}:{V_RD+5}]")
        e("s_waitcnt lgkmcnt(0)")
        e(f"{label}:")
        e("s_barrier")

    def score_post(t):
        e = cx.e
        s = V_S + 4 * t
        a, b = T + 2, T + 3
        for rnd in range(2):
            e(f"v_cvt_pk_bf16_f32 v{a}, v{s}, v{s+1}")
            e(f"v_cvt_pk_bf16_f32 v{b}, v{s+2}, v{s+3}")
            e(f"v_lshlrev_b32 v{s}, 16, v{a}")
            e(f"v_and_b32 v{s+1}, 0xffff0000, v{a}")
            e(f"v_lshlrev_b32 v{s+2}, 16, v{b}")
            e(f"v_and_b32 v{s+3}, 0xffff0000, v{b}")
            if rnd == 0:
                for r in range(4):
                    e(f"v_mul_f32 v{s+r}, s{S_SCALE}, v{s+r}")
        e(f"v_max3_f32 v{V_M}, v{V_M}, v{s}, v{s+1}")
        e(f"v_max3_f32 v{V_M}, v{V_M}, v{s+2}, v{s+3}")

    def cond_block(cmp, body):
        lab[0] += 1
        n = lab[0]
        cx.e(cmp)
        cx.e(f"s_cbranch_scc1 L_skip_{n}")
        body()
        cx.e(f"L_skip_{n}:")

    def softmax(st):
        e = cx.e
        e.c("softmax over the 1024 keys of each query row")
        e("s_nop 7")
        score_post(15)
        st.sprinkle()
        e(f"ds_write_b32 v{V_RW}, v{V_M}")
        e("s_waitcnt lgkmcnt(0)")
        e("s_barrier")
        for i in range(4):
            e(f"ds_read_b128 v[{V_RD+4*i}:{V_RD+4*i+3}], v{V_RR} offset:{16*i}")
        if not nosync:
            e.c("all four waves' inbox slots are emptied: count this workgroup")
            e(f"v_mov_b32 v{V_TK}, 1")
            e.vmop(f"buffer_atomic_add v{V_TK}, v{V_DO}, s[{R_DBG}:{R_DBG+3}], s{S_CO} offen sc1", "cleared")
        e("s_waitcnt lgkmcnt(0)")
        for i in range(8):
            e(f"v_max3_f32 v{V_M}, v{V_M}, v{V_RD+2*i}, v{V_RD+2*i+1}")
        e(f"v_mul_f32 v{V_M}, s{S_L2E}, v{V_M}")
        st.sprinkle()
        l0, l1 = T + 2, T + 3
        for r in range(64):
            e(f"v_fma_f32 v{V_S+r}, v{V_S+r}, s{S_L2E}, -v{V_M}")
        st.sprinkle()
        for r in range(64):
            e(f"v_exp_f32 v{V_S+r}, v{V_S+r}")
            if r == 31:
                st.sprinkle()
        st.sprinkle()
        e(f"v_add_f32 v{l0}, v{V_S}, v{V_S+1}")
        e(f"v_add_f32 v{l1}, v{V_S+2}, v{V_S+3}")
        for r in range(4, 64, 2):
            e(f"v_add_f32 v{l0}, v{l0}, v{V_S+r}")
            e(f"v_add_f32 v{l1}, v{l1}, v{V_S+r+1}")
        e(f"v_add_f32 v{l0}, v{l0}, v{l1}")
        e(f"ds_write_b32 v{V_RW}, v{l0} offset:{RSUM-RMAX}")
        e("s_waitcnt lgkmcnt(0)")
        e("s_barrier")
        for i in range(4):
            e(f"ds_read_b128 v[{V_RD+4*i}:{V_RD+4*i+3}], v{V_RR} offset:{RSUM-RMAX+16*i}")
        st.sprinkle()
        e("s_waitcnt lgkmcnt(0)")
        for i in range(8):
            e(f"v_add_f32 v{V_RD+i}, v{V_RD+i}, v{V_RD+8+i}")
        for i in range(4):
            e(f"v_add_f32 v{V_RD+i}, v{V_RD+i}, v{V_RD+4+i}")
        e(f"v_add_f32 v{V_RD}, v{V_RD}, v{V_RD+1}")
        e(f"v_add_f32 v{V_RD+2}, v{V_RD+2}, v{V_RD+3}")
        e(f"v_add_f32 v{V_RD}, v{V_RD}, v{V_RD+2}")
        e(f"v_rcp_f32 v{l0}, v{V_RD}")
        e("s_nop 0")
        for r in range(64):
            e(f"v_mul_f32 v{V_S+r}, v{l0}, v{V_S+r}")
        st.sprinkle()
        for r in range(32):
            e(f"v_cvt_pk_bf16_f32 v{V_P+r}, v{V_S+2*r}, v{V_S+2*r+1}")
        e("s_nop 1")

    def consume(st, tl):
        e = cx.e
        kind, t = tl
        sl = st.slot[tl]
        tr_begin()
        if kind == "K":
            for j in range(6):
                e(f"ds_read_b128 v[{V_RD+4*j}:{V_RD+4*j+3}], v{V_KA + (j & 1)} offset:{sl*SLOT + 128*(j >> 1)}")
            if t > 0:
                e("s_nop 1")
                score_post(t - 1)
            e("s_waitcnt lgkmcnt(0)")
            tr_end(f"K{t}")
            s = V_S + 4 * t
            for j in range(6):
                cc = "0" if j == 0 else f"v[{s}:{s+3}]"
                e(f"v_mfma_f32_16x16x32_bf16 v[{s}:{s+3}], v[{V_RD+4*j}:{V_RD+4*j+3}], v[{V_QB+4*j}:{V_QB+4*j+3}], {cc}")
            st.release(tl, nfl)
            if t == 15:
                softmax(st)
                tr("sm")
                dt("sm")
        elif kind == "V":
            tr_reads(sl)
            e("s_waitcnt lgkmcnt(0)")
            tr_end(f"V{t}")
            if t == 15:
                dt("V15")
            pv_mfma(V_P + 2 * t, t == 0)
            st.release(tl, nfl)
        elif kind == "Q":
            tr_reads(sl)
            e("s_waitcnt lgkmcnt(0)")
            tr_end(f"Q{t}")
            if t == 0:
                dt("Q0")
            st.busy.discard(sl)
            st.top_up(nflq if t < 8 else nflt)
            pv_mfma(V_XR + 2 * t, t == 0)
        else:
            j, half = t >> 1, t & 1
            for nt in range(10):
                a = (j * 10 + nt) * 4 + 2 * half
                e(f"ds_read_b64_tr_b16 a[{a}:{a+1}], v{V_WA} offset:{sl*SLOT + 32*nt}")
            e("s_waitcnt lgkmcnt(0)")
            tr_end(f"O{t & ~1}")
            st.release(tl, nfl)

    def clear_inbox():
        e = cx.e
        e.c("empty this wave's inbox slots")
        for r in range(4):
            e(f"v_mov_b32 v{V_XR+r}, -1")
        for m in range(3):
            e(f"s_mov_b32 s{S_TP+m}, {4*8192*m}")
            if not noclear:
                e(f"buffer_store_dwordx4 v[{V_XR}:{V_XR+3}], v{V_ST if m < 2 else V_ST2}, s[{R_IN}:{R_IN+3}], s{S_TP+m} offen sc1")
        e.c("descriptors of the final reduction")
        e(f"s_mul_i32 s{S_T0}, s{S_B}, 40")
        e(f"s_add_u32 s{S_T0}, s{S_T0}, s{S_CT}")
        e(f"s_lshl_b32 s{S_T0}, s{S_T0}, 13")
        srd(e, R_RD, S_WS, S_T0, 8192)
        e(f"s_lshl_b32 s{S_T0}, s{S_B}, 8")
        e(f"s_add_u32 s{S_T0}, s{S_T0}, {HINT}")
        srd(e, R_HT, S_WS, S_T0, 4)
        e(f"s_mul_i32 s{S_T0}, s{S_B}, 5120")
        srd(e, R_OUT, S_OUT, S_T0, 5120)
        e(f"v_lshlrev_b32 v{V_XR+5}, 4, v{V_L}")
        e(f"v_add_u32 v{V_XR+6}, 4096, v{V_XR+5}")
        e.c("output byte offset: row s = lane&3, column 16*tile + 4*((lane>>2)&3) + {0,2,1,3}[lane>>4]")
        e(f"v_and_b32 v{V_XR+7}, 3, v{V_L}")
        e(f"v_mul_u32_u24 v{V_XR+7}, 1280, v{V_XR+7}")
        e(f"v_and_b32 v{V_XR+8}, 12, v{V_L}")
        e(f"v_lshl_add_u32 v{V_XR+7}, v{V_XR+8}, 1, v{V_XR+7}")
        e(f"v_bfe_u32 v{V_XR+8}, v{V_L}, 4, 1")
        e(f"v_lshl_add_u32 v{V_XR+7}, v{V_XR+8}, 2, v{V_XR+7}")
        e(f"v_lshrrev_b32 v{V_XR+8}, 5, v{V_L}")
        e(f"v_lshl_add_u32 v{V_XR+7}, v{V_XR+8}, 1, v{V_XR+7}")
        e(f"s_lshl_b32 s{S_T0}, s{S_CT}, 5")
        e(f"v_add_u32 v{V_XR+7}, s{S_T0}, v{V_XR+7}")
        if hint:
            def z():
                e(f"v_mov_b32 v{V_XR+4}, 0")
                e("s_mov_b64 exec, 1")
                e(f"buffer_store_dword v{V_XR+4}, off, s[{R_HT}:{R_HT+3}], 0 sc1")
                e("s_mov_b64 exec, -1")
            cond_block(f"s_cmp_lg_u32 s{S_CT}, 0", z)

    MERGE = 6
    def group(kind):
        NQ = 10 if not skipq else skipq
        if kind == "A":
            order = [("Q", p) for p in range(NQ)] + seq
            slots = dict(main_slots)
            slots.update({("Q", p): (p - 10) % NSLOT for p in range(10)})
            if skipq:
                slots[("Q", 0)] = 5
        else:
            nq = NSLOT - nb
            order = [("Q", p) for p in range(nq0)] + seq[:nb] + [("Q", p) for p in range(nq0, 10)] + seq[nb:]
            slots = dict(main_slots)
            slots.update({("Q", p): nb + (p - (10 - nq)) % nq for p in range(10)})
        st = Stream(order, slots)
        st.next = 6
        st.busy.add(slots[("Q", 0)])
        cx.e.vm = list(first_vm)
        st.top_up(nflq)
        late_setup()
        xreads()
        for p in range(NQ):
            st.wait_tile(("Q", p), nflq)
            consume(st, ("Q", p))
        reduce_partials(f"L_qred_{kind}", st if qsprinkle else None)
        for j in range(6):
            cx.e(f"ds_read_b128 v[{V_QB+4*j}:{V_QB+4*j+3}], v{V_BR} offset:{64*j}")
        cx.e(f"v_mov_b32 v{V_M}, 0xff800000")
        st.sprinkle()
        cx.e("s_waitcnt lgkmcnt(0)")
        tr("qrdy")
        dt("qrdy")
        for pos in range(MERGE):
            tl = seq[pos]
            cx.e.c(f"consume {tl[0]}{tl[1]}")
            st.wait_tile(tl, nfl)
            consume(st, tl)
            if pos == 1:
                clear_inbox()
        return st

    e.c("first wq tile and the x operand, common to both start orders")
    q0a = (0 - 10) % NSLOT if not skipq else 5
    q0b = nb + (0 - (10 - (NSLOT - nb))) % (NSLOT - nb)
    if stagger and q0a != q0b:
        e(f"s_mov_b32 s{S_T0}, {q0a*SLOT}")
        e(f"s_bitcmp1_b32 s{S_B}, 0")
        e(f"s_cmov_b32 s{S_T0}, {q0b*SLOT}")
        e(f"s_add_u32 s{S_SPIN}, s{S_RING}, s{S_T0}")
    else:
        e(f"s_add_u32 s{S_SPIN}, s{S_RING}, {q0a*SLOT}")
    xloads()
    e(f"s_mul_i32 s{S_OFF}, s{S_TP}, {16*12288}")
    e(f"s_add_u32 s{S_OFF}, s{S_OFF}, s{S_QW}")
    for i in range(6):
        e(f"s_add_u32 m0, s{S_SPIN}, {i*1024}")
        e("s_nop 0")
        e.vmop(f"buffer_load_dwordx4 v{V_WQ+i}, s[{R_WQ}:{R_WQ+3}], s{S_OFF} offen {f_wq} lds", (("Q", 0), i))
    kv_srds()
    first_vm = list(e.vm)
    if stagger:
        e(f"s_bitcmp1_b32 s{S_B}, 0")
        e("s_cbranch_scc1 L_grp_b")
        head = cx.e
        cx.e = ea = E()
        sa = group("A")
        cx.e = eb = E()
        sb = group("B")
        X = max(sa.next, sb.next)
        for st, em in ((sa, ea), (sb, eb)):
            cx.e = em
            while st.next < X:
                st.gated(nfl)
        assert sa.busy == sb.busy and sa.flat[X:] == sb.flat[X:]
        n = max(len(ea.vm), len(eb.vm))
        assert sa.flat[X - n:X] == sb.flat[X - n:X]
        e = cx.e = head
        e.lines += ea.lines
        e("s_branch L_merge")
        e("L_grp_b:")
        e.lines += eb.lines
        e("L_merge:")
        e.vm = list(sa.flat[X - n:X])
        st = sa
    else:
        st = group("A")
        e = cx.e

    st.dyn = True
    if split is not None:
        e(f"s_bfe_u32 s{S_MODE}, s2, {0x10000 | split:#x}")
    else:
        e(f"s_mov_b32 s{S_MODE}, 0")
    hooks = {}
    done = {"flag": False}
    plain_issue = st.issue_next
    def issue_and_flag():
        plain_issue()
        if st.next == len(st.flat) and not done["flag"]:
            done["flag"] = True
            e.vmop(f"buffer_load_dword v{V_TK}, off, s[{R_DBG}:{R_DBG+3}], s{S_CO} sc1", "flag")
            if hint:
                e(f"v_mov_b32 v{V_XR+9}, 1")
                e.vmop(f"buffer_atomic_add v{V_XR+9}, v{V_DO}, s[{R_HT}:{R_HT+3}], 0 offen sc1", "hint")
    st.issue_next = issue_and_flag
    for pos in range(MERGE, len(seq)):
        tl = seq[pos]
        if pos == align_at:
            e.c("the rest of the kernel sits in one 4 KiB code page")
            e("s_branch L_tailpage")
            e(".p2align 12")
            e("L_tailpage:")
        e.c(f"consume {tl[0]}{tl[1]}")
        st.wait_tile(tl, nfl)
        if pos in hooks:
            hooks.pop(pos)()
        consume(st, tl)
    assert st.next == len(st.flat) and not hooks, hooks

    e.c("output projection of this head")
    reduce_partials("L_ored", None)
    tr_begin()
    for j in range(6):
        e(f"ds_read2_b64 v[{V_QB+4*j}:{V_QB+4*j+3}], v{V_BO} offset0:{8*j} offset1:{8*j+4}")
    e(f"v_mov_b32 v{V_M}, -2")
    if trace:
        e("s_memtime s[98:99]" if fine else "s_memtime s[94:95]")
    e("s_waitcnt lgkmcnt(0)")
    tr_end("obr")
    def out_mfma(nt, j):
        d = V_S + 4 * nt
        a = (j * 10 + nt) * 4
        cc = "0" if j == 0 else f"v[{d}:{d+3}]"
        e(f"v_mfma_f32_16x16x32_bf16 v[{d}:{d+3}], a[{a}:{a+3}], v[{V_QB+4*j}:{V_QB+4*j+3}], {cc}")
    def D_(nt):
        return V_S + 4 * nt
    ready = {}
    for nt in range(10):
        m, c = nt >> 2, nt & 3
        d = D_(4 * m)
        ops = [f"v_min_u32_dpp v{d+r}, v{D_(nt)+r}, v{V_M} quad_perm:[0,1,2,3] row_mask:0xf bank_mask:{1 << c:#x}" for r in range(4)]
        if c == 3 or nt == 9:
            ops.append(f"buffer_store_dwordx4 v[{d}:{d+3}], v{V_ST if m < 2 else V_ST2}, s[{R_IN}:{R_IN+3}], s{S_TP+m} offen sc1")
        ready[nt] = ops
    pend = []
    since = {}
    def flush_one():
        if pend:
            e(pend.pop(0))
            for k_ in since:
                since[k_] += 1
    for nt in range(10):
        for j in range(6):
            out_mfma(nt, j)
            for k_ in since:
                since[k_] += 1
            if j == 5:
                since[nt] = 0
                if fine:
                    e(f"s_memtime s[{78+2*nt}:{79+2*nt}]")
            if fine and nt == 0 and j == 0:
                e(f"s_memtime s[76:77]")
            for k_ in sorted(ready):
                if since.get(k_, -1) >= 8:
                    pend += ready.pop(k_)
            flush_one()
    while pend or len(ready) > 1:
        for k_ in sorted(ready):
            if k_ < 9 and since[k_] >= 8:
                pend += ready.pop(k_)
        if pend:
            flush_one()
        else:
            e("s_nop 0")
            for k_ in since:
                since[k_] += 1
    if since[9] < 8:
        e(f"s_nop {7 - since[9]}")
    for op in ready.pop(9):
        e(op)
    assert not ready
    if trace:
        e("s_memtime s[92:93]")
    tr("sent")
    dt("sent")
    if trace:
        e("s_sub_u32 s92, s92, s94")
        e(f"v_writelane_b32 v{V_TR}, s92, 62")
        if fine:
            for i in range(11):
                e(f"s_sub_u32 s{76+2*i}, s{76+2*i}, s98")
                e(f"v_writelane_b32 v{V_TR}, s{76+2*i}, {1+i}")
        else:
            e("s_sub_u32 s94, s94, s96")
            e(f"v_writelane_b32 v{V_TR}, s94, 61")
    e(f"s_cmp_ge_u32 s{S_CT}, 40")
    e("s_cbranch_scc1 L_fin")
    e.c("reduce one 16-column tile over the 32 heads")
    e(f"s_mov_b32 s{S_SPIN}, {spin_max}")
    if not nosync:
        e.c("every head of this batch has emptied its inbox slots")
        e("s_waitcnt vmcnt(3)" if not hint else "s_waitcnt vmcnt(4)")
        e("L_spin:")
        e(f"v_readfirstlane_b32 s{S_T0}, v{V_TK}")
        e(f"s_sub_u32 s{S_SPIN}, s{S_SPIN}, 1")
        e("s_cbranch_scc1 L_spin_done")
        e(f"s_cmp_ge_u32 s{S_T0}, 32")
        e("s_cbranch_scc1 L_spin_done")
        e(f"buffer_load_dword v{V_TK}, off, s[{R_DBG}:{R_DBG+3}], s{S_CO} sc1")
        e("s_waitcnt vmcnt(0)")
        e("s_branch L_spin")
        e("L_spin_done:")
    if hint:
        e("L_hint:")
        e(f"buffer_load_dword v{V_TK}, off, s[{R_HT}:{R_HT+3}], 0 sc1")
        e(f"s_sub_u32 s{S_SPIN}, s{S_SPIN}, 1")
        e("s_cbranch_scc1 L_poll")
        e("s_waitcnt vmcnt(0)")
        e(f"v_readfirstlane_b32 s{S_T0}, v{V_TK}")
        e("s_nop 0")
        e(f"s_cmp_lt_u32 s{S_T0}, 32")
        e("s_cbranch_scc1 L_hint")
        tr("hint")
    D = V_S
    A = V_RD
    e("L_poll:")
    for i in range(8):
        e(f"buffer_load_dwordx4 v[{D+4*i}:{D+4*i+3}], v{V_XR + 5 + (i >> 2)}, s[{R_RD}:{R_RD+3}], 0 offen offset:{1024*(i & 3)} sc1")
    e("s_waitcnt vmcnt(6)")
    for r in range(4):
        e(f"v_add_f32 v{A+r}, v{D+r}, v{D+4+r}")
    for i in range(2, 8):
        e(f"s_waitcnt vmcnt({7-i})")
        for r in range(4):
            e(f"v_add_f32 v{A+r}, v{A+r}, v{D+4*i+r}")
    e(f"v_cmp_u_f32 vcc, v{A}, v{A+1}")
    e(f"v_cmp_u_f32 s[{S_T0}:{S_T0+1}], v{A+2}, v{A+3}")
    e("s_nop 0")
    e(f"s_or_b64 vcc, vcc, s[{S_T0}:{S_T0+1}]")
    e("s_cbranch_vccz L_ready")
    e.c("a NaN sum: retry while an empty marker is present")
    e(f"v_max3_u32 v{A+4}, v{D}, v{D+1}, v{D+2}")
    for i in range(3, 31, 2):
        e(f"v_max3_u32 v{A+4}, v{A+4}, v{D+i}, v{D+i+1}")
    e(f"v_max_u32 v{A+4}, v{A+4}, v{D+31}")
    e(f"v_cmp_eq_u32 vcc, -1, v{A+4}")
    e(f"s_sub_u32 s{S_SPIN}, s{S_SPIN}, 1")
    e("s_cbranch_scc1 L_ready")
    e("s_cbranch_vccnz L_poll")
    e("L_ready:")
    e(f"v_permlane32_swap_b32 v{A}, v{A+1}")
    e(f"v_permlane32_swap_b32 v{A+2}, v{A+3}")
    e("s_nop 0")
    e(f"v_add_f32 v{A}, v{A}, v{A+1}")
    e(f"v_add_f32 v{A+2}, v{A+2}, v{A+3}")
    e("s_nop 1")
    e(f"v_permlane16_swap_b32 v{A}, v{A+2}")
    e("s_nop 0")
    e(f"v_add_f32 v{A}, v{A}, v{A+2}")
    e(f"v_cvt_pk_bf16_f32 v{A}, v{A}, v{A}")
    e(f"buffer_store_short v{A}, v{V_XR+7}, s[{R_OUT}:{R_OUT+3}], 0 offen")
    e("L_fin:")
    if isinstance(dbgtime, str):
        e("s_waitcnt vmcnt(0)")
        dt("end")
        e("s_waitcnt lgkmcnt(0)")
        e(f"s_sub_u32 s94, s{80+2*DT[dbgtime]}, s80")
        e("s_lshl_b32 s94, s94, 1")
        e("s_add_u32 s94, s94, s90")
        e("L_stretch:")
        e("s_memrealtime s[96:97]")
        e("s_waitcnt lgkmcnt(0)")
        e("s_sub_u32 s96, s96, s94")
        e("s_cmp_lt_i32 s96, 0")
        e("s_cbranch_scc1 L_stretch")
    elif dbgtime:
        e("s_waitcnt vmcnt(0)")
        dt("end")
        e("s_waitcnt lgkmcnt(0)")
        e("s_not_b32 s94, s80")
        e("s_mov_b64 exec, 1")
        for i, r in enumerate((94, 80, 92, 82, 84, 86, 88, 90)):
            e(f"v_mov_b32 v{T}, s{r}")
            e(f"buffer_atomic_umax v{T}, off, s[{R_DBG}:{R_DBG+3}], 0 offset:{32+4*i} sc1")
            e("s_nop 1")
        e("s_mov_b64 exec, -1")
    if trace:
        e("s_waitcnt vmcnt(0)")
        tr("end")
        e(f"s_getreg_b32 s{S_T0}, hwreg(HW_REG_XCC_ID)")
        e(f"v_writelane_b32 v{V_TR}, s{S_T0}, 63")
        e(f"s_getreg_b32 s{S_T0}, hwreg(HW_REG_HW_ID)")
        e(f"v_writelane_b32 v{V_TR}, s{S_T0}, 60")
        e(f"s_lshl_b32 s{S_T0}, s2, 2")
        e(f"s_add_u32 s{S_T0}, s{S_T0}, s{S_W}")
        e(f"s_lshl_b32 s{S_T0}, s{S_T0}, 8")
        e(f"s_add_u32 s{S_T0}, s{S_T0}, 0x2000000")
        srd(e, R_OUT, S_WS, S_T0, 256)
        e(f"v_lshlrev_b32 v{T+4}, 2, v{V_L}")
        e(f"buffer_store_dword v{V_TR}, v{T+4}, s[{R_OUT}:{R_OUT+3}], 0 offen")
        assert len(TRACE_NAMES) <= 60, len(TRACE_NAMES)
    e("L_end:")
    e("s_endpgm")

    return f"""; Fused q-projection + sliding-window attention + output projection, 256 workgroups = (batch, head).
; @launch grid=(256,1,1) block=(256,1,1) lds={LDS_BYTES}
.amdgcn_target "amdgcn-amd-amdhsa--gfx950"
.text
.globl {KN}
.p2align 12
.p2align 8
.type {KN},@function
{e.text()}
.section .rodata,"a"
.p2align 6
.amdhsa_kernel {KN}
  .amdhsa_next_free_vgpr 496
  .amdhsa_next_free_sgpr 102
  .amdhsa_accum_offset 256
  .amdhsa_group_segment_fixed_size 0
  .amdhsa_kernarg_size 64
  .amdhsa_user_sgpr_count 2
  .amdhsa_user_sgpr_kernarg_segment_ptr 1
  .amdhsa_system_sgpr_workgroup_id_x 1
.end_amdhsa_kernel
"""

if __name__ == "__main__":
    kw = eval("dict(" + (sys.argv[1] if len(sys.argv) > 1 else "") + ")")
    sys.stdout.write(gen(**kw))
```

```python
import struct, sys, copy

KN = "standalone__sliding_block_cached__sampling_kernel"
TRACE_NAMES = []

def f32(x):
    return struct.unpack("<I", struct.pack("<f", x))[0]

class E:
    def __init__(self):
        self.lines = []
        self.vm = []
    def __call__(self, s=""):
        self.lines.append("    " + s if s and not s.endswith(":") else s)
    def c(self, s):
        self.lines.append("    ; " + s)
    def vmop(self, s, tag):
        self(s)
        self.vm.append(tag)
    def wait_vm(self, tag):
        idx = max([i for i, t in enumerate(self.vm) if t == tag], default=-1)
        if idx < 0:
            return
        n = len(self.vm) - 1 - idx
        self(f"s_waitcnt vmcnt({min(n, 63)})")
        self.vm = self.vm[idx + 1:]
    def text(self):
        return "\n".join(self.lines) + "\n"

SLOT = 6144
NSLOT = 6
RING = SLOT * NSLOT
MISC = 4 * RING
PART = MISC
PROW = 784
PWAVE = 4 * PROW
BROW = 400
QBF = MISC + 4 * PWAVE
RMAX = QBF + 4 * BROW
RSUM = RMAX + 256
LDS_BYTES = RSUM + 256

INBOX_B = 40 * 8192
HINT = 8 * INBOX_B

S_W = 3
S_X, S_K, S_V, S_WQ, S_WO, S_OUT, S_DBG, S_WS = 4, 6, 8, 10, 12, 14, 16, 18
R_K, R_V, R_WQ, R_WO, R_X, R_IN, R_OUT, R_DBG = 20, 24, 28, 32, 36, 40, 44, 48
R_RD = 28
R_HT = 36
S_B, S_H, S_RING, S_OFF, S_T0, S_T1 = 52, 53, 54, 55, 56, 57
S_KW = 58
S_QW = 59
S_TP = 60
S_SCALE, S_L2E = 70, 71
S_CT = 72
S_SPIN = 73
S_XL = 74
S_KS = 75
S_MODE = 79
S_CO = 78
S_TG = 64
S_NC = 76
S_TR = 100

V_L = 1
V_KV = 2
V_WQ = 8
V_WO = 14
V_KA = 19
V_VA = 21
V_WA = 25
V_PW = 26
V_PR = 27
V_BW = 28
V_BR = 29
V_BO = 30
V_RW = 31
V_RR = 32
V_M = 33
V_T = 34
V_ST = 39
V_RD = 40
V_ACC = 64
V_QB = 112
V_S = 136
V_P = 200
V_XR = 232
V_TK = 252
V_DO = 253
V_TR = 254
V_XO = 255
V_ST2 = 255

def srd(e, r, base, off, nbytes):
    if off is None:
        e(f"s_mov_b32 s{r}, s{base}")
        e(f"s_and_b32 s{r+1}, s{base+1}, 0xffff")
    else:
        e(f"s_add_u32 s{r}, s{base}, s{off}")
        e(f"s_addc_u32 s{r+1}, s{base+1}, 0")
        e(f"s_and_b32 s{r+1}, s{r+1}, 0xffff")
    e(f"s_mov_b32 s{r+2}, {nbytes}")
    e(f"s_mov_b32 s{r+3}, 0x20000")

def nloads(tile):
    return 5 if tile[0] == "O" else 6

def gen(nb=4, nq0=2, nfl=10, nflq=11, backlog=1, wo_first=7, wo_step=2, f_kv="nt", f_wq="", f_wo="", f_x="",
        hmap=1, stagger=1, rota=(0, 3, 5, 8), rotb=(2, 4, 7, 9), krot=(2, 8), kmul=(0, 0, 1), trace=0, hint=0,
        spin_max=20000, align_at=41, nflt=10, qsprinkle=3, fine=0, dbgtime=0, bxor=0, hxor=0, lev=None, split=None, skipq=0, noclear=0, nosync=0, clear_pos=9, touch=0, qs2=3, f_clr='sc1', nonce_pos=30):
    del TRACE_NAMES[:]
    T = V_T
    G, SS = T, T + 1

    class Ctx:
        pass
    cx = Ctx()
    cx.e = E()

    def tr_begin():
        if trace:
            cx.e(f"s_memrealtime s[{S_TR}:{S_TR+1}]")
    def tr_end(name):
        if trace:
            if name not in TRACE_NAMES:
                TRACE_NAMES.append(name)
            cx.e(f"v_writelane_b32 v{V_TR + 0}, s{S_TR}, {TRACE_NAMES.index(name)}")
    DT = {"start": 0, "qrdy": 1, "sm": 2, "V15": 3, "sent": 4, "end": 5, "Q0": 6}
    def dt(name):
        if dbgtime:
            cx.e(f"s_memrealtime s[{80+2*DT[name]}:{81+2*DT[name]}]")
    def tr(name):
        if trace:
            tr_begin()
            cx.e("s_waitcnt lgkmcnt(0)")
            tr_end(name)

    e = cx.e
    e(f"{KN}:")
    e("s_cmp_ge_u32 s2, 256")
    e("s_cbranch_scc1 L_end")
    dt("start")
    tr_begin()
    if trace:
        e("s_memtime s[96:97]")
    e(f"s_memrealtime s[{S_NC}:{S_NC+1}]")
    e("s_load_dwordx16 s[4:19], s[0:1], 0")
    e(f"v_lshrrev_b32 v{T}, 6, v0")
    e(f"v_and_b32 v{V_L}, 63, v0")
    e(f"v_readfirstlane_b32 s{S_W}, v{T}")
    if trace:
        e(f"v_mov_b32 v{V_TR}, 0")
    if hmap:
        e(f"s_and_b32 s{S_H}, s2, 7")
        e(f"s_lshl_b32 s{S_H}, s{S_H}, 2")
        e(f"s_bfe_u32 s{S_T0}, s2, 0x20003")
        e(f"s_add_u32 s{S_H}, s{S_H}, s{S_T0}")
    else:
        e(f"s_and_b32 s{S_H}, s2, 31")
    e(f"s_lshr_b32 s{S_B}, s2, 5")
    if bxor:
        e(f"s_xor_b32 s{S_B}, s{S_B}, {bxor}")
    if hxor:
        e(f"s_xor_b32 s{S_H}, s{S_H}, {hxor}")
    e(f"s_mul_i32 s{S_RING}, s{S_W}, {RING}")
    e(f"s_mul_i32 s{S_QW}, s{S_W}, {160*12288}")
    e.c("key tile order of this wave: tile(t) = (c + a*(4t + wave)) mod 64, a odd, a and c per workgroup")
    e(f"s_lshr_b32 s{S_T0}, s2, 3")
    e(f"s_and_b32 s{S_T1}, s2, 7")
    e(f"s_mul_i32 s{S_KS}, s{S_T0}, {2*kmul[0]}")
    e(f"s_mul_i32 s{S_KW}, s{S_T1}, {2*kmul[1]}")
    e(f"s_add_u32 s{S_KS}, s{S_KS}, s{S_KW}")
    e(f"s_add_u32 s{S_KS}, s{S_KS}, {kmul[2]}")
    e(f"s_mul_i32 s{S_T0}, s{S_T0}, {krot[0]}")
    e(f"s_mul_i32 s{S_T1}, s{S_T1}, {krot[1]}")
    e(f"s_add_u32 s{S_T0}, s{S_T0}, s{S_T1}")
    e(f"s_mul_i32 s{S_T1}, s{S_KS}, s{S_W}")
    e(f"s_add_u32 s{S_KW}, s{S_T0}, s{S_T1}")
    e(f"s_lshl_b32 s{S_KS}, s{S_KS}, 2")
    e.c("first wq tile, rotated per batch so that the sharers of a head start on different rows")
    if stagger:
        rots = [rota[0], rotb[0], rota[1], rotb[1], rota[2], rotb[2], rota[3], rotb[3]]
    else:
        rots = [0, 1, 3, 4, 5, 6, 8, 9]
    packed = sum(r << (4 * i) for i, r in enumerate(rots))
    e(f"s_lshl_b32 s{S_T0}, s{S_B}, 2")
    e(f"s_lshr_b32 s{S_T0}, {packed:#x}, s{S_T0}")
    e(f"s_and_b32 s{S_TP}, s{S_T0}, 15")
    for p in range(1, 10):
        e(f"s_add_u32 s{S_TP+p}, s{S_TP+p-1}, 1")
        e(f"s_cmp_eq_u32 s{S_TP+p}, 10")
        e(f"s_cselect_b32 s{S_TP+p}, 0, s{S_TP+p}")
    e.c("DMA source offsets (16-byte chunks XOR-swizzled inside each 128-byte line)")
    e(f"v_lshrrev_b32 v{T}, 3, v{V_L}")
    e(f"v_and_b32 v{T+1}, 7, v{V_L}")
    for i in range(6):
        e(f"v_add_u32 v{T+2}, {8*i}, v{T}")
        e(f"v_mul_u32_u24 v{T+3}, 43, v{T+2}")
        e(f"v_lshrrev_b32 v{T+3}, 7, v{T+3}")
        e(f"v_and_b32 v{T+4}, 6, v{T+3}")
        e(f"v_xor_b32 v{T+4}, v{T+4}, v{T+1}")
        e(f"v_lshlrev_b32 v{T+4}, 4, v{T+4}")
        e(f"v_lshl_add_u32 v{V_KV+i}, v{T+2}, 7, v{T+4}")
        e(f"v_mul_u32_u24 v{T+3}, {12288-384}, v{T+3}")
        e(f"v_add_u32 v{V_WQ+i}, v{V_KV+i}, v{T+3}")
    e(f"v_lshrrev_b32 v{G}, 4, v{V_L}")
    e(f"v_and_b32 v{SS}, 3, v{V_L}")
    e.c("x staging: 80 chunks of 16 bytes, LDS image [row][320 bytes]")
    e(f"v_mul_u32_u24 v{T+2}, 205, v{V_L}")
    e(f"v_lshrrev_b32 v{T+2}, 12, v{T+2}")
    e(f"v_mul_u32_u24 v{T+2}, {1280-320}, v{T+2}")
    e(f"v_lshl_add_u32 v{T+2}, v{V_L}, 4, v{T+2}")
    e(f"s_mul_i32 s{S_T0}, s{S_W}, 320")
    e(f"v_add_u32 v{V_XO}, s{S_T0}, v{T+2}")
    e(f"v_lshlrev_b32 v{T+2}, 4, v{V_L}")
    e(f"v_add_u32 v{T+2}, {3*1280 + 64}, v{T+2}")
    e(f"v_add_u32 v{V_TK}, s{S_T0}, v{T+2}")
    e(f"s_mul_i32 s{S_XL}, s{S_W}, {PWAVE}")
    e(f"s_add_u32 s{S_XL}, s{S_XL}, {PART}")
    e("s_waitcnt lgkmcnt(0)")
    tr_end("start")
    e(f"s_mul_i32 s{S_T0}, s{S_H}, 384")
    e(f"s_sub_u32 s{S_T1}, {640*12288}, s{S_T0}")
    srd(e, R_WQ, S_WQ, S_T0, f"s{S_T1}")

    def issue_one(tile, slot, i):
        e = cx.e
        kind, t = tile
        if kind in "KV":
            r, vo, fl = (R_K if kind == "K" else R_V), V_KV, f_kv
            if i == 0:
                e(f"s_mul_i32 s{S_OFF}, s{S_KS}, {t}")
                e(f"s_add_u32 s{S_OFF}, s{S_OFF}, s{S_KW}")
                e(f"s_and_b32 s{S_OFF}, s{S_OFF}, 63")
                e(f"s_mul_i32 s{S_OFF}, s{S_OFF}, {SLOT}")
        elif kind == "Q":
            r, vo, fl = R_WQ, V_WQ, f_wq
            if i == 0:
                e(f"s_mul_i32 s{S_OFF}, s{S_TP+t}, {16*12288}")
                e(f"s_add_u32 s{S_OFF}, s{S_OFF}, s{S_QW}")
        else:
            r, vo, fl = R_WO, V_WO, f_wo
            if i == 0:
                e(f"s_mov_b32 s{S_OFF}, {t*16*1280}")
        e(f"s_add_u32 m0, s{S_RING}, {slot*SLOT + i*1024}")
        e("s_nop 0")
        e.vmop(f"buffer_load_dwordx4 v{vo+i}, s[{r}:{r+3}], s{S_OFF} offen {fl} lds", (tile, i))

    def xloads():
        e = cx.e
        e(f"s_mul_i32 s{S_T0}, s{S_B}, 5120")
        srd(e, R_X, S_X, S_T0, 5120)
        e(f"s_mov_b32 m0, s{S_XL}")
        e("s_nop 0")
        e.vmop(f"buffer_load_dwordx4 v{V_XO}, s[{R_X}:{R_X+3}], 0 offen {f_x} lds", ("x", 0))
        e(f"s_add_u32 m0, s{S_XL}, 1024")
        e("s_mov_b64 exec, 0xffff")
        e.vmop(f"buffer_load_dwordx4 v{V_TK}, s[{R_X}:{R_X+3}], 0 offen {f_x} lds", ("x", 1))
        e("s_mov_b64 exec, -1")

    def kv_srds():
        e = cx.e
        e(f"s_lshl_b32 s{S_T0}, s{S_B}, 5")
        e(f"s_add_u32 s{S_T0}, s{S_T0}, s{S_H}")
        e(f"s_mul_i32 s{S_T0}, s{S_T0}, 1572864")
        e(f"s_add_u32 s{S_T0}, s{S_T0}, {3072*384}")
        srd(e, R_K, S_K, S_T0, 393216)
        srd(e, R_V, S_V, S_T0, 393216)

    def xreads():
        e = cx.e
        e(f"v_mul_u32_u24 v{T+2}, 320, v{SS}")
        e(f"v_lshl_add_u32 v{T+2}, v{G}, 3, v{T+2}")
        e(f"v_add_u32 v{T+2}, s{S_XL}, v{T+2}")
        e.wait_vm(("x", 1))
        for p in range(10):
            e(f"v_lshl_add_u32 v{T+3}, s{S_TP+p}, 5, v{T+2}")
            e(f"ds_read_b64 v[{V_XR+2*p}:{V_XR+2*p+1}], v{T+3}")

    def late_setup():
        e = cx.e
        e.c("remaining address registers and descriptors")
        e(f"s_mov_b32 s{S_SCALE}, {f32(192 ** -0.5):#x}")
        e(f"s_mov_b32 s{S_L2E}, {f32(1.4426950408889634):#x}")
        e(f"s_mul_i32 s{S_T0}, s{S_H}, 245760")
        srd(e, R_WO, S_WO, S_T0, 245760)
        e(f"s_mul_i32 s{S_T0}, s{S_W}, 320")
        for i in range(5):
            e(f"v_add_u32 v{T+2}, {64*i}, v{V_L}")
            e(f"v_mul_u32_u24 v{T+3}, 205, v{T+2}")
            e(f"v_lshrrev_b32 v{T+3}, 12, v{T+3}")
            e(f"v_mul_u32_u24 v{T+3}, {1280-320}, v{T+3}")
            e(f"v_lshl_add_u32 v{T+3}, v{T+2}, 4, v{T+3}")
            e(f"v_add_u32 v{V_WO+i}, s{S_T0}, v{T+3}")
        e.c("K operand read addresses")
        e(f"v_and_b32 v{T+2}, 15, v{V_L}")
        e(f"v_and_b32 v{T+3}, 6, v{T+2}")
        e(f"v_xor_b32 v{T+3}, v{T+3}, v{G}")
        e(f"v_lshlrev_b32 v{T+3}, 4, v{T+3}")
        e(f"v_mul_u32_u24 v{T+2}, 384, v{T+2}")
        e(f"v_add3_u32 v{V_KA}, v{T+2}, v{T+3}, s{S_RING}")
        e(f"v_xor_b32 v{V_KA+1}, 64, v{V_KA}")
        e.c("transposing read addresses: row = lane>>2, column group = lane&3")
        e(f"v_lshrrev_b32 v{T+2}, 2, v{V_L}")
        e(f"v_and_b32 v{T+3}, 6, v{T+2}")
        e(f"v_lshlrev_b32 v{T+3}, 4, v{T+3}")
        e(f"v_lshl_add_u32 v{T+3}, v{SS}, 3, v{T+3}")
        e(f"v_mul_u32_u24 v{T+4}, 384, v{T+2}")
        e(f"v_add3_u32 v{V_VA}, v{T+4}, v{T+3}, s{S_RING}")
        for q in range(1, 4):
            e(f"v_xor_b32 v{V_VA+q}, {32*q}, v{V_VA}")
        e(f"v_mul_u32_u24 v{T+4}, 320, v{T+2}")
        e(f"v_lshl_add_u32 v{T+4}, v{SS}, 3, v{T+4}")
        e(f"v_add_u32 v{V_WA}, s{S_RING}, v{T+4}")
        e.c("cross-wave exchange addresses")
        e(f"v_mul_u32_u24 v{T+2}, {PROW}, v{SS}")
        e(f"v_lshl_add_u32 v{T+2}, v{G}, 4, v{T+2}")
        e(f"v_add_u32 v{V_PW}, s{S_XL}, v{T+2}")
        e(f"v_mul_u32_u24 v{T+3}, 1366, v0")
        e(f"v_lshrrev_b32 v{T+3}, 16, v{T+3}")
        e(f"v_lshlrev_b32 v{T+3}, 4, v{T+3}")
        e(f"v_lshl_add_u32 v{T+2}, v0, 4, v{T+3}")
        e(f"v_add_u32 v{V_PR}, {PART}, v{T+2}")
        e(f"v_lshl_add_u32 v{T+2}, v0, 3, v{T+3}")
        e(f"v_add_u32 v{V_BW}, {QBF}, v{T+2}")
        e(f"v_mul_u32_u24 v{T+2}, {BROW}, v{SS}")
        e(f"v_add_u32 v{T+2}, {QBF}, v{T+2}")
        e(f"v_lshl_add_u32 v{V_BR}, v{G}, 4, v{T+2}")
        e(f"v_lshl_add_u32 v{V_BO}, v{G}, 3, v{T+2}")
        e(f"v_lshlrev_b32 v{T+2}, 6, v{SS}")
        e(f"v_add_u32 v{V_RR}, {RMAX}, v{T+2}")
        e(f"s_lshl_b32 s{S_T0}, s{S_W}, 4")
        e(f"v_lshl_add_u32 v{T+2}, v{G}, 2, v{V_RR}")
        e(f"v_add_u32 v{V_RW}, s{S_T0}, v{T+2}")
        e.c("inbox slot of this head: [batch][tile][head][16 lanes x 16 bytes]")
        e(f"s_mul_i32 s{S_T0}, s{S_B}, {INBOX_B}")
        e(f"s_lshl_b32 s{S_T1}, s{S_H}, 8")
        e(f"s_add_u32 s{S_T0}, s{S_T0}, s{S_T1}")
        e(f"s_sub_u32 s{S_T1}, {INBOX_B}, s{S_T1}")
        srd(e, R_IN, S_WS, S_T0, f"s{S_T1}")
        e(f"v_lshl_add_u32 v{T+2}, v{G}, 2, v{SS}")
        e(f"v_lshlrev_b32 v{T+2}, 4, v{T+2}")
        e(f"s_mul_i32 s{S_T0}, s{S_W}, {10*8192}")
        e(f"v_add_u32 v{V_ST}, s{S_T0}, v{T+2}")
        e(f"v_and_b32 v{T+2}, 12, v{V_L}")
        e(f"v_lshl_add_u32 v{V_ST}, v{T+2}, 11, v{V_ST}")
        e(f"v_and_b32 v{T+2}, 8, v{V_L}")
        e(f"v_lshl_add_u32 v{V_ST2}, v{T+2}, 24, v{V_ST}")
        srd(e, R_DBG, S_DBG, None, 256)
        e.c("per-batch tag word in d_debug; only lane 0 of wave 3 of head 0 stores, the other lanes are out of range")
        e(f"s_and_b32 s{S_T0}, s{S_B}, 1")
        e(f"s_lshl_b32 s{S_T0}, s{S_T0}, 7")
        e(f"s_lshl_b32 s{S_T1}, s{S_B}, 1")
        e(f"s_and_b32 s{S_T1}, s{S_T1}, 12")
        e(f"s_add_u32 s{S_CO}, s{S_T0}, s{S_T1}")
        e(f"v_xor_b32 v{T+2}, 192, v0")
        e(f"v_or_b32 v{T+2}, s{S_H}, v{T+2}")
        e(f"v_lshlrev_b32 v{V_DO}, 8, v{T+2}")
        e.c("tile this wave reduces at the end: wave 0 -> head, wave 1 -> 32 + head")
        e(f"s_lshl_b32 s{S_CT}, s{S_W}, 5")
        e(f"s_add_u32 s{S_CT}, s{S_CT}, s{S_H}")

    kv = [("K", t) for t in range(16)] + [("V", t) for t in range(16)]
    seq = []
    wo_i = 0
    for n, tl in enumerate(kv):
        seq.append(tl)
        if n + 1 >= wo_first and (n + 1 - wo_first) % wo_step == 0 and wo_i < 12:
            seq.append(("O", wo_i)); wo_i += 1
    assert wo_i == 12 and all(t[0] == "K" for t in seq[:7])

    lab = [0]
    class Stream:
        def __init__(self, order, slots):
            self.flat = [(tl, i) for tl in order for i in range(nloads(tl))]
            self.slot = slots
            self.next = 0
            self.busy = set()
            self.dyn = False
        def can_issue(self):
            if self.next >= len(self.flat):
                return False
            tl, i = self.flat[self.next]
            return i > 0 or self.slot[tl] not in self.busy
        def issue_next(self):
            tl, i = self.flat[self.next]
            if i == 0:
                assert self.slot[tl] not in self.busy
                self.busy.add(self.slot[tl])
            issue_one(tl, self.slot[tl], i)
            self.next += 1
        def loads(self):
            return [t for t in cx.e.vm if not isinstance(t, str)]
        def gated(self, n):
            vm = self.loads()
            if len(vm) >= n:
                cx.e.wait_vm(vm[len(vm) - n])
            if lev and self.dyn:
                lab[0] += 1
                k = lab[0]
                for m, d in enumerate(lev):
                    cx.e(f"s_cmp_le_u32 s{S_MODE}, {m}")
                    cx.e(f"s_cbranch_scc1 L_go_{k}")
                    cx.e(f"s_waitcnt vmcnt({n - 1 - d})")
                cx.e(f"L_go_{k}:")
            self.issue_next()
        def top_up(self, n):
            while len(self.loads()) < n and self.can_issue():
                self.issue_next()
        def wait_tile(self, tl, n):
            last = (tl, nloads(tl) - 1)
            while self.flat.index(last) >= self.next:
                self.gated(n)
            while last in cx.e.vm:
                vm = self.loads()
                if self.can_issue() and (len(vm) < n or vm.index(last) >= len(vm) - n):
                    if len(vm) < n:
                        self.top_up(n)
                    else:
                        self.gated(n)
                else:
                    cx.e.wait_vm(last)
        def release(self, tl, n):
            self.busy.discard(self.slot[tl])
            if len(self.loads()) < n:
                self.top_up(n)
            else:
                for _ in range(backlog):
                    if self.can_issue():
                        self.gated(n)
        def sprinkle(self):
            if self.can_issue():
                self.issue_next()
        def next_tile(self):
            tl, i = self.flat[self.next]
            if i > 0:
                tl = self.flat[self.next + nloads(tl) - i][0]
            return tl

    main_slots = {tl: n % NSLOT for n, tl in enumerate(seq)}

    def tr_reads(slot):
        for dt in range(12):
            cx.e(f"ds_read_b64_tr_b16 v[{V_RD+2*dt}:{V_RD+2*dt+1}], v{V_VA + (dt & 3)} offset:{slot*SLOT + 128*(dt >> 2)}")

    def pv_mfma(breg, first):
        for dt in range(12):
            a = V_ACC + 4 * dt
            cc = "0" if first else f"v[{a}:{a+3}]"
            cx.e(f"v_mfma_f32_16x16x16_bf16 v[{a}:{a+3}], v[{V_RD+2*dt}:{V_RD+2*dt+1}], v[{breg}:{breg+1}], {cc}")

    def reduce_partials(label, st):
        e = cx.e
        e.c("sum the four waves' partial rows, round to bf16")
        e("s_mov_b32 exec_lo, 0x000f000f")
        e("s_mov_b32 exec_hi, 0x000f000f")
        for dt in range(12):
            a = V_ACC + 4 * dt
            e(f"ds_write_b128 v{V_PW}, v[{a}:{a+3}] offset:{64*dt}")
        e("s_mov_b64 exec, -1")
        if st:
            for _ in range(qsprinkle):
                st.sprinkle()
        e("s_waitcnt lgkmcnt(0)")
        e("s_barrier")
        tr(label[2] + ".b1")
        e(f"s_cmp_eq_u32 s{S_W}, 3")
        e(f"s_cbranch_scc1 {label}")
        for w in range(4):
            e(f"ds_read_b128 v[{V_RD+4*w}:{V_RD+4*w+3}], v{V_PR} offset:{PWAVE*w}")
        e("s_waitcnt lgkmcnt(0)")
        for r in range(4):
            e(f"v_add_f32 v{V_RD+r}, v{V_RD+r}, v{V_RD+4+r}")
        for r in range(4):
            e(f"v_add_f32 v{V_RD+8+r}, v{V_RD+8+r}, v{V_RD+12+r}")
        for r in range(4):
            e(f"v_add_f32 v{V_RD+r}, v{V_RD+r}, v{V_RD+8+r}")
        e(f"v_cvt_pk_bf16_f32 v{V_RD+4}, v{V_RD}, v{V_RD+1}")
        e(f"v_cvt_pk_bf16_f32 v{V_RD+5}, v{V_RD+2}, v{V_RD+3}")
        e(f"ds_write_b64 v{V_BW}, v[{V_RD+4}:{V_RD+5}]")
        e("s_waitcnt lgkmcnt(0)")
        e(f"{label}:")
        if st and qs2:
            for _ in range(qs2):
                st.sprinkle()
        e("s_barrier")

    def score_post(t):
        e = cx.e
        s = V_S + 4 * t
        a, b = T + 2, T + 3
        for rnd in range(2):
            e(f"v_cvt_pk_bf16_f32 v{a}, v{s}, v{s+1}")
            e(f"v_cvt_pk_bf16_f32 v{b}, v{s+2}, v{s+3}")
            e(f"v_lshlrev_b32 v{s}, 16, v{a}")
            e(f"v_and_b32 v{s+1}, 0xffff0000, v{a}")
            e(f"v_lshlrev_b32 v{s+2}, 16, v{b}")
            e(f"v_and_b32 v{s+3}, 0xffff0000, v{b}")
            if rnd == 0:
                for r in range(4):
                    e(f"v_mul_f32 v{s+r}, s{S_SCALE}, v{s+r}")
        e(f"v_max3_f32 v{V_M}, v{V_M}, v{s}, v{s+1}")
        e(f"v_max3_f32 v{V_M}, v{V_M}, v{s+2}, v{s+3}")

    def cond_block(cmp, body):
        lab[0] += 1
        n = lab[0]
        cx.e(cmp)
        cx.e(f"s_cbranch_scc1 L_skip_{n}")
        body()
        cx.e(f"L_skip_{n}:")

    def softmax(st):
        e = cx.e
        e.c("softmax over the 1024 keys of each query row")
        if clear_pos == "sm":
            clear_stores()
        e("s_nop 7")
        score_post(15)
        st.sprinkle()
        e(f"ds_write_b32 v{V_RW}, v{V_M}")
        e("s_waitcnt lgkmcnt(0)")
        e("s_barrier")
        for i in range(4):
            e(f"ds_read_b128 v[{V_RD+4*i}:{V_RD+4*i+3}], v{V_RR} offset:{16*i}")
        def counted():
            e.c("all four waves' inbox slots are emptied: count this workgroup")
            e(f"v_mov_b32 v{V_TK}, 1")
            e.vmop(f"buffer_atomic_add v{V_TK}, v{V_DO}, s[{R_DBG}:{R_DBG+3}], s{S_CO} offen sc1", "cleared")
        e("s_waitcnt lgkmcnt(0)")
        for i in range(8):
            e(f"v_max3_f32 v{V_M}, v{V_M}, v{V_RD+2*i}, v{V_RD+2*i+1}")
        e(f"v_mul_f32 v{V_M}, s{S_L2E}, v{V_M}")
        st.sprinkle()
        l0, l1 = T + 2, T + 3
        for r in range(64):
            e(f"v_fma_f32 v{V_S+r}, v{V_S+r}, s{S_L2E}, -v{V_M}")
        st.sprinkle()
        for r in range(64):
            e(f"v_exp_f32 v{V_S+r}, v{V_S+r}")
            if r == 31:
                st.sprinkle()
        st.sprinkle()
        e(f"v_add_f32 v{l0}, v{V_S}, v{V_S+1}")
        e(f"v_add_f32 v{l1}, v{V_S+2}, v{V_S+3}")
        for r in range(4, 64, 2):
            e(f"v_add_f32 v{l0}, v{l0}, v{V_S+r}")
            e(f"v_add_f32 v{l1}, v{l1}, v{V_S+r+1}")
        e(f"v_add_f32 v{l0}, v{l0}, v{l1}")
        e(f"ds_write_b32 v{V_RW}, v{l0} offset:{RSUM-RMAX}")
        e.wait_vm("clr")
        e("s_waitcnt lgkmcnt(0)")
        e("s_barrier")

        for i in range(4):
            e(f"ds_read_b128 v[{V_RD+4*i}:{V_RD+4*i+3}], v{V_RR} offset:{RSUM-RMAX+16*i}")
        st.sprinkle()
        e("s_waitcnt lgkmcnt(0)")
        for i in range(8):
            e(f"v_add_f32 v{V_RD+i}, v{V_RD+i}, v{V_RD+8+i}")
        for i in range(4):
            e(f"v_add_f32 v{V_RD+i}, v{V_RD+i}, v{V_RD+4+i}")
        e(f"v_add_f32 v{V_RD}, v{V_RD}, v{V_RD+1}")
        e(f"v_add_f32 v{V_RD+2}, v{V_RD+2}, v{V_RD+3}")
        e(f"v_add_f32 v{V_RD}, v{V_RD}, v{V_RD+2}")
        e(f"v_rcp_f32 v{l0}, v{V_RD}")
        e("s_nop 0")
        for r in range(64):
            e(f"v_mul_f32 v{V_S+r}, v{l0}, v{V_S+r}")
        st.sprinkle()
        for r in range(32):
            e(f"v_cvt_pk_bf16_f32 v{V_P+r}, v{V_S+2*r}, v{V_S+2*r+1}")
        e("s_nop 1")

    def consume(st, tl):
        e = cx.e
        kind, t = tl
        sl = st.slot[tl]
        tr_begin()
        if kind == "K":
            for j in range(6):
                e(f"ds_read_b128 v[{V_RD+4*j}:{V_RD+4*j+3}], v{V_KA + (j & 1)} offset:{sl*SLOT + 128*(j >> 1)}")
            if t > 0:
                e("s_nop 1")
                score_post(t - 1)
            e("s_waitcnt lgkmcnt(0)")
            tr_end(f"K{t}")
            s = V_S + 4 * t
            for j in range(6):
                cc = "0" if j == 0 else f"v[{s}:{s+3}]"
                e(f"v_mfma_f32_16x16x32_bf16 v[{s}:{s+3}], v[{V_RD+4*j}:{V_RD+4*j+3}], v[{V_QB+4*j}:{V_QB+4*j+3}], {cc}")
            st.release(tl, nfl)
            if t == 15:
                softmax(st)
                tr("sm")
                dt("sm")
        elif kind == "V":
            tr_reads(sl)
            e("s_waitcnt lgkmcnt(0)")
            tr_end(f"V{t}")
            if t == 15:
                dt("V15")
            pv_mfma(V_P + 2 * t, t == 0)
            st.release(tl, nfl)
        elif kind == "Q":
            tr_reads(sl)
            e("s_waitcnt lgkmcnt(0)")
            tr_end(f"Q{t}")
            if t == 0:
                dt("Q0")
            st.busy.discard(sl)
            st.top_up(nflq if t < 8 else nflt)
            pv_mfma(V_XR + 2 * t, t == 0)
            if t == 9 and clear_pos == "q":
                clear_setup()
                clear_stores()
        else:
            j, half = t >> 1, t & 1
            for nt in range(10):
                a = (j * 10 + nt) * 4 + 2 * half
                e(f"ds_read_b64_tr_b16 a[{a}:{a+1}], v{V_WA} offset:{sl*SLOT + 32*nt}")
            e("s_waitcnt lgkmcnt(0)")
            tr_end(f"O{t & ~1}")
            st.release(tl, nfl)

    def clear_stores(track=True):
        e = cx.e
        e.c("empty this wave's inbox slots")
        for m in range(3):
            if not noclear:
                op = f"buffer_store_dwordx4 v[{V_XR}:{V_XR+3}], v{V_ST if m < 2 else V_ST2}, s[{R_IN}:{R_IN+3}], s{S_TP+m} offen {f_clr}"
                if track:
                    e.vmop(op, "clr")
                else:
                    e(op)
    def clear_setup():
        e = cx.e
        for m in range(3):
            e(f"s_mov_b32 s{S_TP+m}, {4*8192*m}")
        e.c("head 0 of each batch publishes this launch's tag in d_debug")
        e(f"s_or_b32 s{S_T0}, s{S_NC}, 1")
        e(f"v_mov_b32 v{V_TK}, s{S_T0}")
        e.vmop(f"buffer_store_dword v{V_TK}, v{V_DO}, s[{R_DBG}:{R_DBG+3}], s{S_CO} offen sc1", "tagst")
        e.c("descriptors of the final reduction")
        e(f"s_mul_i32 s{S_T0}, s{S_B}, 40")
        e(f"s_add_u32 s{S_T0}, s{S_T0}, s{S_CT}")
        e(f"s_lshl_b32 s{S_T0}, s{S_T0}, 13")
        srd(e, R_RD, S_WS, S_T0, 8192)
        e(f"s_lshl_b32 s{S_T0}, s{S_B}, 8")
        e(f"s_add_u32 s{S_T0}, s{S_T0}, {HINT}")
        srd(e, R_HT, S_WS, S_T0, 4)
        e(f"s_mul_i32 s{S_T0}, s{S_B}, 5120")
        srd(e, R_OUT, S_OUT, S_T0, 5120)
        e(f"v_lshlrev_b32 v{V_XR+5}, 4, v{V_L}")
        e(f"v_add_u32 v{V_XR+6}, 4096, v{V_XR+5}")
        e.c("output byte offset: row s = lane&3, column 16*tile + 4*((lane>>2)&3) + {0,2,1,3}[lane>>4]")
        e(f"v_and_b32 v{V_XR+7}, 3, v{V_L}")
        e(f"v_mul_u32_u24 v{V_XR+7}, 1280, v{V_XR+7}")
        e(f"v_and_b32 v{V_XR+8}, 12, v{V_L}")
        e(f"v_lshl_add_u32 v{V_XR+7}, v{V_XR+8}, 1, v{V_XR+7}")
        e(f"v_bfe_u32 v{V_XR+8}, v{V_L}, 4, 1")
        e(f"v_lshl_add_u32 v{V_XR+7}, v{V_XR+8}, 2, v{V_XR+7}")
        e(f"v_lshrrev_b32 v{V_XR+8}, 5, v{V_L}")
        e(f"v_lshl_add_u32 v{V_XR+7}, v{V_XR+8}, 1, v{V_XR+7}")
        e(f"s_lshl_b32 s{S_T0}, s{S_CT}, 5")
        e(f"v_add_u32 v{V_XR+7}, s{S_T0}, v{V_XR+7}")
        if hint:
            def z():
                e(f"v_mov_b32 v{V_XR+4}, 0")
                e("s_mov_b64 exec, 1")
                e(f"buffer_store_dword v{V_XR+4}, off, s[{R_HT}:{R_HT+3}], 0 sc1")
                e("s_mov_b64 exec, -1")
            cond_block(f"s_cmp_lg_u32 s{S_CT}, 0", z)

    MERGE = 6
    def group(kind):
        NQ = 10 if not skipq else skipq
        if kind == "A":
            order = [("Q", p) for p in range(NQ)] + seq
            slots = dict(main_slots)
            slots.update({("Q", p): (p - 10) % NSLOT for p in range(10)})
            if skipq:
                slots[("Q", 0)] = 5
        else:
            nq = NSLOT - nb
            order = [("Q", p) for p in range(nq0)] + seq[:nb] + [("Q", p) for p in range(nq0, 10)] + seq[nb:]
            slots = dict(main_slots)
            slots.update({("Q", p): nb + (p - (10 - nq)) % nq for p in range(10)})
        st = Stream(order, slots)
        st.next = 6
        st.busy.add(slots[("Q", 0)])
        cx.e.vm = list(first_vm)
        st.top_up(nflq)
        late_setup()
        if touch:
            e_ = cx.e
            e_.c("first touch of the regions used later")
            e_(f"s_mul_i32 s{S_T0}, s{S_B}, 5120")
            srd(e_, R_OUT, S_OUT, S_T0, 5120)
            e_("s_mov_b64 exec, 1")
            for bit, r in enumerate((R_V, R_WO, R_IN, R_DBG, R_OUT)):
                if touch >> bit & 1:
                    e_.vmop(f"buffer_load_dword v{V_P}, off, s[{r}:{r+3}], 0", "tch")
            e_("s_mov_b64 exec, -1")
        xreads()
        for p in range(NQ):
            st.wait_tile(("Q", p), nflq)
            consume(st, ("Q", p))
        reduce_partials(f"L_qred_{kind}", st)
        for j in range(6):
            cx.e(f"ds_read_b128 v[{V_QB+4*j}:{V_QB+4*j+3}], v{V_BR} offset:{64*j}")
        cx.e(f"v_mov_b32 v{V_M}, 0xff800000")
        st.sprinkle()
        cx.e("s_waitcnt lgkmcnt(0)")
        tr("qrdy")
        dt("qrdy")
        for pos in range(MERGE):
            tl = seq[pos]
            cx.e.c(f"consume {tl[0]}{tl[1]}")
            st.wait_tile(tl, nfl)
            consume(st, tl)
            if pos == 0 and clear_pos != "q":
                clear_setup()

        return st

    e.c("first wq tile and the x operand, common to both start orders")
    q0a = (0 - 10) % NSLOT if not skipq else 5
    q0b = nb + (0 - (10 - (NSLOT - nb))) % (NSLOT - nb)
    if stagger and q0a != q0b:
        e(f"s_mov_b32 s{S_T0}, {q0a*SLOT}")
        e(f"s_bitcmp1_b32 s{S_B}, 0")
        e(f"s_cmov_b32 s{S_T0}, {q0b*SLOT}")
        e(f"s_add_u32 s{S_SPIN}, s{S_RING}, s{S_T0}")
    else:
        e(f"s_add_u32 s{S_SPIN}, s{S_RING}, {q0a*SLOT}")
    xloads()
    e(f"s_mul_i32 s{S_OFF}, s{S_TP}, {16*12288}")
    e(f"s_add_u32 s{S_OFF}, s{S_OFF}, s{S_QW}")
    for i in range(6):
        e(f"s_add_u32 m0, s{S_SPIN}, {i*1024}")
        e("s_nop 0")
        e.vmop(f"buffer_load_dwordx4 v{V_WQ+i}, s[{R_WQ}:{R_WQ+3}], s{S_OFF} offen {f_wq} lds", (("Q", 0), i))
    kv_srds()
    first_vm = list(e.vm)
    if stagger:
        e(f"s_bitcmp1_b32 s{S_B}, 0")
        e("s_cbranch_scc1 L_grp_b")
        head = cx.e
        cx.e = ea = E()
        sa = group("A")
        cx.e = eb = E()
        sb = group("B")
        X = max(sa.next, sb.next)
        for st, em in ((sa, ea), (sb, eb)):
            cx.e = em
            while st.next < X:
                st.gated(nfl)
        assert sa.busy == sb.busy and sa.flat[X:] == sb.flat[X:]
        for em in (ea, eb):
            if "tagst" in em.vm:
                em.wait_vm("tagst")
        n = max(len(ea.vm), len(eb.vm))
        assert sa.flat[X - n:X] == sb.flat[X - n:X]
        e = cx.e = head
        e.lines += ea.lines
        e("s_branch L_merge")
        e("L_grp_b:")
        e.lines += eb.lines
        e("L_merge:")
        e.vm = list(sa.flat[X - n:X])
        st = sa
    else:
        st = group("A")
        e = cx.e

    st.dyn = True
    if split is not None:
        e(f"s_bfe_u32 s{S_MODE}, s2, {0x10000 | split:#x}")
    else:
        e(f"s_lshr_b32 s{S_MODE}, s2, 3")
        e(f"s_add_u32 s{S_MODE}, s{S_MODE}, s2")
        e(f"s_and_b32 s{S_MODE}, s{S_MODE}, 7")
    hooks = {}
    def h_tagload():
        e.vmop(f"buffer_load_dword v{V_TK}, off, s[{R_DBG}:{R_DBG+3}], s{S_CO} sc1", "tagld")
        hooks[seq.index(st.next_tile())] = h_tagcheck
    def h_tagcheck():
        assert "tagld" not in e.vm
        e(f"s_mov_b32 s{S_SPIN}, {spin_max}")
        e("L_spin:")
        e(f"v_readfirstlane_b32 s{S_T0}, v{V_TK}")
        e(f"s_sub_u32 s{S_SPIN}, s{S_SPIN}, 1")
        e("s_cbranch_scc1 L_spin_done")
        e(f"s_cmp_lg_u32 s{S_T0}, 0")
        e("s_cbranch_scc1 L_spin_done")
        e(f"buffer_load_dword v{V_TK}, off, s[{R_DBG}:{R_DBG+3}], s{S_CO} sc1")
        e("s_waitcnt vmcnt(0)")
        e("s_branch L_spin")
        e("L_spin_done:")
        for r in range(4):
            e(f"s_bfe_u32 s{S_TG+r}, s{S_T0}, {0x80000 + 8*r:#x}")
    hooks[nonce_pos] = h_tagload
    for pos in range(MERGE, len(seq)):
        tl = seq[pos]
        if pos == align_at:
            e.c("the rest of the kernel sits in one 4 KiB code page")
            e("s_branch L_tailpage")
            e(".p2align 12")
            e("L_tailpage:")
        e.c(f"consume {tl[0]}{tl[1]}")
        st.wait_tile(tl, nfl)
        if pos in hooks:
            hooks.pop(pos)()
        consume(st, tl)

    assert st.next == len(st.flat) and not hooks, hooks

    e.c("output projection of this head")
    reduce_partials("L_ored", None)
    tr_begin()
    for j in range(6):
        e(f"ds_read2_b64 v[{V_QB+4*j}:{V_QB+4*j+3}], v{V_BO} offset0:{8*j} offset1:{8*j+4}")
    e(f"v_mov_b32 v{V_M}, 0xffffff00")
    if trace:
        e("s_memtime s[98:99]" if fine else "s_memtime s[94:95]")
    e("s_waitcnt lgkmcnt(0)")
    tr_end("obr")
    def out_mfma(nt, j):
        d = V_S + 4 * nt
        a = (j * 10 + nt) * 4
        cc = "0" if j == 0 else f"v[{d}:{d+3}]"
        e(f"v_mfma_f32_16x16x32_bf16 v[{d}:{d+3}], a[{a}:{a+3}], v[{V_QB+4*j}:{V_QB+4*j+3}], {cc}")
    def D_(nt):
        return V_S + 4 * nt
    ready = {}
    for nt in range(10):
        m, c = nt >> 2, nt & 3
        d = D_(4 * m)
        ops = []
        if c > 0:
            ops = [f"v_mov_b32_dpp v{d+r}, v{D_(nt)+r} quad_perm:[0,1,2,3] row_mask:0xf bank_mask:{1 << c:#x}" for r in range(4)]
        if c == 3 or nt == 9:
            ops += [f"v_and_or_b32 v{d+r}, v{d+r}, v{V_M}, s{S_TG+r}" for r in range(4)]
            ops.append(f"buffer_store_dwordx4 v[{d}:{d+3}], v{V_ST if m < 2 else V_ST2}, s[{R_IN}:{R_IN+3}], s{S_TP+m} offen sc1")
        ready[nt] = ops
    pend = []
    since = {}
    def flush_one():
        if pend:
            e(pend.pop(0))
            for k_ in since:
                since[k_] += 1
    for nt in range(10):
        for j in range(6):
            out_mfma(nt, j)
            for k_ in since:
                since[k_] += 1
            if j == 5:
                since[nt] = 0
                if fine:
                    e(f"s_memtime s[{78+2*nt}:{79+2*nt}]")
            if fine and nt == 0 and j == 0:
                e(f"s_memtime s[76:77]")
            for k_ in sorted(ready):
                if since.get(k_, -1) >= 8:
                    pend += ready.pop(k_)
            flush_one()
    while pend or len(ready) > 1:
        for k_ in sorted(ready):
            if k_ < 9 and since[k_] >= 8:
                pend += ready.pop(k_)
        if pend:
            flush_one()
        else:
            e("s_nop 0")
            for k_ in since:
                since[k_] += 1
    if since[9] < 8:
        e(f"s_nop {7 - since[9]}")
    for op in ready.pop(9):
        e(op)
    assert not ready
    if trace:
        e("s_memtime s[92:93]")
    tr("sent")
    dt("sent")
    if trace:
        e("s_sub_u32 s92, s92, s94")
        e(f"v_writelane_b32 v{V_TR}, s92, 62")
        if fine:
            for i in range(11):
                e(f"s_sub_u32 s{76+2*i}, s{76+2*i}, s98")
                e(f"v_writelane_b32 v{V_TR}, s{76+2*i}, {1+i}")
        else:
            e("s_sub_u32 s94, s94, s96")
            e(f"v_writelane_b32 v{V_TR}, s94, 61")
    e(f"s_cmp_ge_u32 s{S_CT}, 40")
    e("s_cbranch_scc1 L_fin")
    e.c("reduce one 16-column tile over the 32 heads")
    e(f"s_mov_b32 s{S_SPIN}, {spin_max}")
    if hint:
        e("L_hint:")
        e(f"buffer_load_dword v{V_TK}, off, s[{R_HT}:{R_HT+3}], 0 sc1")
        e(f"s_sub_u32 s{S_SPIN}, s{S_SPIN}, 1")
        e("s_cbranch_scc1 L_poll")
        e("s_waitcnt vmcnt(0)")
        e(f"v_readfirstlane_b32 s{S_T0}, v{V_TK}")
        e("s_nop 0")
        e(f"s_cmp_lt_u32 s{S_T0}, 32")
        e("s_cbranch_scc1 L_hint")
        tr("hint")
    D = V_S
    A = V_RD
    e("L_poll:")
    for i in range(8):
        e(f"buffer_load_dwordx4 v[{D+4*i}:{D+4*i+3}], v{V_XR + 5 + (i >> 2)}, s[{R_RD}:{R_RD+3}], 0 offen offset:{1024*(i & 3)} sc1")
    for i in range(8):
        e(f"s_waitcnt vmcnt({7-i})")
        d = D + 4 * i
        for r in range(4):
            e(f"v_xor_b32 v{d+r}, s{S_TG+r}, v{d+r}")
        if i == 0:
            e(f"v_or3_b32 v{A+4}, v{d}, v{d+1}, v{d+2}")
            e(f"v_or_b32 v{A+4}, v{A+4}, v{d+3}")
        else:
            e(f"v_or3_b32 v{A+4}, v{A+4}, v{d}, v{d+1}")
            e(f"v_or3_b32 v{A+4}, v{A+4}, v{d+2}, v{d+3}")
            for r in range(4):
                e(f"v_add_f32 v{A+r}, v{A+r if i > 1 else D+r}, v{d+r}")
    e(f"v_and_b32 v{A+4}, 0xff, v{A+4}")
    e(f"v_cmp_ne_u32 vcc, 0, v{A+4}")
    e(f"s_sub_u32 s{S_SPIN}, s{S_SPIN}, 1")
    e("s_cbranch_scc1 L_ready")
    e("s_cbranch_vccnz L_poll")
    e("L_ready:")
    e(f"v_permlane32_swap_b32 v{A}, v{A+1}")
    e(f"v_permlane32_swap_b32 v{A+2}, v{A+3}")
    e("s_nop 0")
    e(f"v_add_f32 v{A}, v{A}, v{A+1}")
    e(f"v_add_f32 v{A+2}, v{A+2}, v{A+3}")
    e("s_nop 1")
    e(f"v_permlane16_swap_b32 v{A}, v{A+2}")
    e("s_nop 0")
    e(f"v_add_f32 v{A}, v{A}, v{A+2}")
    e(f"v_cvt_pk_bf16_f32 v{A}, v{A}, v{A}")
    e(f"buffer_store_short v{A}, v{V_XR+7}, s[{R_OUT}:{R_OUT+3}], 0 offen")
    e("L_fin:")
    if isinstance(dbgtime, str):
        e("s_waitcnt vmcnt(0)")
        dt("end")
        e("s_waitcnt lgkmcnt(0)")
        e(f"s_sub_u32 s94, s{80+2*DT[dbgtime]}, s80")
        e("s_lshl_b32 s94, s94, 1")
        e("s_add_u32 s94, s94, s90")
        e("L_stretch:")
        e("s_memrealtime s[96:97]")
        e("s_waitcnt lgkmcnt(0)")
        e("s_sub_u32 s96, s96, s94")
        e("s_cmp_lt_i32 s96, 0")
        e("s_cbranch_scc1 L_stretch")
    elif dbgtime:
        e("s_waitcnt vmcnt(0)")
        dt("end")
        e("s_waitcnt lgkmcnt(0)")
        e("s_not_b32 s94, s80")
        e("s_mov_b64 exec, 1")
        for i, r in enumerate((94, 80, 92, 82, 84, 86, 88, 90)):
            e(f"v_mov_b32 v{T}, s{r}")
            e(f"buffer_atomic_umax v{T}, off, s[{R_DBG}:{R_DBG+3}], 0 offset:{32+4*i} sc1")
            e("s_nop 1")
        e("s_mov_b64 exec, -1")
    if trace:
        e("s_waitcnt vmcnt(0)")
        tr("end")
        e(f"s_getreg_b32 s{S_T0}, hwreg(HW_REG_XCC_ID)")
        e(f"v_writelane_b32 v{V_TR}, s{S_T0}, 63")
        e(f"s_getreg_b32 s{S_T0}, hwreg(HW_REG_HW_ID)")
        e(f"v_writelane_b32 v{V_TR}, s{S_T0}, 60")
        e(f"s_lshl_b32 s{S_T0}, s2, 2")
        e(f"s_add_u32 s{S_T0}, s{S_T0}, s{S_W}")
        e(f"s_lshl_b32 s{S_T0}, s{S_T0}, 8")
        e(f"s_add_u32 s{S_T0}, s{S_T0}, 0x2000000")
        srd(e, R_OUT, S_WS, S_T0, 256)
        e(f"v_lshlrev_b32 v{T+4}, 2, v{V_L}")
        e(f"buffer_store_dword v{V_TR}, v{T+4}, s[{R_OUT}:{R_OUT+3}], 0 offen")
        assert len(TRACE_NAMES) <= 60, len(TRACE_NAMES)
    e("L_end:")
    e("s_endpgm")

    return f"""; Fused q-projection + sliding-window attention + output projection, 256 workgroups = (batch, head).
; @launch grid=(256,1,1) block=(256,1,1) lds={LDS_BYTES}
.amdgcn_target "amdgcn-amd-amdhsa--gfx950"
.text
.globl {KN}
.p2align 12
.p2align 8
.type {KN},@function
{e.text()}
.section .rodata,"a"
.p2align 6
.amdhsa_kernel {KN}
  .amdhsa_next_free_vgpr 496
  .amdhsa_next_free_sgpr 102
  .amdhsa_accum_offset 256
  .amdhsa_group_segment_fixed_size 0
  .amdhsa_kernarg_size 64
  .amdhsa_user_sgpr_count 2
  .amdhsa_user_sgpr_kernarg_segment_ptr 1
  .amdhsa_system_sgpr_workgroup_id_x 1
.end_amdhsa_kernel
"""

if __name__ == "__main__":
    kw = eval("dict(" + (sys.argv[1] if len(sys.argv) > 1 else "") + ")")
    sys.stdout.write(gen(**kw))
```

```python
import struct, sys, copy

KN = "standalone__sliding_block_cached__sampling_kernel"
TRACE_NAMES = []

def f32(x):
    return struct.unpack("<I", struct.pack("<f", x))[0]

class E:
    def __init__(self):
        self.lines = []
        self.vm = []
    def __call__(self, s=""):
        self.lines.append("    " + s if s and not s.endswith(":") else s)
    def c(self, s):
        self.lines.append("    ; " + s)
    def vmop(self, s, tag):
        self(s)
        self.vm.append(tag)
    def wait_vm(self, tag):
        idx = max([i for i, t in enumerate(self.vm) if t == tag], default=-1)
        if idx < 0:
            return
        n = len(self.vm) - 1 - idx
        self(f"s_waitcnt vmcnt({min(n, 63)})")
        self.vm = self.vm[idx + 1:]
    def text(self):
        return "\n".join(self.lines) + "\n"

SLOT = 6144
NSLOT = 6
RING = SLOT * NSLOT
MISC = 4 * RING
PART = MISC
PROW = 784
PWAVE = 4 * PROW
BROW = 400
QBF = MISC + 4 * PWAVE
RMAX = QBF + 4 * BROW
RSUM = RMAX + 256
LDS_BYTES = RSUM + 256

INBOX_B = 40 * 8192
HINT = 8 * INBOX_B

S_W = 3
S_X, S_K, S_V, S_WQ, S_WO, S_OUT, S_DBG, S_WS = 4, 6, 8, 10, 12, 14, 16, 18
R_K, R_V, R_WQ, R_WO, R_X, R_IN, R_OUT, R_DBG = 20, 24, 28, 32, 36, 40, 44, 48
R_RD = 28
R_HT = 36
S_B, S_H, S_RING, S_OFF, S_T0, S_T1 = 52, 53, 54, 55, 56, 57
S_KW = 58
S_QW = 59
S_TP = 60
S_SCALE, S_L2E = 70, 71
S_CT = 72
S_SPIN = 73
S_XL = 74
S_KS = 75
S_MODE = 79
S_CO = 78
S_TG = 64
S_NC = 76
S_TR = 100

V_L = 1
V_KV = 2
V_WQ = 8
V_WO = 14
V_KA = 19
V_VA = 21
V_WA = 25
V_PW = 26
V_PR = 27
V_BW = 28
V_BR = 29
V_BO = 30
V_RW = 31
V_RR = 32
V_M = 33
V_T = 34
V_ST = 39
V_RD = 40
V_ACC = 64
V_QB = 112
V_S = 136
V_P = 200
V_XR = 232
V_TK = 252
V_DO = 253
V_TR = 254
V_XO = 255
V_ST2 = 255

def srd(e, r, base, off, nbytes):
    if off is None:
        e(f"s_mov_b32 s{r}, s{base}")
        e(f"s_and_b32 s{r+1}, s{base+1}, 0xffff")
    else:
        e(f"s_add_u32 s{r}, s{base}, s{off}")
        e(f"s_addc_u32 s{r+1}, s{base+1}, 0")
        e(f"s_and_b32 s{r+1}, s{r+1}, 0xffff")
    e(f"s_mov_b32 s{r+2}, {nbytes}")
    e(f"s_mov_b32 s{r+3}, 0x20000")

def nloads(tile):
    return 5 if tile[0] == "O" else 6

def gen(nb=4, nq0=2, nfl=10, nflq=11, backlog=1, wo_first=7, wo_step=2, f_kv="nt", f_wq="", f_wo="", f_x="",
        hmap=1, stagger=1, rota=(0, 3, 5, 8), rotb=(2, 4, 7, 9), krot=(2, 8), kmul=(0, 0, 1), trace=0, hint=0,
        spin_max=20000, align_at=41, nflt=10, qsprinkle=3, fine=0, dbgtime=0, bxor=0, hxor=0, lev=None, split=None, skipq=0, noclear=0, nosync=0, clear_pos=9, touch=0, qs2=3, f_clr='sc1', nonce_pos=30, f_wq0=None, f_st='sc1', noround=0):
    del TRACE_NAMES[:]
    T = V_T
    G, SS = T, T + 1

    class Ctx:
        pass
    cx = Ctx()
    cx.e = E()

    def tr_begin():
        if trace:
            cx.e(f"s_memrealtime s[{S_TR}:{S_TR+1}]")
    def tr_end(name):
        if trace:
            if name not in TRACE_NAMES:
                TRACE_NAMES.append(name)
            cx.e(f"v_writelane_b32 v{V_TR + 0}, s{S_TR}, {TRACE_NAMES.index(name)}")
    DT = {"start": 0, "qrdy": 1, "sm": 2, "V15": 3, "sent": 4, "end": 5, "Q0": 6}
    def dt(name):
        if dbgtime:
            cx.e(f"s_memrealtime s[{80+2*DT[name]}:{81+2*DT[name]}]")
    def tr(name):
        if trace:
            tr_begin()
            cx.e("s_waitcnt lgkmcnt(0)")
            tr_end(name)

    e = cx.e
    e(f"{KN}:")
    e("s_cmp_ge_u32 s2, 256")
    e("s_cbranch_scc1 L_end")
    dt("start")
    tr_begin()
    if trace:
        e("s_memtime s[96:97]")
    e(f"s_memrealtime s[{S_NC}:{S_NC+1}]")
    e("s_load_dwordx16 s[4:19], s[0:1], 0")
    e(f"v_lshrrev_b32 v{T}, 6, v0")
    e(f"v_and_b32 v{V_L}, 63, v0")
    e(f"v_readfirstlane_b32 s{S_W}, v{T}")
    if trace:
        e(f"v_mov_b32 v{V_TR}, 0")
    if hmap:
        e(f"s_and_b32 s{S_H}, s2, 7")
        e(f"s_lshl_b32 s{S_H}, s{S_H}, 2")
        e(f"s_bfe_u32 s{S_T0}, s2, 0x20003")
        e(f"s_add_u32 s{S_H}, s{S_H}, s{S_T0}")
    else:
        e(f"s_and_b32 s{S_H}, s2, 31")
    e(f"s_lshr_b32 s{S_B}, s2, 5")
    if bxor:
        e(f"s_xor_b32 s{S_B}, s{S_B}, {bxor}")
    if hxor:
        e(f"s_xor_b32 s{S_H}, s{S_H}, {hxor}")
    e(f"s_mul_i32 s{S_RING}, s{S_W}, {RING}")
    e(f"s_mul_i32 s{S_QW}, s{S_W}, {160*12288}")
    e.c("key tile order of this wave: tile(t) = (c + a*(4t + wave)) mod 64, a odd, a and c per workgroup")
    e(f"s_lshr_b32 s{S_T0}, s2, 3")
    e(f"s_and_b32 s{S_T1}, s2, 7")
    e(f"s_mul_i32 s{S_KS}, s{S_T0}, {2*kmul[0]}")
    e(f"s_mul_i32 s{S_KW}, s{S_T1}, {2*kmul[1]}")
    e(f"s_add_u32 s{S_KS}, s{S_KS}, s{S_KW}")
    e(f"s_add_u32 s{S_KS}, s{S_KS}, {kmul[2]}")
    e(f"s_mul_i32 s{S_T0}, s{S_T0}, {krot[0]}")
    e(f"s_mul_i32 s{S_T1}, s{S_T1}, {krot[1]}")
    e(f"s_add_u32 s{S_T0}, s{S_T0}, s{S_T1}")
    e(f"s_mul_i32 s{S_T1}, s{S_KS}, s{S_W}")
    e(f"s_add_u32 s{S_KW}, s{S_T0}, s{S_T1}")
    e(f"s_lshl_b32 s{S_KS}, s{S_KS}, 2")
    e.c("first wq tile, rotated per batch so that the sharers of a head start on different rows")
    if stagger:
        rots = [rota[0], rotb[0], rota[1], rotb[1], rota[2], rotb[2], rota[3], rotb[3]]
    else:
        rots = [0, 1, 3, 4, 5, 6, 8, 9]
    packed = sum(r << (4 * i) for i, r in enumerate(rots))
    e(f"s_lshl_b32 s{S_T0}, s{S_B}, 2")
    e(f"s_lshr_b32 s{S_T0}, {packed:#x}, s{S_T0}")
    e(f"s_and_b32 s{S_TP}, s{S_T0}, 15")
    for p in range(1, 10):
        e(f"s_add_u32 s{S_TP+p}, s{S_TP+p-1}, 1")
        e(f"s_cmp_eq_u32 s{S_TP+p}, 10")
        e(f"s_cselect_b32 s{S_TP+p}, 0, s{S_TP+p}")
    e.c("DMA source offsets (16-byte chunks XOR-swizzled inside each 128-byte line)")
    e(f"v_lshrrev_b32 v{T}, 3, v{V_L}")
    e(f"v_and_b32 v{T+1}, 7, v{V_L}")
    for i in range(6):
        e(f"v_add_u32 v{T+2}, {8*i}, v{T}")
        e(f"v_mul_u32_u24 v{T+3}, 43, v{T+2}")
        e(f"v_lshrrev_b32 v{T+3}, 7, v{T+3}")
        e(f"v_and_b32 v{T+4}, 6, v{T+3}")
        e(f"v_xor_b32 v{T+4}, v{T+4}, v{T+1}")
        e(f"v_lshlrev_b32 v{T+4}, 4, v{T+4}")
        e(f"v_lshl_add_u32 v{V_KV+i}, v{T+2}, 7, v{T+4}")
        e(f"v_mul_u32_u24 v{T+3}, {12288-384}, v{T+3}")
        e(f"v_add_u32 v{V_WQ+i}, v{V_KV+i}, v{T+3}")
    e(f"v_lshrrev_b32 v{G}, 4, v{V_L}")
    e(f"v_and_b32 v{SS}, 3, v{V_L}")
    e.c("x staging: 80 chunks of 16 bytes, LDS image [row][320 bytes]")
    e(f"v_mul_u32_u24 v{T+2}, 205, v{V_L}")
    e(f"v_lshrrev_b32 v{T+2}, 12, v{T+2}")
    e(f"v_mul_u32_u24 v{T+2}, {1280-320}, v{T+2}")
    e(f"v_lshl_add_u32 v{T+2}, v{V_L}, 4, v{T+2}")
    e(f"s_mul_i32 s{S_T0}, s{S_W}, 320")
    e(f"v_add_u32 v{V_XO}, s{S_T0}, v{T+2}")
    e(f"v_lshlrev_b32 v{T+2}, 4, v{V_L}")
    e(f"v_add_u32 v{T+2}, {3*1280 + 64}, v{T+2}")
    e(f"v_add_u32 v{V_TK}, s{S_T0}, v{T+2}")
    e(f"s_mul_i32 s{S_XL}, s{S_W}, {PWAVE}")
    e(f"s_add_u32 s{S_XL}, s{S_XL}, {PART}")
    e("s_waitcnt lgkmcnt(0)")
    tr_end("start")
    e(f"s_mul_i32 s{S_T0}, s{S_H}, 384")
    e(f"s_sub_u32 s{S_T1}, {640*12288}, s{S_T0}")
    srd(e, R_WQ, S_WQ, S_T0, f"s{S_T1}")

    def issue_one(tile, slot, i):
        e = cx.e
        kind, t = tile
        if kind in "KV":
            r, vo, fl = (R_K if kind == "K" else R_V), V_KV, f_kv
            if i == 0:
                e(f"s_mul_i32 s{S_OFF}, s{S_KS}, {t}")
                e(f"s_add_u32 s{S_OFF}, s{S_OFF}, s{S_KW}")
                e(f"s_and_b32 s{S_OFF}, s{S_OFF}, 63")
                e(f"s_mul_i32 s{S_OFF}, s{S_OFF}, {SLOT}")
        elif kind == "Q":
            r, vo, fl = R_WQ, V_WQ, (f_wq0 if f_wq0 is not None and t < 2 else f_wq)
            if i == 0:
                e(f"s_mul_i32 s{S_OFF}, s{S_TP+t}, {16*12288}")
                e(f"s_add_u32 s{S_OFF}, s{S_OFF}, s{S_QW}")
        else:
            r, vo, fl = R_WO, V_WO, f_wo
            if i == 0:
                e(f"s_mov_b32 s{S_OFF}, {t*16*1280}")
        e(f"s_add_u32 m0, s{S_RING}, {slot*SLOT + i*1024}")
        e("s_nop 0")
        e.vmop(f"buffer_load_dwordx4 v{vo+i}, s[{r}:{r+3}], s{S_OFF} offen {fl} lds", (tile, i))

    def xloads():
        e = cx.e
        e(f"s_mul_i32 s{S_T0}, s{S_B}, 5120")
        srd(e, R_X, S_X, S_T0, 5120)
        e(f"s_mov_b32 m0, s{S_XL}")
        e("s_nop 0")
        e.vmop(f"buffer_load_dwordx4 v{V_XO}, s[{R_X}:{R_X+3}], 0 offen {f_x} lds", ("x", 0))
        e(f"s_add_u32 m0, s{S_XL}, 1024")
        e("s_mov_b64 exec, 0xffff")
        e.vmop(f"buffer_load_dwordx4 v{V_TK}, s[{R_X}:{R_X+3}], 0 offen {f_x} lds", ("x", 1))
        e("s_mov_b64 exec, -1")

    def kv_srds():
        e = cx.e
        e(f"s_lshl_b32 s{S_T0}, s{S_B}, 5")
        e(f"s_add_u32 s{S_T0}, s{S_T0}, s{S_H}")
        e(f"s_mul_i32 s{S_T0}, s{S_T0}, 1572864")
        e(f"s_add_u32 s{S_T0}, s{S_T0}, {3072*384}")
        srd(e, R_K, S_K, S_T0, 393216)
        srd(e, R_V, S_V, S_T0, 393216)

    def xreads():
        e = cx.e
        e(f"v_mul_u32_u24 v{T+2}, 320, v{SS}")
        e(f"v_lshl_add_u32 v{T+2}, v{G}, 3, v{T+2}")
        e(f"v_add_u32 v{T+2}, s{S_XL}, v{T+2}")
        e.wait_vm(("x", 1))
        for p in range(10):
            e(f"v_lshl_add_u32 v{T+3}, s{S_TP+p}, 5, v{T+2}")
            e(f"ds_read_b64 v[{V_XR+2*p}:{V_XR+2*p+1}], v{T+3}")

    def late_setup():
        e = cx.e
        e.c("remaining address registers and descriptors")
        e(f"s_mov_b32 s{S_SCALE}, {f32(192 ** -0.5):#x}")
        e(f"s_mov_b32 s{S_L2E}, {f32(1.4426950408889634):#x}")
        e(f"s_mul_i32 s{S_T0}, s{S_H}, 245760")
        srd(e, R_WO, S_WO, S_T0, 245760)
        e(f"s_mul_i32 s{S_T0}, s{S_W}, 320")
        for i in range(5):
            e(f"v_add_u32 v{T+2}, {64*i}, v{V_L}")
            e(f"v_mul_u32_u24 v{T+3}, 205, v{T+2}")
            e(f"v_lshrrev_b32 v{T+3}, 12, v{T+3}")
            e(f"v_mul_u32_u24 v{T+3}, {1280-320}, v{T+3}")
            e(f"v_lshl_add_u32 v{T+3}, v{T+2}, 4, v{T+3}")
            e(f"v_add_u32 v{V_WO+i}, s{S_T0}, v{T+3}")
        e.c("K operand read addresses")
        e(f"v_and_b32 v{T+2}, 15, v{V_L}")
        e(f"v_and_b32 v{T+3}, 6, v{T+2}")
        e(f"v_xor_b32 v{T+3}, v{T+3}, v{G}")
        e(f"v_lshlrev_b32 v{T+3}, 4, v{T+3}")
        e(f"v_mul_u32_u24 v{T+2}, 384, v{T+2}")
        e(f"v_add3_u32 v{V_KA}, v{T+2}, v{T+3}, s{S_RING}")
        e(f"v_xor_b32 v{V_KA+1}, 64, v{V_KA}")
        e.c("transposing read addresses: row = lane>>2, column group = lane&3")
        e(f"v_lshrrev_b32 v{T+2}, 2, v{V_L}")
        e(f"v_and_b32 v{T+3}, 6, v{T+2}")
        e(f"v_lshlrev_b32 v{T+3}, 4, v{T+3}")
        e(f"v_lshl_add_u32 v{T+3}, v{SS}, 3, v{T+3}")
        e(f"v_mul_u32_u24 v{T+4}, 384, v{T+2}")
        e(f"v_add3_u32 v{V_VA}, v{T+4}, v{T+3}, s{S_RING}")
        for q in range(1, 4):
            e(f"v_xor_b32 v{V_VA+q}, {32*q}, v{V_VA}")
        e(f"v_mul_u32_u24 v{T+4}, 320, v{T+2}")
        e(f"v_lshl_add_u32 v{T+4}, v{SS}, 3, v{T+4}")
        e(f"v_add_u32 v{V_WA}, s{S_RING}, v{T+4}")
        e.c("cross-wave exchange addresses")
        e(f"v_mul_u32_u24 v{T+2}, {PROW}, v{SS}")
        e(f"v_lshl_add_u32 v{T+2}, v{G}, 4, v{T+2}")
        e(f"v_add_u32 v{V_PW}, s{S_XL}, v{T+2}")
        e(f"v_mul_u32_u24 v{T+3}, 1366, v0")
        e(f"v_lshrrev_b32 v{T+3}, 16, v{T+3}")
        e(f"v_lshlrev_b32 v{T+3}, 4, v{T+3}")
        e(f"v_lshl_add_u32 v{T+2}, v0, 4, v{T+3}")
        e(f"v_add_u32 v{V_PR}, {PART}, v{T+2}")
        e(f"v_lshl_add_u32 v{T+2}, v0, 3, v{T+3}")
        e(f"v_add_u32 v{V_BW}, {QBF}, v{T+2}")
        e(f"v_mul_u32_u24 v{T+2}, {BROW}, v{SS}")
        e(f"v_add_u32 v{T+2}, {QBF}, v{T+2}")
        e(f"v_lshl_add_u32 v{V_BR}, v{G}, 4, v{T+2}")
        e(f"v_lshl_add_u32 v{V_BO}, v{G}, 3, v{T+2}")
        e(f"v_lshlrev_b32 v{T+2}, 6, v{SS}")
        e(f"v_add_u32 v{V_RR}, {RMAX}, v{T+2}")
        e(f"s_lshl_b32 s{S_T0}, s{S_W}, 4")
        e(f"v_lshl_add_u32 v{T+2}, v{G}, 2, v{V_RR}")
        e(f"v_add_u32 v{V_RW}, s{S_T0}, v{T+2}")
        e.c("inbox slot of this head: [batch][tile][head][16 lanes x 16 bytes]")
        e(f"s_mul_i32 s{S_T0}, s{S_B}, {INBOX_B}")
        e(f"s_lshl_b32 s{S_T1}, s{S_H}, 8")
        e(f"s_add_u32 s{S_T0}, s{S_T0}, s{S_T1}")
        e(f"s_sub_u32 s{S_T1}, {INBOX_B}, s{S_T1}")
        srd(e, R_IN, S_WS, S_T0, f"s{S_T1}")
        e(f"v_lshl_add_u32 v{T+2}, v{G}, 2, v{SS}")
        e(f"v_lshlrev_b32 v{T+2}, 4, v{T+2}")
        e(f"s_mul_i32 s{S_T0}, s{S_W}, {10*8192}")
        e(f"v_add_u32 v{V_ST}, s{S_T0}, v{T+2}")
        e(f"v_and_b32 v{T+2}, 12, v{V_L}")
        e(f"v_lshl_add_u32 v{V_ST}, v{T+2}, 11, v{V_ST}")
        e(f"v_and_b32 v{T+2}, 8, v{V_L}")
        e(f"v_lshl_add_u32 v{V_ST2}, v{T+2}, 24, v{V_ST}")
        srd(e, R_DBG, S_DBG, None, 256)
        e.c("per-batch tag word in d_debug; only lane 0 of wave 3 of head 0 stores, the other lanes are out of range")
        e(f"s_and_b32 s{S_T0}, s{S_B}, 1")
        e(f"s_lshl_b32 s{S_T0}, s{S_T0}, 7")
        e(f"s_lshl_b32 s{S_T1}, s{S_B}, 1")
        e(f"s_and_b32 s{S_T1}, s{S_T1}, 12")
        e(f"s_add_u32 s{S_CO}, s{S_T0}, s{S_T1}")
        e(f"v_xor_b32 v{T+2}, 192, v0")
        e(f"v_or_b32 v{T+2}, s{S_H}, v{T+2}")
        e(f"v_lshlrev_b32 v{V_DO}, 8, v{T+2}")
        e.c("tile this wave reduces at the end: wave 0 -> head, wave 1 -> 32 + head")
        e(f"s_lshl_b32 s{S_CT}, s{S_W}, 5")
        e(f"s_add_u32 s{S_CT}, s{S_CT}, s{S_H}")

    kv = [("K", t) for t in range(16)] + [("V", t) for t in range(16)]
    seq = []
    wo_i = 0
    for n, tl in enumerate(kv):
        seq.append(tl)
        if n + 1 >= wo_first and (n + 1 - wo_first) % wo_step == 0 and wo_i < 12:
            seq.append(("O", wo_i)); wo_i += 1
    assert wo_i == 12 and all(t[0] == "K" for t in seq[:7])

    lab = [0]
    class Stream:
        def __init__(self, order, slots):
            self.flat = [(tl, i) for tl in order for i in range(nloads(tl))]
            self.slot = slots
            self.next = 0
            self.busy = set()
            self.dyn = False
        def can_issue(self):
            if self.next >= len(self.flat):
                return False
            tl, i = self.flat[self.next]
            return i > 0 or self.slot[tl] not in self.busy
        def issue_next(self):
            tl, i = self.flat[self.next]
            if i == 0:
                assert self.slot[tl] not in self.busy
                self.busy.add(self.slot[tl])
            issue_one(tl, self.slot[tl], i)
            self.next += 1
        def loads(self):
            return [t for t in cx.e.vm if not isinstance(t, str)]
        def gated(self, n):
            vm = self.loads()
            if len(vm) >= n:
                cx.e.wait_vm(vm[len(vm) - n])
            if lev and self.dyn:
                lab[0] += 1
                k = lab[0]
                for m, d in enumerate(lev):
                    cx.e(f"s_cmp_le_u32 s{S_MODE}, {m}")
                    cx.e(f"s_cbranch_scc1 L_go_{k}")
                    cx.e(f"s_waitcnt vmcnt({n - 1 - d})")
                cx.e(f"L_go_{k}:")
            self.issue_next()
        def top_up(self, n):
            while len(self.loads()) < n and self.can_issue():
                self.issue_next()
        def wait_tile(self, tl, n):
            last = (tl, nloads(tl) - 1)
            while self.flat.index(last) >= self.next:
                self.gated(n)
            while last in cx.e.vm:
                vm = self.loads()
                if self.can_issue() and (len(vm) < n or vm.index(last) >= len(vm) - n):
                    if len(vm) < n:
                        self.top_up(n)
                    else:
                        self.gated(n)
                else:
                    cx.e.wait_vm(last)
        def release(self, tl, n):
            self.busy.discard(self.slot[tl])
            if len(self.loads()) < n:
                self.top_up(n)
            else:
                for _ in range(backlog):
                    if self.can_issue():
                        self.gated(n)
        def sprinkle(self):
            if self.can_issue():
                self.issue_next()
        def next_tile(self):
            tl, i = self.flat[self.next]
            if i > 0:
                tl = self.flat[self.next + nloads(tl) - i][0]
            return tl

    main_slots = {tl: n % NSLOT for n, tl in enumerate(seq)}

    def tr_reads(slot):
        for dt in range(12):
            cx.e(f"ds_read_b64_tr_b16 v[{V_RD+2*dt}:{V_RD+2*dt+1}], v{V_VA + (dt & 3)} offset:{slot*SLOT + 128*(dt >> 2)}")

    def pv_mfma(breg, first):
        for dt in range(12):
            a = V_ACC + 4 * dt
            cc = "0" if first else f"v[{a}:{a+3}]"
            cx.e(f"v_mfma_f32_16x16x16_bf16 v[{a}:{a+3}], v[{V_RD+2*dt}:{V_RD+2*dt+1}], v[{breg}:{breg+1}], {cc}")

    def reduce_partials(label, st):
        e = cx.e
        e.c("sum the four waves' partial rows, round to bf16")
        e("s_mov_b32 exec_lo, 0x000f000f")
        e("s_mov_b32 exec_hi, 0x000f000f")
        for dt in range(12):
            a = V_ACC + 4 * dt
            e(f"ds_write_b128 v{V_PW}, v[{a}:{a+3}] offset:{64*dt}")
        e("s_mov_b64 exec, -1")
        if st:
            for _ in range(qsprinkle):
                st.sprinkle()
        e("s_waitcnt lgkmcnt(0)")
        e("s_barrier")
        tr(label[2] + ".b1")
        e(f"s_cmp_eq_u32 s{S_W}, 3")
        e(f"s_cbranch_scc1 {label}")
        for w in range(4):
            e(f"ds_read_b128 v[{V_RD+4*w}:{V_RD+4*w+3}], v{V_PR} offset:{PWAVE*w}")
        e("s_waitcnt lgkmcnt(0)")
        for r in range(4):
            e(f"v_add_f32 v{V_RD+r}, v{V_RD+r}, v{V_RD+4+r}")
        for r in range(4):
            e(f"v_add_f32 v{V_RD+8+r}, v{V_RD+8+r}, v{V_RD+12+r}")
        for r in range(4):
            e(f"v_add_f32 v{V_RD+r}, v{V_RD+r}, v{V_RD+8+r}")
        e(f"v_cvt_pk_bf16_f32 v{V_RD+4}, v{V_RD}, v{V_RD+1}")
        e(f"v_cvt_pk_bf16_f32 v{V_RD+5}, v{V_RD+2}, v{V_RD+3}")
        e(f"ds_write_b64 v{V_BW}, v[{V_RD+4}:{V_RD+5}]")
        e("s_waitcnt lgkmcnt(0)")
        e(f"{label}:")
        if st and qs2:
            for _ in range(qs2):
                st.sprinkle()
        e("s_barrier")

    def score_post(t):
        e = cx.e
        s = V_S + 4 * t
        a, b = T + 2, T + 3
        if noround:
            for r in range(4):
                e(f"v_mul_f32 v{s+r}, s{S_SCALE}, v{s+r}")
        for rnd in range(0 if noround else 2):
            e(f"v_cvt_pk_bf16_f32 v{a}, v{s}, v{s+1}")
            e(f"v_cvt_pk_bf16_f32 v{b}, v{s+2}, v{s+3}")
            e(f"v_lshlrev_b32 v{s}, 16, v{a}")
            e(f"v_and_b32 v{s+1}, 0xffff0000, v{a}")
            e(f"v_lshlrev_b32 v{s+2}, 16, v{b}")
            e(f"v_and_b32 v{s+3}, 0xffff0000, v{b}")
            if rnd == 0:
                for r in range(4):
                    e(f"v_mul_f32 v{s+r}, s{S_SCALE}, v{s+r}")
        e(f"v_max3_f32 v{V_M}, v{V_M}, v{s}, v{s+1}")
        e(f"v_max3_f32 v{V_M}, v{V_M}, v{s+2}, v{s+3}")

    def cond_block(cmp, body):
        lab[0] += 1
        n = lab[0]
        cx.e(cmp)
        cx.e(f"s_cbranch_scc1 L_skip_{n}")
        body()
        cx.e(f"L_skip_{n}:")

    def softmax(st):
        e = cx.e
        e.c("softmax over the 1024 keys of each query row")
        if clear_pos == "sm":
            clear_stores()
        e("s_nop 7")
        score_post(15)
        st.sprinkle()
        e(f"ds_write_b32 v{V_RW}, v{V_M}")
        e("s_waitcnt lgkmcnt(0)")
        e("s_barrier")
        for i in range(4):
            e(f"ds_read_b128 v[{V_RD+4*i}:{V_RD+4*i+3}], v{V_RR} offset:{16*i}")
        def counted():
            e.c("all four waves' inbox slots are emptied: count this workgroup")
            e(f"v_mov_b32 v{V_TK}, 1")
            e.vmop(f"buffer_atomic_add v{V_TK}, v{V_DO}, s[{R_DBG}:{R_DBG+3}], s{S_CO} offen sc1", "cleared")
        e("s_waitcnt lgkmcnt(0)")
        for i in range(8):
            e(f"v_max3_f32 v{V_M}, v{V_M}, v{V_RD+2*i}, v{V_RD+2*i+1}")
        e(f"v_mul_f32 v{V_M}, s{S_L2E}, v{V_M}")
        st.sprinkle()
        l0, l1 = T + 2, T + 3
        for r in range(64):
            e(f"v_fma_f32 v{V_S+r}, v{V_S+r}, s{S_L2E}, -v{V_M}")
        st.sprinkle()
        for r in range(64):
            e(f"v_exp_f32 v{V_S+r}, v{V_S+r}")
            if r == 31:
                st.sprinkle()
        st.sprinkle()
        e(f"v_add_f32 v{l0}, v{V_S}, v{V_S+1}")
        e(f"v_add_f32 v{l1}, v{V_S+2}, v{V_S+3}")
        for r in range(4, 64, 2):
            e(f"v_add_f32 v{l0}, v{l0}, v{V_S+r}")
            e(f"v_add_f32 v{l1}, v{l1}, v{V_S+r+1}")
        e(f"v_add_f32 v{l0}, v{l0}, v{l1}")
        e(f"ds_write_b32 v{V_RW}, v{l0} offset:{RSUM-RMAX}")
        e.wait_vm("clr")
        e("s_waitcnt lgkmcnt(0)")
        e("s_barrier")

        for i in range(4):
            e(f"ds_read_b128 v[{V_RD+4*i}:{V_RD+4*i+3}], v{V_RR} offset:{RSUM-RMAX+16*i}")
        st.sprinkle()
        e("s_waitcnt lgkmcnt(0)")
        for i in range(8):
            e(f"v_add_f32 v{V_RD+i}, v{V_RD+i}, v{V_RD+8+i}")
        for i in range(4):
            e(f"v_add_f32 v{V_RD+i}, v{V_RD+i}, v{V_RD+4+i}")
        e(f"v_add_f32 v{V_RD}, v{V_RD}, v{V_RD+1}")
        e(f"v_add_f32 v{V_RD+2}, v{V_RD+2}, v{V_RD+3}")
        e(f"v_add_f32 v{V_RD}, v{V_RD}, v{V_RD+2}")
        e(f"v_rcp_f32 v{l0}, v{V_RD}")
        e("s_nop 0")
        for r in range(64):
            e(f"v_mul_f32 v{V_S+r}, v{l0}, v{V_S+r}")
        st.sprinkle()
        for r in range(32):
            e(f"v_cvt_pk_bf16_f32 v{V_P+r}, v{V_S+2*r}, v{V_S+2*r+1}")
        e("s_nop 1")

    def consume(st, tl):
        e = cx.e
        kind, t = tl
        sl = st.slot[tl]
        tr_begin()
        if kind == "K":
            for j in range(6):
                e(f"ds_read_b128 v[{V_RD+4*j}:{V_RD+4*j+3}], v{V_KA + (j & 1)} offset:{sl*SLOT + 128*(j >> 1)}")
            if t > 0:
                e("s_nop 1")
                score_post(t - 1)
            e("s_waitcnt lgkmcnt(0)")
            tr_end(f"K{t}")
            s = V_S + 4 * t
            for j in range(6):
                cc = "0" if j == 0 else f"v[{s}:{s+3}]"
                e(f"v_mfma_f32_16x16x32_bf16 v[{s}:{s+3}], v[{V_RD+4*j}:{V_RD+4*j+3}], v[{V_QB+4*j}:{V_QB+4*j+3}], {cc}")
            st.release(tl, nfl)
            if t == 15:
                softmax(st)
                tr("sm")
                dt("sm")
        elif kind == "V":
            tr_reads(sl)
            e("s_waitcnt lgkmcnt(0)")
            tr_end(f"V{t}")
            if t == 15:
                dt("V15")
            pv_mfma(V_P + 2 * t, t == 0)
            st.release(tl, nfl)
        elif kind == "Q":
            tr_reads(sl)
            e("s_waitcnt lgkmcnt(0)")
            tr_end(f"Q{t}")
            if t == 0:
                dt("Q0")
            st.busy.discard(sl)
            st.top_up(nflq if t < 8 else nflt)
            pv_mfma(V_XR + 2 * t, t == 0)
            if t == 9 and clear_pos == "q":
                clear_setup()
                clear_stores()
        else:
            j, half = t >> 1, t & 1
            for nt in range(10):
                a = (j * 10 + nt) * 4 + 2 * half
                e(f"ds_read_b64_tr_b16 a[{a}:{a+1}], v{V_WA} offset:{sl*SLOT + 32*nt}")
            e("s_waitcnt lgkmcnt(0)")
            tr_end(f"O{t & ~1}")
            st.release(tl, nfl)

    def clear_stores(track=True):
        e = cx.e
        e.c("empty this wave's inbox slots")
        for m in range(3):
            if not noclear:
                op = f"buffer_store_dwordx4 v[{V_XR}:{V_XR+3}], v{V_ST if m < 2 else V_ST2}, s[{R_IN}:{R_IN+3}], s{S_TP+m} offen {f_clr}"
                if track:
                    e.vmop(op, "clr")
                else:
                    e(op)
    def clear_setup():
        e = cx.e
        for m in range(3):
            e(f"s_mov_b32 s{S_TP+m}, {4*8192*m}")
        e.c("head 0 of each batch publishes this launch's tag in d_debug")
        e(f"s_or_b32 s{S_T0}, s{S_NC}, 1")
        e(f"v_mov_b32 v{V_TK}, s{S_T0}")
        e.vmop(f"buffer_store_dword v{V_TK}, v{V_DO}, s[{R_DBG}:{R_DBG+3}], s{S_CO} offen sc1", "tagst")
        e.c("descriptors of the final reduction")
        e(f"s_mul_i32 s{S_T0}, s{S_B}, 40")
        e(f"s_add_u32 s{S_T0}, s{S_T0}, s{S_CT}")
        e(f"s_lshl_b32 s{S_T0}, s{S_T0}, 13")
        srd(e, R_RD, S_WS, S_T0, 8192)
        e(f"s_lshl_b32 s{S_T0}, s{S_B}, 8")
        e(f"s_add_u32 s{S_T0}, s{S_T0}, {HINT}")
        srd(e, R_HT, S_WS, S_T0, 4)
        e(f"s_mul_i32 s{S_T0}, s{S_B}, 5120")
        srd(e, R_OUT, S_OUT, S_T0, 5120)
        e(f"v_lshlrev_b32 v{V_XR+5}, 4, v{V_L}")
        e(f"v_add_u32 v{V_XR+6}, 4096, v{V_XR+5}")
        e.c("output byte offset: row s = lane&3, column 16*tile + 4*((lane>>2)&3) + {0,2,1,3}[lane>>4]")
        e(f"v_and_b32 v{V_XR+7}, 3, v{V_L}")
        e(f"v_mul_u32_u24 v{V_XR+7}, 1280, v{V_XR+7}")
        e(f"v_and_b32 v{V_XR+8}, 12, v{V_L}")
        e(f"v_lshl_add_u32 v{V_XR+7}, v{V_XR+8}, 1, v{V_XR+7}")
        e(f"v_bfe_u32 v{V_XR+8}, v{V_L}, 4, 1")
        e(f"v_lshl_add_u32 v{V_XR+7}, v{V_XR+8}, 2, v{V_XR+7}")
        e(f"v_lshrrev_b32 v{V_XR+8}, 5, v{V_L}")
        e(f"v_lshl_add_u32 v{V_XR+7}, v{V_XR+8}, 1, v{V_XR+7}")
        e(f"s_lshl_b32 s{S_T0}, s{S_CT}, 5")
        e(f"v_add_u32 v{V_XR+7}, s{S_T0}, v{V_XR+7}")
        if hint:
            def z():
                e(f"v_mov_b32 v{V_XR+4}, 0")
                e("s_mov_b64 exec, 1")
                e(f"buffer_store_dword v{V_XR+4}, off, s[{R_HT}:{R_HT+3}], 0 sc1")
                e("s_mov_b64 exec, -1")
            cond_block(f"s_cmp_lg_u32 s{S_CT}, 0", z)

    MERGE = 6
    def group(kind):
        NQ = 10 if not skipq else skipq
        if kind == "A":
            order = [("Q", p) for p in range(NQ)] + seq
            slots = dict(main_slots)
            slots.update({("Q", p): (p - 10) % NSLOT for p in range(10)})
            if skipq:
                slots[("Q", 0)] = 5
        else:
            nq = NSLOT - nb
            order = [("Q", p) for p in range(nq0)] + seq[:nb] + [("Q", p) for p in range(nq0, 10)] + seq[nb:]
            slots = dict(main_slots)
            slots.update({("Q", p): nb + (p - (10 - nq)) % nq for p in range(10)})
        st = Stream(order, slots)
        st.next = 6
        st.busy.add(slots[("Q", 0)])
        cx.e.vm = list(first_vm)
        st.top_up(nflq)
        late_setup()
        if touch:
            e_ = cx.e
            e_.c("first touch of the regions used later")
            e_(f"s_mul_i32 s{S_T0}, s{S_B}, 5120")
            srd(e_, R_OUT, S_OUT, S_T0, 5120)
            e_("s_mov_b64 exec, 1")
            for bit, r in enumerate((R_V, R_WO, R_IN, R_DBG, R_OUT)):
                if touch >> bit & 1:
                    e_.vmop(f"buffer_load_dword v{V_P}, off, s[{r}:{r+3}], 0", "tch")
            e_("s_mov_b64 exec, -1")
        xreads()
        for p in range(NQ):
            st.wait_tile(("Q", p), nflq)
            consume(st, ("Q", p))
        reduce_partials(f"L_qred_{kind}", st)
        for j in range(6):
            cx.e(f"ds_read_b128 v[{V_QB+4*j}:{V_QB+4*j+3}], v{V_BR} offset:{64*j}")
        cx.e(f"v_mov_b32 v{V_M}, 0xff800000")
        st.sprinkle()
        cx.e("s_waitcnt lgkmcnt(0)")
        tr("qrdy")
        dt("qrdy")
        for pos in range(MERGE):
            tl = seq[pos]
            cx.e.c(f"consume {tl[0]}{tl[1]}")
            st.wait_tile(tl, nfl)
            consume(st, tl)
            if pos == 0 and clear_pos != "q":
                clear_setup()

        return st

    e.c("first wq tile and the x operand, common to both start orders")
    q0a = (0 - 10) % NSLOT if not skipq else 5
    q0b = nb + (0 - (10 - (NSLOT - nb))) % (NSLOT - nb)
    if stagger and q0a != q0b:
        e(f"s_mov_b32 s{S_T0}, {q0a*SLOT}")
        e(f"s_bitcmp1_b32 s{S_B}, 0")
        e(f"s_cmov_b32 s{S_T0}, {q0b*SLOT}")
        e(f"s_add_u32 s{S_SPIN}, s{S_RING}, s{S_T0}")
    else:
        e(f"s_add_u32 s{S_SPIN}, s{S_RING}, {q0a*SLOT}")
    xloads()
    e(f"s_mul_i32 s{S_OFF}, s{S_TP}, {16*12288}")
    e(f"s_add_u32 s{S_OFF}, s{S_OFF}, s{S_QW}")
    for i in range(6):
        e(f"s_add_u32 m0, s{S_SPIN}, {i*1024}")
        e("s_nop 0")
        e.vmop(f"buffer_load_dwordx4 v{V_WQ+i}, s[{R_WQ}:{R_WQ+3}], s{S_OFF} offen {f_wq if f_wq0 is None else f_wq0} lds", (("Q", 0), i))
    kv_srds()
    first_vm = list(e.vm)
    if stagger:
        e(f"s_bitcmp1_b32 s{S_B}, 0")
        e("s_cbranch_scc1 L_grp_b")
        head = cx.e
        cx.e = ea = E()
        sa = group("A")
        cx.e = eb = E()
        sb = group("B")
        X = max(sa.next, sb.next)
        for st, em in ((sa, ea), (sb, eb)):
            cx.e = em
            while st.next < X:
                st.gated(nfl)
        assert sa.busy == sb.busy and sa.flat[X:] == sb.flat[X:]
        for em in (ea, eb):
            if "tagst" in em.vm:
                em.wait_vm("tagst")
        n = max(len(ea.vm), len(eb.vm))
        assert sa.flat[X - n:X] == sb.flat[X - n:X]
        e = cx.e = head
        e.lines += ea.lines
        e("s_branch L_merge")
        e("L_grp_b:")
        e.lines += eb.lines
        e("L_merge:")
        e.vm = list(sa.flat[X - n:X])
        st = sa
    else:
        st = group("A")
        e = cx.e

    st.dyn = True
    if split is not None:
        e(f"s_bfe_u32 s{S_MODE}, s2, {0x10000 | split:#x}")
    else:
        e(f"s_lshr_b32 s{S_MODE}, s2, 3")
        e(f"s_add_u32 s{S_MODE}, s{S_MODE}, s2")
        e(f"s_and_b32 s{S_MODE}, s{S_MODE}, 7")
    hooks = {}
    def h_tagload():
        e.vmop(f"buffer_load_dword v{V_TK}, off, s[{R_DBG}:{R_DBG+3}], s{S_CO} sc1", "tagld")
        hooks[seq.index(st.next_tile())] = h_tagcheck
    def h_tagcheck():
        assert "tagld" not in e.vm
        e(f"s_mov_b32 s{S_SPIN}, {spin_max}")
        e("L_spin:")
        e(f"v_readfirstlane_b32 s{S_T0}, v{V_TK}")
        e(f"s_sub_u32 s{S_SPIN}, s{S_SPIN}, 1")
        e("s_cbranch_scc1 L_spin_done")
        e(f"s_cmp_lg_u32 s{S_T0}, 0")
        e("s_cbranch_scc1 L_spin_done")
        e(f"buffer_load_dword v{V_TK}, off, s[{R_DBG}:{R_DBG+3}], s{S_CO} sc1")
        e("s_waitcnt vmcnt(0)")
        e("s_branch L_spin")
        e("L_spin_done:")
        for r in range(4):
            e(f"s_bfe_u32 s{S_TG+r}, s{S_T0}, {0x80000 + 8*r:#x}")
    hooks[nonce_pos] = h_tagload
    for pos in range(MERGE, len(seq)):
        tl = seq[pos]
        if pos == align_at:
            e.c("the rest of the kernel sits in one 4 KiB code page")
            e("s_branch L_tailpage")
            e(".p2align 12")
            e("L_tailpage:")
        e.c(f"consume {tl[0]}{tl[1]}")
        st.wait_tile(tl, nfl)
        if pos in hooks:
            hooks.pop(pos)()
        consume(st, tl)

    assert st.next == len(st.flat) and not hooks, hooks

    e.c("output projection of this head")
    reduce_partials("L_ored", None)
    tr_begin()
    for j in range(6):
        e(f"ds_read2_b64 v[{V_QB+4*j}:{V_QB+4*j+3}], v{V_BO} offset0:{8*j} offset1:{8*j+4}")
    e(f"v_mov_b32 v{V_M}, 0xffffff00")
    if trace:
        e("s_memtime s[98:99]" if fine else "s_memtime s[94:95]")
    e("s_waitcnt lgkmcnt(0)")
    tr_end("obr")
    def out_mfma(nt, j):
        d = V_S + 4 * nt
        a = (j * 10 + nt) * 4
        cc = "0" if j == 0 else f"v[{d}:{d+3}]"
        e(f"v_mfma_f32_16x16x32_bf16 v[{d}:{d+3}], a[{a}:{a+3}], v[{V_QB+4*j}:{V_QB+4*j+3}], {cc}")
    def D_(nt):
        return V_S + 4 * nt
    ready = {}
    for nt in range(10):
        m, c = nt >> 2, nt & 3
        d = D_(4 * m)
        ops = []
        if c > 0:
            ops = [f"v_mov_b32_dpp v{d+r}, v{D_(nt)+r} quad_perm:[0,1,2,3] row_mask:0xf bank_mask:{1 << c:#x}" for r in range(4)]
        if c == 3 or nt == 9:
            ops += [f"v_and_or_b32 v{d+r}, v{d+r}, v{V_M}, s{S_TG+r}" for r in range(4)]
            ops.append(f"buffer_store_dwordx4 v[{d}:{d+3}], v{V_ST if m < 2 else V_ST2}, s[{R_IN}:{R_IN+3}], s{S_TP+m} offen {f_st}")
        ready[nt] = ops
    pend = []
    since = {}
    def flush_one():
        if pend:
            e(pend.pop(0))
            for k_ in since:
                since[k_] += 1
    for nt in range(10):
        for j in range(6):
            out_mfma(nt, j)
            for k_ in since:
                since[k_] += 1
            if j == 5:
                since[nt] = 0
                if fine:
                    e(f"s_memtime s[{78+2*nt}:{79+2*nt}]")
            if fine and nt == 0 and j == 0:
                e(f"s_memtime s[76:77]")
            for k_ in sorted(ready):
                if since.get(k_, -1) >= 8:
                    pend += ready.pop(k_)
            flush_one()
    while pend or len(ready) > 1:
        for k_ in sorted(ready):
            if k_ < 9 and since[k_] >= 8:
                pend += ready.pop(k_)
        if pend:
            flush_one()
        else:
            e("s_nop 0")
            for k_ in since:
                since[k_] += 1
    if since[9] < 8:
        e(f"s_nop {7 - since[9]}")
    for op in ready.pop(9):
        e(op)
    assert not ready
    if trace:
        e("s_memtime s[92:93]")
    tr("sent")
    dt("sent")
    if trace:
        e("s_sub_u32 s92, s92, s94")
        e(f"v_writelane_b32 v{V_TR}, s92, 62")
        if fine:
            for i in range(11):
                e(f"s_sub_u32 s{76+2*i}, s{76+2*i}, s98")
                e(f"v_writelane_b32 v{V_TR}, s{76+2*i}, {1+i}")
        else:
            e("s_sub_u32 s94, s94, s96")
            e(f"v_writelane_b32 v{V_TR}, s94, 61")
    e(f"s_cmp_ge_u32 s{S_CT}, 40")
    e("s_cbranch_scc1 L_fin")
    e.c("reduce one 16-column tile over the 32 heads")
    e(f"s_mov_b32 s{S_SPIN}, {spin_max}")
    if hint:
        e("L_hint:")
        e(f"buffer_load_dword v{V_TK}, off, s[{R_HT}:{R_HT+3}], 0 sc1")
        e(f"s_sub_u32 s{S_SPIN}, s{S_SPIN}, 1")
        e("s_cbranch_scc1 L_poll")
        e("s_waitcnt vmcnt(0)")
        e(f"v_readfirstlane_b32 s{S_T0}, v{V_TK}")
        e("s_nop 0")
        e(f"s_cmp_lt_u32 s{S_T0}, 32")
        e("s_cbranch_scc1 L_hint")
        tr("hint")
    D = V_S
    A = V_RD
    e("L_poll:")
    for i in range(8):
        e(f"buffer_load_dwordx4 v[{D+4*i}:{D+4*i+3}], v{V_XR + 5 + (i >> 2)}, s[{R_RD}:{R_RD+3}], 0 offen offset:{1024*(i & 3)} sc1")
    for i in range(8):
        e(f"s_waitcnt vmcnt({7-i})")
        d = D + 4 * i
        for r in range(4):
            e(f"v_xor_b32 v{d+r}, s{S_TG+r}, v{d+r}")
        if i == 0:
            e(f"v_or3_b32 v{A+4}, v{d}, v{d+1}, v{d+2}")
            e(f"v_or_b32 v{A+4}, v{A+4}, v{d+3}")
        else:
            e(f"v_or3_b32 v{A+4}, v{A+4}, v{d}, v{d+1}")
            e(f"v_or3_b32 v{A+4}, v{A+4}, v{d+2}, v{d+3}")
            for r in range(4):
                e(f"v_add_f32 v{A+r}, v{A+r if i > 1 else D+r}, v{d+r}")
    e(f"v_and_b32 v{A+4}, 0xff, v{A+4}")
    e(f"v_cmp_ne_u32 vcc, 0, v{A+4}")
    e(f"s_sub_u32 s{S_SPIN}, s{S_SPIN}, 1")
    e("s_cbranch_scc1 L_ready")
    e("s_cbranch_vccnz L_poll")
    e("L_ready:")
    e(f"v_permlane32_swap_b32 v{A}, v{A+1}")
    e(f"v_permlane32_swap_b32 v{A+2}, v{A+3}")
    e("s_nop 0")
    e(f"v_add_f32 v{A}, v{A}, v{A+1}")
    e(f"v_add_f32 v{A+2}, v{A+2}, v{A+3}")
    e("s_nop 1")
    e(f"v_permlane16_swap_b32 v{A}, v{A+2}")
    e("s_nop 0")
    e(f"v_add_f32 v{A}, v{A}, v{A+2}")
    e(f"v_cvt_pk_bf16_f32 v{A}, v{A}, v{A}")
    e(f"buffer_store_short v{A}, v{V_XR+7}, s[{R_OUT}:{R_OUT+3}], 0 offen")
    e("L_fin:")
    if isinstance(dbgtime, str):
        e("s_waitcnt vmcnt(0)")
        dt("end")
        e("s_waitcnt lgkmcnt(0)")
        e(f"s_sub_u32 s94, s{80+2*DT[dbgtime]}, s80")
        e("s_lshl_b32 s94, s94, 1")
        e("s_add_u32 s94, s94, s90")
        e("L_stretch:")
        e("s_memrealtime s[96:97]")
        e("s_waitcnt lgkmcnt(0)")
        e("s_sub_u32 s96, s96, s94")
        e("s_cmp_lt_i32 s96, 0")
        e("s_cbranch_scc1 L_stretch")
    elif dbgtime:
        e("s_waitcnt vmcnt(0)")
        dt("end")
        e("s_waitcnt lgkmcnt(0)")
        e("s_not_b32 s94, s80")
        e("s_mov_b64 exec, 1")
        for i, r in enumerate((94, 80, 92, 82, 84, 86, 88, 90)):
            e(f"v_mov_b32 v{T}, s{r}")
            e(f"buffer_atomic_umax v{T}, off, s[{R_DBG}:{R_DBG+3}], 0 offset:{32+4*i} sc1")
            e("s_nop 1")
        e("s_mov_b64 exec, -1")
    if trace:
        e("s_waitcnt vmcnt(0)")
        tr("end")
        e(f"s_getreg_b32 s{S_T0}, hwreg(HW_REG_XCC_ID)")
        e(f"v_writelane_b32 v{V_TR}, s{S_T0}, 63")
        e(f"s_getreg_b32 s{S_T0}, hwreg(HW_REG_HW_ID)")
        e(f"v_writelane_b32 v{V_TR}, s{S_T0}, 60")
        e(f"s_lshl_b32 s{S_T0}, s2, 2")
        e(f"s_add_u32 s{S_T0}, s{S_T0}, s{S_W}")
        e(f"s_lshl_b32 s{S_T0}, s{S_T0}, 8")
        e(f"s_add_u32 s{S_T0}, s{S_T0}, 0x2000000")
        srd(e, R_OUT, S_WS, S_T0, 256)
        e(f"v_lshlrev_b32 v{T+4}, 2, v{V_L}")
        e(f"buffer_store_dword v{V_TR}, v{T+4}, s[{R_OUT}:{R_OUT+3}], 0 offen")
        assert len(TRACE_NAMES) <= 60, len(TRACE_NAMES)
    e("L_end:")
    e("s_endpgm")

    return f"""; Fused q-projection + sliding-window attention + output projection, 256 workgroups = (batch, head).
; @launch grid=(256,1,1) block=(256,1,1) lds={LDS_BYTES}
.amdgcn_target "amdgcn-amd-amdhsa--gfx950"
.text
.globl {KN}
.p2align 12
.p2align 8
.type {KN},@function
{e.text()}
.section .rodata,"a"
.p2align 6
.amdhsa_kernel {KN}
  .amdhsa_next_free_vgpr 496
  .amdhsa_next_free_sgpr 102
  .amdhsa_accum_offset 256
  .amdhsa_group_segment_fixed_size 0
  .amdhsa_kernarg_size 64
  .amdhsa_user_sgpr_count 2
  .amdhsa_user_sgpr_kernarg_segment_ptr 1
  .amdhsa_system_sgpr_workgroup_id_x 1
.end_amdhsa_kernel
"""

if __name__ == "__main__":
    kw = eval("dict(" + (sys.argv[1] if len(sys.argv) > 1 else "") + ")")
    sys.stdout.write(gen(**kw))
```

```python
import struct, sys

KN = "standalone__sliding_block_cached__sampling_kernel"
TRACE_NAMES = []

def f32(x):
    return struct.unpack("<I", struct.pack("<f", x))[0]

class E:
    def __init__(self):
        self.lines = []
        self.vm = []
    def __call__(self, s=""):
        self.lines.append("    " + s if s and not s.endswith(":") else s)
    def c(self, s):
        self.lines.append("    ; " + s)
    def vmop(self, s, tag):
        self(s)
        self.vm.append(tag)
    def wait_vm(self, tag):
        idx = max([i for i, t in enumerate(self.vm) if t == tag], default=-1)
        if idx < 0:
            return
        n = len(self.vm) - 1 - idx
        self(f"s_waitcnt vmcnt({min(n, 63)})")
        self.vm = self.vm[idx + 1:]
    def text(self):
        return "\n".join(self.lines) + "\n"

SLOT = 6144
NSLOT = 6
RING = SLOT * NSLOT
MISC = 4 * RING
PART = MISC
PROW = 784
PWAVE = 4 * PROW
BROW = 400
QBF = MISC + 4 * PWAVE
RMAX = QBF + 4 * BROW
RSUM = RMAX + 256
LDS_BYTES = RSUM + 256

INBOX_B = 40 * 8192

S_W = 3
S_X, S_K, S_V, S_WQ, S_WO, S_OUT, S_DBG, S_WS = 4, 6, 8, 10, 12, 14, 16, 18
R_K, R_V, R_WQ, R_WO, R_X, R_IN, R_OUT, R_DBG = 20, 24, 28, 32, 36, 40, 44, 48
R_RD = 28
S_B, S_H, S_RING, S_OFF, S_T0, S_T1 = 52, 53, 54, 55, 56, 57
S_KW = 58
S_QW = 59
S_TP = 60
S_TG = 64
S_SCALE, S_L2E = 70, 71
S_CT = 72
S_SPIN = 73
S_XL = 74
S_G = 75
S_NC = 76
S_CO = 78
S_TR = 100

V_L = 1
V_KV = 2
V_WQ = 8
V_WO = 14
V_KA = 19
V_VA = 21
V_WA = 25
V_PW = 26
V_PR = 27
V_BW = 28
V_BR = 29
V_BO = 30
V_RW = 31
V_RR = 32
V_M = 33
V_T = 34
V_ST = 39
V_RD = 40
V_ACC = 64
V_QB = 112
V_S = 136
V_P = 200
V_XR = 232
V_IA = 232
V_OA = 234
V_UW = 235
V_CV = 236
V_CA = 238
V_EW = 242
V_ER = 243
V_TK = 252
V_DO = 253
V_TR = 254
V_XO = 255
V_ST2 = 255

def srd(e, r, base, off, nbytes):
    if off is None:
        e(f"s_mov_b32 s{r}, s{base}")
        e(f"s_and_b32 s{r+1}, s{base+1}, 0xffff")
    else:
        e(f"s_add_u32 s{r}, s{base}, s{off}")
        e(f"s_addc_u32 s{r+1}, s{base+1}, 0")
        e(f"s_and_b32 s{r+1}, s{r+1}, 0xffff")
    e(f"s_mov_b32 s{r+2}, {nbytes}")
    e(f"s_mov_b32 s{r+3}, 0x20000")

def nloads(tile):
    return 5 if tile[0] == "O" else 6

def gen(groups=((0, 0, 10), (3, 0, 2), (7, 2, 2), (10, 2, 1)), gmap=(0, 1, 2, 3, 0, 1, 2, 3), rots=(0, 2, 3, 4, 5, 7, 8, 9),
        nfl=11, nflq=11, nflt=10, backlog=2, pbacklog=3, wo_at=(13, 14, 16, 17, 19, 20, 22, 23, 25, 26, 28, 29), f_kv="nt", f_wq="", f_wo="",
        krot=(2, 8), ncol=6, trace=0, spin_max=20000, tail_from=2, qs1=3, qs2=3, tag_pos=None, ss=1, dbgtime=None):
    del TRACE_NAMES[:]
    T = V_T
    G, SS = T, T + 1

    class Ctx:
        pass
    cx = Ctx()
    cx.e = E()

    def tr_begin():
        if trace:
            cx.e(f"s_memrealtime s[{S_TR}:{S_TR+1}]")
    def tr_end(name):
        if trace:
            if name not in TRACE_NAMES:
                TRACE_NAMES.append(name)
            cx.e(f"v_writelane_b32 v{V_TR}, s{S_TR}, {TRACE_NAMES.index(name)}")
    def tr(name):
        if trace:
            tr_begin()
            cx.e("s_waitcnt lgkmcnt(0)")
            tr_end(name)

    def nibble(dst, table):
        packed = sum(r << (4 * i) for i, r in enumerate(table))
        cx.e(f"s_lshr_b32 s{dst}, {packed:#x}, s{S_T1}")
        cx.e(f"s_and_b32 s{dst}, s{dst}, 15")

    nplain = 16 - ncol
    kv = [("K", t) for t in range(16)] + [("V", t) for t in range(nplain)]
    kv += [("C", (m, t0)) for m in range(3) for t0 in range(nplain, 16, 3)]
    if wo_at is None:
        wo_at = list(range(7, 31, 2))
    assert len(wo_at) == 12
    seq = []
    wo_i = 0
    for n, tl in enumerate(kv):
        seq.append(tl)
        while wo_i < 12 and wo_at[wo_i] == n + 1:
            seq.append(("O", wo_i)); wo_i += 1
    assert wo_i == 12
    main_slots = {tl: n % NSLOT for n, tl in enumerate(seq)}

    def group_plan(npre, npost, nq0):
        nring = min(npre, 4)
        nq = NSLOT - nring
        nq0 = min(nq0, 10)
        assert npre == 0 or nq0 <= nq
        order = [("Q", p) for p in range(nq0)] + seq[:npre] + [("Q", p) for p in range(nq0, 10)] + seq[npre:]
        slots = dict(main_slots)
        slots.update({("Q", p): nring + (p - (10 - nq)) % nq for p in range(10)})
        parked = seq[nring:npre + npost] if npre > nring or npost else []
        assert all(t[0] == "K" for t in seq[:npre + npost])
        park = {tl: 240 - 24 * (i + 1) for i, tl in enumerate(parked)}
        return order, slots, park
    plans = [group_plan(*g) for g in groups]
    MERGE = max(6, max(g[0] + g[1] for g in groups) + 1)

    e = cx.e
    e(f"{KN}:")
    e("s_cmp_ge_u32 s2, 256")
    e("s_cbranch_scc1 L_end")
    tr_begin()
    if trace:
        e("s_memtime s[96:97]")
    e(f"s_memrealtime s[{S_NC}:{S_NC+1}]")
    e("s_load_dwordx16 s[4:19], s[0:1], 0")
    e(f"v_lshrrev_b32 v{T}, 6, v0")
    e(f"v_and_b32 v{V_L}, 63, v0")
    e(f"v_readfirstlane_b32 s{S_W}, v{T}")
    if trace:
        e(f"v_mov_b32 v{V_TR}, 0")
    e.c("head = 4*(wg&7) + ((wg>>3)&3), batch = wg>>5")
    e(f"s_and_b32 s{S_H}, s2, 7")
    e(f"s_lshl_b32 s{S_H}, s{S_H}, 2")
    e(f"s_bfe_u32 s{S_T0}, s2, 0x20003")
    e(f"s_add_u32 s{S_H}, s{S_H}, s{S_T0}")
    e(f"s_lshr_b32 s{S_B}, s2, 5")
    e(f"s_mul_i32 s{S_RING}, s{S_W}, {RING}")
    e(f"s_mul_i32 s{S_QW}, s{S_W}, {160*12288}")
    e.c("first key tile of this wave, rotated per workgroup")
    e(f"s_lshr_b32 s{S_T0}, s2, 3")
    e(f"s_and_b32 s{S_T1}, s2, 7")
    e(f"s_mul_i32 s{S_T0}, s{S_T0}, {krot[0]}")
    e(f"s_mul_i32 s{S_T1}, s{S_T1}, {krot[1]}")
    e(f"s_add_u32 s{S_T0}, s{S_T0}, s{S_T1}")
    e(f"s_add_u32 s{S_KW}, s{S_T0}, s{S_W}")
    e.c("per-batch start order, first wq tile and its LDS slot")
    e(f"s_lshl_b32 s{S_T1}, s{S_B}, 2")
    nibble(S_G, gmap)
    nibble(S_TP, rots)
    nibble(S_SPIN, [plans[g][1][("Q", 0)] for g in gmap])
    e(f"s_mul_i32 s{S_SPIN}, s{S_SPIN}, {SLOT}")
    e(f"s_add_u32 s{S_SPIN}, s{S_SPIN}, s{S_RING}")
    for p in range(1, 10):
        e(f"s_add_u32 s{S_TP+p}, s{S_TP+p-1}, 1")
        e(f"s_cmp_eq_u32 s{S_TP+p}, 10")
        e(f"s_cselect_b32 s{S_TP+p}, 0, s{S_TP+p}")
    e.c("DMA source offsets (16-byte chunks XOR-swizzled inside each 128-byte line)")
    e(f"v_lshrrev_b32 v{T}, 3, v{V_L}")
    e(f"v_and_b32 v{T+1}, 7, v{V_L}")
    for i in range(6):
        e(f"v_add_u32 v{T+2}, {8*i}, v{T}")
        e(f"v_mul_u32_u24 v{T+3}, 43, v{T+2}")
        e(f"v_lshrrev_b32 v{T+3}, 7, v{T+3}")
        e(f"v_and_b32 v{T+4}, 6, v{T+3}")
        e(f"v_xor_b32 v{T+4}, v{T+4}, v{T+1}")
        e(f"v_lshlrev_b32 v{T+4}, 4, v{T+4}")
        e(f"v_lshl_add_u32 v{V_KV+i}, v{T+2}, 7, v{T+4}")
        e(f"v_mul_u32_u24 v{T+3}, {12288-384}, v{T+3}")
        e(f"v_add_u32 v{V_WQ+i}, v{V_KV+i}, v{T+3}")
    e(f"v_lshrrev_b32 v{G}, 4, v{V_L}")
    e(f"v_and_b32 v{SS}, 3, v{V_L}")
    e.c("x staging: 80 chunks of 16 bytes, LDS image [row][320 bytes]")
    e(f"v_mul_u32_u24 v{T+2}, 205, v{V_L}")
    e(f"v_lshrrev_b32 v{T+2}, 12, v{T+2}")
    e(f"v_mul_u32_u24 v{T+2}, {1280-320}, v{T+2}")
    e(f"v_lshl_add_u32 v{T+2}, v{V_L}, 4, v{T+2}")
    e(f"s_mul_i32 s{S_T0}, s{S_W}, 320")
    e(f"v_add_u32 v{V_XO}, s{S_T0}, v{T+2}")
    e(f"v_lshlrev_b32 v{T+2}, 4, v{V_L}")
    e(f"v_add_u32 v{T+2}, {3*1280 + 64}, v{T+2}")
    e(f"v_add_u32 v{V_TK}, s{S_T0}, v{T+2}")
    e(f"s_mul_i32 s{S_XL}, s{S_W}, {PWAVE}")
    e(f"s_add_u32 s{S_XL}, s{S_XL}, {PART}")
    e(f"s_mul_i32 s{S_OFF}, s{S_TP}, {16*12288}")
    e(f"s_add_u32 s{S_OFF}, s{S_OFF}, s{S_QW}")
    e("s_waitcnt lgkmcnt(0)")
    tr_end("start")
    e.c("first wq tile and the x operand")
    e(f"s_mul_i32 s{S_T0}, s{S_B}, 5120")
    srd(e, R_X, S_X, S_T0, 5120)
    e(f"s_mov_b32 m0, s{S_XL}")
    e("s_nop 0")
    e.vmop(f"buffer_load_dwordx4 v{V_XO}, s[{R_X}:{R_X+3}], 0 offen lds", ("x", 0))
    e(f"s_add_u32 m0, s{S_XL}, 1024")
    e("s_mov_b64 exec, 0xffff")
    e.vmop(f"buffer_load_dwordx4 v{V_TK}, s[{R_X}:{R_X+3}], 0 offen lds", ("x", 1))
    e("s_mov_b64 exec, -1")
    e(f"s_mul_i32 s{S_T0}, s{S_H}, 384")
    e(f"s_sub_u32 s{S_T1}, {640*12288}, s{S_T0}")
    srd(e, R_WQ, S_WQ, S_T0, f"s{S_T1}")
    for i in range(6):
        e(f"s_add_u32 m0, s{S_SPIN}, {i*1024}")
        e("s_nop 0")
        e.vmop(f"buffer_load_dwordx4 v{V_WQ+i}, s[{R_WQ}:{R_WQ+3}], s{S_OFF} offen {f_wq} lds", (("Q", 0), i))
    e(f"s_lshl_b32 s{S_T0}, s{S_B}, 5")
    e(f"s_add_u32 s{S_T0}, s{S_T0}, s{S_H}")
    e(f"s_mul_i32 s{S_T0}, s{S_T0}, 1572864")
    e(f"s_add_u32 s{S_T0}, s{S_T0}, {3072*384}")
    srd(e, R_K, S_K, S_T0, 393216)
    srd(e, R_V, S_V, S_T0, 393216)
    first_vm = list(e.vm)

    def key_tile_offset(t, extra=0):
        e = cx.e
        e(f"s_add_u32 s{S_OFF}, s{S_KW}, {4*t}")
        e(f"s_and_b32 s{S_OFF}, s{S_OFF}, 63")
        e(f"s_mul_i32 s{S_OFF}, s{S_OFF}, {SLOT}")
        if extra:
            e(f"s_add_u32 s{S_OFF}, s{S_OFF}, {extra}")

    def issue_one(tile, slot, park, i):
        e = cx.e
        kind, t = tile
        if kind in "KV":
            r, vo, fl = (R_K if kind == "K" else R_V), V_KV + i, f_kv
            if i == 0:
                key_tile_offset(t)
        elif kind == "C":
            r, vo, fl = R_V, V_CV + (i & 1), f_kv
            if i & 1 == 0:
                key_tile_offset(t[1] + (i >> 1), 128 * t[0])
        elif kind == "Q":
            r, vo, fl = R_WQ, V_WQ + i, f_wq
            if i == 0:
                e(f"s_mul_i32 s{S_OFF}, s{S_TP+t}, {16*12288}")
                e(f"s_add_u32 s{S_OFF}, s{S_OFF}, s{S_QW}")
        else:
            r, vo, fl = R_WO, V_WO + i, f_wo
            if i == 0:
                e(f"s_mov_b32 s{S_OFF}, {t*16*1280}")
        if park is not None:
            a = park + 4 * i
            e.vmop(f"buffer_load_dwordx4 a[{a}:{a+3}], v{vo}, s[{r}:{r+3}], s{S_OFF} offen {fl}", (tile, i))
        else:
            e(f"s_add_u32 m0, s{S_RING}, {slot*SLOT + i*1024}")
            e("s_nop 0")
            e.vmop(f"buffer_load_dwordx4 v{vo}, s[{r}:{r+3}], s{S_OFF} offen {fl} lds", (tile, i))

    class Stream:
        def __init__(self, order, slots, park):
            self.flat = [(tl, i) for tl in order for i in range(nloads(tl))]
            self.slot = dict(slots)
            self.park = park
            self.next = 0
            self.busy = set()
        def can_issue(self):
            if self.next >= len(self.flat):
                return False
            tl, i = self.flat[self.next]
            if i > 0 or tl in self.park:
                return True
            if tl[0] != "Q" and any(p not in done for p in self.park) and len(self.busy) >= NSLOT - 1 and seq.index(tl) >= 4:
                return False
            return self.slot[tl] not in self.busy
        def issue_next(self):
            tl, i = self.flat[self.next]
            if i == 0 and tl not in self.park:
                assert self.slot[tl] not in self.busy
                self.busy.add(self.slot[tl])
            issue_one(tl, self.slot[tl], self.park.get(tl), i)
            self.next += 1
        def stage_slot(self, tl):
            later = []
            for t2, i in self.flat[self.next:]:
                if i == 0 and t2 not in self.park and self.slot[t2] not in later:
                    later.append(self.slot[t2])
            free = [s for s in range(NSLOT) if s not in self.busy]
            free.sort(key=lambda s: -(later.index(s) if s in later else 99))
            self.slot[tl] = free[0]
            self.busy.add(free[0])
        def loads(self):
            return [t for t in cx.e.vm if not isinstance(t, str)]
        def gated(self, n):
            vm = self.loads()
            if len(vm) >= n:
                cx.e.wait_vm(vm[len(vm) - n])
            self.issue_next()
        def top_up(self, n):
            while len(self.loads()) < n and self.can_issue():
                self.issue_next()
        def wait_tile(self, tl, n):
            last = (tl, nloads(tl) - 1)
            while self.flat.index(last) >= self.next:
                self.gated(n)
            while last in cx.e.vm:
                vm = self.loads()
                if self.can_issue() and (len(vm) < n or vm.index(last) >= len(vm) - n):
                    if len(vm) < n:
                        self.top_up(n)
                    else:
                        self.gated(n)
                else:
                    cx.e.wait_vm(last)
        def release(self, tl, n):
            self.busy.discard(self.slot[tl])
            if len(self.loads()) < n:
                self.top_up(n)
            else:
                for _ in range(pbacklog if tl in self.park else backlog):
                    if self.can_issue():
                        self.gated(n)
        def sprinkle(self, k=1):
            for _ in range(k):
                if self.can_issue():
                    self.issue_next()
        def next_tile(self):
            tl, i = self.flat[self.next]
            if i > 0:
                tl = self.flat[self.next + nloads(tl) - i][0]
            return tl

    def late_setup():
        e = cx.e
        e.c("remaining address registers and descriptors")
        e(f"s_mov_b32 s{S_SCALE}, {f32(192 ** -0.5):#x}")
        e(f"s_mov_b32 s{S_L2E}, {f32(1.4426950408889634):#x}")
        e(f"s_mul_i32 s{S_T0}, s{S_H}, 245760")
        srd(e, R_WO, S_WO, S_T0, 245760)
        e(f"s_mul_i32 s{S_T0}, s{S_W}, 320")
        for i in range(5):
            e(f"v_add_u32 v{T+2}, {64*i}, v{V_L}")
            e(f"v_mul_u32_u24 v{T+3}, 205, v{T+2}")
            e(f"v_lshrrev_b32 v{T+3}, 12, v{T+3}")
            e(f"v_mul_u32_u24 v{T+3}, {1280-320}, v{T+3}")
            e(f"v_lshl_add_u32 v{T+3}, v{T+2}, 4, v{T+3}")
            e(f"v_add_u32 v{V_WO+i}, s{S_T0}, v{T+3}")
        e.c("K operand read addresses")
        e(f"v_and_b32 v{T+2}, 15, v{V_L}")
        e(f"v_and_b32 v{T+3}, 6, v{T+2}")
        e(f"v_xor_b32 v{T+3}, v{T+3}, v{G}")
        e(f"v_lshlrev_b32 v{T+3}, 4, v{T+3}")
        e(f"v_mul_u32_u24 v{T+2}, 384, v{T+2}")
        e(f"v_add3_u32 v{V_KA}, v{T+2}, v{T+3}, s{S_RING}")
        e(f"v_xor_b32 v{V_KA+1}, 64, v{V_KA}")
        e.c("transposing read addresses: row = lane>>2, column group = lane&3")
        e(f"v_lshrrev_b32 v{T+2}, 2, v{V_L}")
        e(f"v_and_b32 v{T+3}, 6, v{T+2}")
        e(f"v_lshlrev_b32 v{T+3}, 4, v{T+3}")
        e(f"v_lshl_add_u32 v{T+3}, v{SS}, 3, v{T+3}")
        e(f"v_mul_u32_u24 v{T+4}, 384, v{T+2}")
        e(f"v_add3_u32 v{V_VA}, v{T+4}, v{T+3}, s{S_RING}")
        for q in range(1, 4):
            e(f"v_xor_b32 v{V_VA+q}, {32*q}, v{V_VA}")
        e(f"v_mul_u32_u24 v{T+4}, 320, v{T+2}")
        e(f"v_lshl_add_u32 v{T+4}, v{SS}, 3, v{T+4}")
        e(f"v_add_u32 v{V_WA}, s{S_RING}, v{T+4}")
        e.c("cross-wave exchange addresses")
        e(f"v_mul_u32_u24 v{T+2}, {PROW}, v{SS}")
        e(f"v_lshl_add_u32 v{T+2}, v{G}, 4, v{T+2}")
        e(f"v_add_u32 v{V_PW}, s{S_XL}, v{T+2}")
        e(f"v_mul_u32_u24 v{T+3}, 1366, v0")
        e(f"v_lshrrev_b32 v{T+3}, 16, v{T+3}")
        e(f"v_lshlrev_b32 v{T+3}, 4, v{T+3}")
        e(f"v_lshl_add_u32 v{T+2}, v0, 4, v{T+3}")
        e(f"v_add_u32 v{V_PR}, {PART}, v{T+2}")
        e(f"v_lshl_add_u32 v{T+2}, v0, 3, v{T+3}")
        e(f"v_add_u32 v{V_BW}, {QBF}, v{T+2}")
        e(f"v_mul_u32_u24 v{T+2}, {BROW}, v{SS}")
        e(f"v_add_u32 v{T+2}, {QBF}, v{T+2}")
        e(f"v_lshl_add_u32 v{V_BR}, v{G}, 4, v{T+2}")
        e(f"v_lshl_add_u32 v{V_BO}, v{G}, 3, v{T+2}")
        e(f"v_lshlrev_b32 v{T+2}, 6, v{SS}")
        e(f"v_add_u32 v{V_RR}, {RMAX}, v{T+2}")
        e(f"s_lshl_b32 s{S_T0}, s{S_W}, 4")
        e(f"v_lshl_add_u32 v{T+2}, v{G}, 2, v{V_RR}")
        e(f"v_add_u32 v{V_RW}, s{S_T0}, v{T+2}")
        e.c("x operand")
        e(f"v_mul_u32_u24 v{T+2}, 320, v{SS}")
        e(f"v_lshl_add_u32 v{T+2}, v{G}, 3, v{T+2}")
        e(f"v_add_u32 v{T+2}, s{S_XL}, v{T+2}")
        e.wait_vm(("x", 1))
        for p in range(10):
            e(f"v_lshl_add_u32 v{T+3}, s{S_TP+p}, 5, v{T+2}")
            e(f"ds_read_b64 v[{V_XR+2*p}:{V_XR+2*p+1}], v{T+3}")

    def post_q_setup():
        e = cx.e
        e.c("inbox slot of this head: [batch][tile][head][16 lanes x 16 bytes], lane quad c carries tile 4m+c")
        e(f"s_mul_i32 s{S_T0}, s{S_B}, {INBOX_B}")
        e(f"s_lshl_b32 s{S_T1}, s{S_H}, 8")
        e(f"s_add_u32 s{S_T0}, s{S_T0}, s{S_T1}")
        e(f"s_sub_u32 s{S_T1}, {INBOX_B}, s{S_T1}")
        srd(e, R_IN, S_WS, S_T0, f"s{S_T1}")
        e(f"v_lshl_add_u32 v{T+2}, v{G}, 2, v{SS}")
        e(f"v_lshlrev_b32 v{T+2}, 4, v{T+2}")
        e(f"s_mul_i32 s{S_T0}, s{S_W}, {10*8192}")
        e(f"v_add_u32 v{V_ST}, s{S_T0}, v{T+2}")
        e(f"v_and_b32 v{T+2}, 12, v{V_L}")
        e(f"v_lshl_add_u32 v{V_ST}, v{T+2}, 11, v{V_ST}")
        e(f"v_and_b32 v{T+2}, 8, v{V_L}")
        e(f"v_lshl_add_u32 v{V_ST2}, v{T+2}, 24, v{V_ST}")
        for m in range(3):
            e(f"s_mov_b32 s{S_TP+m}, {4*8192*m}")
        e.c("head 0 of each batch publishes this launch's tag in d_debug (lane 0 of wave 3, other lanes out of range)")
        srd(e, R_DBG, S_DBG, None, 256)
        e(f"s_and_b32 s{S_T0}, s{S_B}, 1")
        e(f"s_lshl_b32 s{S_T0}, s{S_T0}, 7")
        e(f"s_lshl_b32 s{S_T1}, s{S_B}, 1")
        e(f"s_and_b32 s{S_T1}, s{S_T1}, 12")
        e(f"s_add_u32 s{S_CO}, s{S_T0}, s{S_T1}")
        e(f"v_xor_b32 v{T+2}, 192, v0")
        e(f"v_or_b32 v{T+2}, s{S_H}, v{T+2}")
        e(f"v_lshlrev_b32 v{V_DO}, 8, v{T+2}")
        e(f"s_or_b32 s{S_T0}, s{S_NC}, 1")
        e(f"v_mov_b32 v{V_TK}, s{S_T0}")
        e.vmop(f"buffer_store_dword v{V_TK}, v{V_DO}, s[{R_DBG}:{R_DBG+3}], s{S_CO} offen sc1", "tagst")
        e.c("tile this wave reduces at the end: wave 0 -> head, wave 1 -> 32 + head")
        e(f"s_lshl_b32 s{S_CT}, s{S_W}, 5")
        e(f"s_add_u32 s{S_CT}, s{S_CT}, s{S_H}")
        e(f"s_mul_i32 s{S_T0}, s{S_B}, 40")
        e(f"s_add_u32 s{S_T0}, s{S_T0}, s{S_CT}")
        e(f"s_lshl_b32 s{S_T0}, s{S_T0}, 13")
        srd(e, R_RD, S_WS, S_T0, 8192)
        e(f"s_mul_i32 s{S_T0}, s{S_B}, 5120")
        srd(e, R_OUT, S_OUT, S_T0, 5120)
        e(f"v_lshlrev_b32 v{V_IA}, 4, v{V_L}")
        e(f"v_add_u32 v{V_IA+1}, 4096, v{V_IA}")
        e(f"v_add_u32 v{V_UW}, s{S_RING}, v{V_IA}")
        e.c("output byte offset: row = lane&3, column 16*tile + 4*((lane>>2)&3) + {0,2,1,3}[lane>>4]")
        e(f"v_mul_u32_u24 v{V_OA}, 1280, v{SS}")
        e(f"v_and_b32 v{T+2}, 12, v{V_L}")
        e(f"v_lshl_add_u32 v{V_OA}, v{T+2}, 1, v{V_OA}")
        e(f"v_bfe_u32 v{T+2}, v{V_L}, 4, 1")
        e(f"v_lshl_add_u32 v{V_OA}, v{T+2}, 2, v{V_OA}")
        e(f"v_lshrrev_b32 v{T+2}, 5, v{V_L}")
        e(f"v_lshl_add_u32 v{V_OA}, v{T+2}, 1, v{V_OA}")
        e(f"s_lshl_b32 s{S_T0}, s{S_CT}, 5")
        e(f"v_add_u32 v{V_OA}, s{S_T0}, v{V_OA}")
        if ncol:
            e.c("column tiles: 48 rows x 128 bytes")
            e(f"v_lshrrev_b32 v{T+2}, 3, v{V_L}")
            e(f"v_and_b32 v{T+3}, 6, v{T+2}")
            e(f"v_and_b32 v{T+4}, 7, v{V_L}")
            e(f"v_xor_b32 v{T+3}, v{T+3}, v{T+4}")
            e(f"v_lshlrev_b32 v{T+3}, 4, v{T+3}")
            e(f"v_mul_u32_u24 v{T+2}, 384, v{T+2}")
            e(f"v_add_u32 v{V_CV}, v{T+2}, v{T+3}")
            e(f"v_add_u32 v{V_CV+1}, {8*384}, v{V_CV}")
            e(f"v_lshrrev_b32 v{T+2}, 2, v{V_L}")
            e(f"v_and_b32 v{T+3}, 6, v{T+2}")
            e(f"v_lshlrev_b32 v{T+3}, 4, v{T+3}")
            e(f"v_lshl_add_u32 v{T+3}, v{SS}, 3, v{T+3}")
            e(f"v_lshlrev_b32 v{T+2}, 7, v{T+2}")
            e(f"v_add3_u32 v{V_CA}, v{T+2}, v{T+3}, s{S_RING}")
            for q in range(1, 4):
                e(f"v_xor_b32 v{V_CA+q}, {32*q}, v{V_CA}")
            e.c("o exchange: [d tile][g][wave][row] x 16 bytes")
            e(f"v_and_b32 v{T+2}, 15, v{V_L}")
            e(f"v_lshlrev_b32 v{T+2}, 4, v{T+2}")
            e(f"v_lshl_add_u32 v{T+2}, v{G}, 8, v{T+2}")
            e(f"v_add_u32 v{V_ER}, {PART}, v{T+2}")
            e(f"s_lshl_b32 s{S_T0}, s{S_W}, 6")
            e(f"v_add_u32 v{V_EW}, s{S_T0}, v{V_ER}")

    def tr_reads(slot):
        for dt in range(12):
            cx.e(f"ds_read_b64_tr_b16 v[{V_RD+2*dt}:{V_RD+2*dt+1}], v{V_VA + (dt & 3)} offset:{slot*SLOT + 128*(dt >> 2)}")

    def pv_mfma(breg, first):
        for dt in range(12):
            a = V_ACC + 4 * dt
            cc = "0" if first else f"v[{a}:{a+3}]"
            cx.e(f"v_mfma_f32_16x16x16_bf16 v[{a}:{a+3}], v[{V_RD+2*dt}:{V_RD+2*dt+1}], v[{breg}:{breg+1}], {cc}")

    def reduce_partials(label, st):
        e = cx.e
        e.c("sum the four waves' partial rows, round to bf16")
        e("s_mov_b32 exec_lo, 0x000f000f")
        e("s_mov_b32 exec_hi, 0x000f000f")
        for dt in range(12):
            a = V_ACC + 4 * dt
            e(f"ds_write_b128 v{V_PW}, v[{a}:{a+3}] offset:{64*dt}")
        e("s_mov_b64 exec, -1")
        if st:
            st.sprinkle(qs1)
        e("s_waitcnt lgkmcnt(0)")
        e("s_barrier")
        tr(label[2] + ".b1")
        e(f"s_cmp_eq_u32 s{S_W}, 3")
        e(f"s_cbranch_scc1 {label}")
        for w in range(4):
            e(f"ds_read_b128 v[{V_RD+4*w}:{V_RD+4*w+3}], v{V_PR} offset:{PWAVE*w}")
        e("s_waitcnt lgkmcnt(0)")
        for r in range(4):
            e(f"v_add_f32 v{V_RD+r}, v{V_RD+r}, v{V_RD+4+r}")
        for r in range(4):
            e(f"v_add_f32 v{V_RD+8+r}, v{V_RD+8+r}, v{V_RD+12+r}")
        for r in range(4):
            e(f"v_add_f32 v{V_RD+r}, v{V_RD+r}, v{V_RD+8+r}")
        e(f"v_cvt_pk_bf16_f32 v{V_RD+4}, v{V_RD}, v{V_RD+1}")
        e(f"v_cvt_pk_bf16_f32 v{V_RD+5}, v{V_RD+2}, v{V_RD+3}")
        e(f"ds_write_b64 v{V_BW}, v[{V_RD+4}:{V_RD+5}]")
        e("s_waitcnt lgkmcnt(0)")
        e(f"{label}:")
        if st:
            st.sprinkle(qs2)
        e("s_barrier")

    def score_post(t):
        e = cx.e
        s = V_S + 4 * t
        a, b = T + 2, T + 3
        for rnd in range(2):
            e(f"v_cvt_pk_bf16_f32 v{a}, v{s}, v{s+1}")
            e(f"v_cvt_pk_bf16_f32 v{b}, v{s+2}, v{s+3}")
            e(f"v_lshlrev_b32 v{s}, 16, v{a}")
            e(f"v_and_b32 v{s+1}, 0xffff0000, v{a}")
            e(f"v_lshlrev_b32 v{s+2}, 16, v{b}")
            e(f"v_and_b32 v{s+3}, 0xffff0000, v{b}")
            if rnd == 0:
                for r in range(4):
                    e(f"v_mul_f32 v{s+r}, s{S_SCALE}, v{s+r}")
        e(f"v_max3_f32 v{V_M}, v{V_M}, v{s}, v{s+1}")
        e(f"v_max3_f32 v{V_M}, v{V_M}, v{s+2}, v{s+3}")

    def softmax(st):
        e = cx.e
        e.c("softmax over the 1024 keys of each query row")
        e("s_nop 7")
        score_post(15)
        st.sprinkle(ss)
        e(f"ds_write_b32 v{V_RW}, v{V_M}")
        e("s_waitcnt lgkmcnt(0)")
        e("s_barrier")
        for i in range(4):
            e(f"ds_read_b128 v[{V_RD+4*i}:{V_RD+4*i+3}], v{V_RR} offset:{16*i}")
        e("s_waitcnt lgkmcnt(0)")
        for i in range(8):
            e(f"v_max3_f32 v{V_M}, v{V_M}, v{V_RD+2*i}, v{V_RD+2*i+1}")
        e(f"v_mul_f32 v{V_M}, s{S_L2E}, v{V_M}")
        st.sprinkle(ss)
        l0, l1 = T + 2, T + 3
        for r in range(64):
            e(f"v_fma_f32 v{V_S+r}, v{V_S+r}, s{S_L2E}, -v{V_M}")
        st.sprinkle(ss)
        for r in range(64):
            e(f"v_exp_f32 v{V_S+r}, v{V_S+r}")
            if r == 31:
                st.sprinkle(ss)
        st.sprinkle(ss)
        e(f"v_add_f32 v{l0}, v{V_S}, v{V_S+1}")
        e(f"v_add_f32 v{l1}, v{V_S+2}, v{V_S+3}")
        for r in range(4, 64, 2):
            e(f"v_add_f32 v{l0}, v{l0}, v{V_S+r}")
            e(f"v_add_f32 v{l1}, v{l1}, v{V_S+r+1}")
        e(f"v_add_f32 v{l0}, v{l0}, v{l1}")
        e(f"ds_write_b32 v{V_RW}, v{l0} offset:{RSUM-RMAX}")
        e("s_waitcnt lgkmcnt(0)")
        e("s_barrier")
        for i in range(4):
            e(f"ds_read_b128 v[{V_RD+4*i}:{V_RD+4*i+3}], v{V_RR} offset:{RSUM-RMAX+16*i}")
        st.sprinkle(ss)
        e("s_waitcnt lgkmcnt(0)")
        for i in range(8):
            e(f"v_add_f32 v{V_RD+i}, v{V_RD+i}, v{V_RD+8+i}")
        for i in range(4):
            e(f"v_add_f32 v{V_RD+i}, v{V_RD+i}, v{V_RD+4+i}")
        e(f"v_add_f32 v{V_RD}, v{V_RD}, v{V_RD+1}")
        e(f"v_add_f32 v{V_RD+2}, v{V_RD+2}, v{V_RD+3}")
        e(f"v_add_f32 v{V_RD}, v{V_RD}, v{V_RD+2}")
        e(f"v_rcp_f32 v{l0}, v{V_RD}")
        e("s_nop 0")
        for r in range(64):
            e(f"v_mul_f32 v{V_S+r}, v{l0}, v{V_S+r}")
        st.sprinkle(ss)
        for r in range(32):
            e(f"v_cvt_pk_bf16_f32 v{V_P+r}, v{V_S+2*r}, v{V_S+2*r+1}")
        e(f"v_mov_b32 v{V_M}, 0xffffff00")
        e("s_nop 0")

    def D_(nt):
        return V_S + 4 * nt
    def out_mfma(nt, j, breg):
        d = D_(nt)
        a = (j * 10 + nt) * 4
        cc = "0" if j == 0 else f"v[{d}:{d+3}]"
        cx.e(f"v_mfma_f32_16x16x32_bf16 v[{d}:{d+3}], a[{a}:{a+3}], v[{breg}:{breg+3}], {cc}")

    def final_projection(js, bregs):
        e = cx.e
        ready = {}
        for nt in range(10):
            m, c = nt >> 2, nt & 3
            d = D_(4 * m)
            ops = []
            if c > 0:
                ops = [f"v_mov_b32_dpp v{d+r}, v{D_(nt)+r} quad_perm:[0,1,2,3] row_mask:0xf bank_mask:{1 << c:#x}" for r in range(4)]
            if c == 3 or nt == 9:
                ops += [f"v_and_or_b32 v{d+r}, v{d+r}, v{V_M}, s{S_TG+r}" for r in range(4)]
                ops.append(f"buffer_store_dwordx4 v[{d}:{d+3}], v{V_ST if m < 2 else V_ST2}, s[{R_IN}:{R_IN+3}], s{S_TP+m} offen sc1")
            ready[nt] = ops
        pend, since = [], {}
        def tick():
            for k in since:
                since[k] += 1
        def promote():
            for k in sorted(ready):
                if since.get(k, -1) >= 8 and since.get(k & ~3, -1) >= 8:
                    pend.extend(ready.pop(k))
                else:
                    break
        per_gap = 1 if len(js) > 2 else 2
        for nt in range(10):
            for j in js:
                out_mfma(nt, j, bregs[j])
                tick()
                if j == js[-1]:
                    since[nt] = 0
                promote()
                for _ in range(per_gap):
                    if pend:
                        e(pend.pop(0)); tick()
        while pend or ready:
            promote()
            if pend:
                e(pend.pop(0)); tick()
            elif ready:
                k = min(ready)
                need = 8 - min(since[k], since[k & ~3])
                e(f"s_nop {need - 1}")
                for _ in range(need):
                    tick()

    def stage(st, m):
        e = cx.e
        e("s_mov_b32 exec_lo, 0x000f000f")
        e("s_mov_b32 exec_hi, 0x000f000f")
        e("s_nop 2")
        for q in range(4):
            a = V_ACC + 4 * (4 * m + q)
            e(f"ds_write_b128 v{V_EW}, v[{a}:{a+3}] offset:{1024*(4*m+q)}")
        e("s_mov_b64 exec, -1")
        st.sprinkle(1)
        e("s_waitcnt lgkmcnt(0)")
        e("s_barrier")
        if m == 2:
            tr("o.b1")
        for q in range(4):
            e(f"ds_read_b128 v[{V_RD+4*q}:{V_RD+4*q+3}], v{V_ER} offset:{1024*(4*m+q)}")
        for q in range(4):
            e(f"s_waitcnt lgkmcnt({3-q})")
            for r in range(4 * q, 4 * q + 4):
                e(f"v_add_f32_dpp v{V_RD+r}, v{V_RD+r}, v{V_RD+r} row_ror:8 row_mask:0xf bank_mask:0xf")
        for r in range(16):
            e(f"v_add_f32_dpp v{V_RD+r}, v{V_RD+r}, v{V_RD+r} row_ror:4 row_mask:0xf bank_mask:0xf")
        for r in range(8):
            e(f"v_cvt_pk_bf16_f32 v{V_QB+r}, v{V_RD+2*r}, v{V_RD+2*r+1}")
        st.sprinkle(1)
        e("s_nop 0")
        bregs = {2 * m: V_QB, 2 * m + 1: V_QB + 4}
        if m < 2:
            for j in (2 * m, 2 * m + 1):
                for nt in range(10):
                    out_mfma(nt, j, bregs[j])
        else:
            tr("obr")
            final_projection([4, 5], bregs)

    def consume(st, tl):
        e = cx.e
        kind, t = tl
        if tl in st.park:
            st.stage_slot(tl)
            for i in range(6):
                a = st.park[tl] + 4 * i
                e(f"ds_write_b128 v{V_UW}, a[{a}:{a+3}] offset:{st.slot[tl]*SLOT + 1024*i}")
        sl = st.slot[tl]
        done.add(tl)
        tr_begin()
        if kind == "K":
            for j in range(6):
                e(f"ds_read_b128 v[{V_RD+4*j}:{V_RD+4*j+3}], v{V_KA + (j & 1)} offset:{sl*SLOT + 128*(j >> 1)}")
            if t > 0:
                e("s_nop 1")
                score_post(t - 1)
            e("s_waitcnt lgkmcnt(0)")
            tr_end(f"K{t}")
            s = V_S + 4 * t
            for j in range(6):
                cc = "0" if j == 0 else f"v[{s}:{s+3}]"
                e(f"v_mfma_f32_16x16x32_bf16 v[{s}:{s+3}], v[{V_RD+4*j}:{V_RD+4*j+3}], v[{V_QB+4*j}:{V_QB+4*j+3}], {cc}")
            st.release(tl, nfl)
            if t == 15:
                softmax(st)
                tr("sm")
        elif kind == "V":
            tr_reads(sl)
            e("s_waitcnt lgkmcnt(0)")
            tr_end(f"V{t}")
            pv_mfma(V_P + 2 * t, t == 0)
            st.release(tl, nfl)
        elif kind == "C":
            m, t0 = t
            for u in range(3):
                for q in range(4):
                    r = V_RD + 2 * (4 * u + q)
                    e(f"ds_read_b64_tr_b16 v[{r}:{r+1}], v{V_CA+q} offset:{sl*SLOT + 2048*u}")
            e("s_waitcnt lgkmcnt(0)")
            name = f"V{nplain + kv[16+nplain:].index(tl)}"
            tr_end(name)
            st.release(tl, nfl)
            for u in range(3):
                for q in range(4):
                    r = V_RD + 2 * (4 * u + q)
                    a = V_ACC + 4 * (4 * m + q)
                    b = V_P + 2 * (t0 + u)
                    e(f"v_mfma_f32_16x16x16_bf16 v[{a}:{a+3}], v[{r}:{r+1}], v[{b}:{b+1}], v[{a}:{a+3}]")
            if t0 == 13:
                assert not any(x[0] == "O" and x[1] < 4 * m + 4 for x in seq[seq.index(tl):])
                stage(st, m)
        elif kind == "Q":
            tr_reads(sl)
            e("s_waitcnt lgkmcnt(0)")
            tr_end(f"Q{t}")
            st.busy.discard(sl)
            st.top_up(nflq if t < 8 else nflt)
            pv_mfma(V_XR + 2 * t, t == 0)
        else:
            j, half = t >> 1, t & 1
            assert all(a >= 40 * j + 40 or p in done for p, a in st.park.items())
            for nt in range(10):
                a = (j * 10 + nt) * 4 + 2 * half
                e(f"ds_read_b64_tr_b16 a[{a}:{a+1}], v{V_WA} offset:{sl*SLOT + 32*nt}")
            e("s_waitcnt lgkmcnt(0)")
            tr_end(f"O{t & ~1}")
            st.release(tl, nfl)
        done.add(tl)

    def group(gi):
        done.clear()
        st = Stream(*plans[gi])
        st.next = 6
        st.busy.add(st.slot[("Q", 0)])
        cx.e.vm = list(first_vm)
        st.top_up(nflq)
        late_setup()
        for p in range(10):
            st.wait_tile(("Q", p), nflq)
            consume(st, ("Q", p))
        reduce_partials(f"L_qred_{gi}", st)
        for j in range(6):
            cx.e(f"ds_read_b128 v[{V_QB+4*j}:{V_QB+4*j+3}], v{V_BR} offset:{64*j}")
        cx.e(f"v_mov_b32 v{V_M}, 0xff800000")
        st.sprinkle()
        cx.e("s_waitcnt lgkmcnt(0)")
        tr("qrdy")
        for pos in range(MERGE):
            tl = seq[pos]
            cx.e.c(f"consume {tl[0]}{tl[1]}")
            st.wait_tile(tl, nfl)
            consume(st, tl)
            if pos == 0:
                post_q_setup()
        return st

    done = set()
    head = cx.e
    for gi in range(1, len(groups)):
        head(f"s_cmp_eq_u32 s{S_G}, {gi}")
        head(f"s_cbranch_scc1 L_grp_{gi}")
    paths = []
    for gi in range(len(groups)):
        cx.e = E()
        paths.append((group(gi), cx.e))
    X = max(st.next for st, _ in paths)
    for st, em in paths:
        cx.e = em
        while st.next < X:
            st.gated(nfl)
        em.wait_vm("tagst")
    n = max(len(em.vm) for _, em in paths)
    for st, em in paths:
        assert st.busy == paths[0][0].busy and st.flat[X - n:] == paths[0][0].flat[X - n:]
    e = cx.e = head
    for gi, (st, em) in enumerate(paths):
        if gi:
            e(f"L_grp_{gi}:")
        e.lines += em.lines
        if gi < len(paths) - 1:
            e("s_branch L_merge")
    e("L_merge:")
    st = paths[0][0]
    st.park = {}
    e.vm = list(st.flat[X - n:X])

    hooks = {}
    def h_tagload():
        e.vmop(f"buffer_load_dword v{V_TK}, off, s[{R_DBG}:{R_DBG+3}], s{S_CO} sc1", "tagld")
        hooks[seq.index(st.next_tile())] = h_tagcheck
    def h_tagcheck():
        assert "tagld" not in e.vm
        e(f"s_mov_b32 s{S_SPIN}, {spin_max}")
        e("L_spin:")
        e(f"v_readfirstlane_b32 s{S_T0}, v{V_TK}")
        e(f"s_sub_u32 s{S_SPIN}, s{S_SPIN}, 1")
        e("s_cbranch_scc1 L_spin_done")
        e(f"s_cmp_lg_u32 s{S_T0}, 0")
        e("s_cbranch_scc1 L_spin_done")
        e(f"buffer_load_dword v{V_TK}, off, s[{R_DBG}:{R_DBG+3}], s{S_CO} sc1")
        e("s_waitcnt vmcnt(0)")
        e("s_branch L_spin")
        e("L_spin_done:")
        for r in range(4):
            e(f"s_bfe_u32 s{S_TG+r}, s{S_T0}, {0x80000 + 8*r:#x}")
    hooks[tag_pos if tag_pos else seq.index(("V", 4))] = h_tagload
    for pos in range(MERGE, len(seq)):
        tl = seq[pos]
        if pos == len(seq) - tail_from:
            e.c("the rest of the kernel sits in one 4 KiB code page")
            e("s_branch L_tailpage")
            e(".p2align 12")
            e("L_tailpage:")
        e.c(f"consume {tl[0]}{tl[1]}")
        st.wait_tile(tl, nfl)
        if pos in hooks:
            hooks.pop(pos)()
        consume(st, tl)
    assert st.next == len(st.flat) and not hooks, hooks

    if not ncol:
        e.c("output projection of this head")
        reduce_partials("L_ored", None)
        tr_begin()
        for j in range(6):
            e(f"ds_read2_b64 v[{V_QB+4*j}:{V_QB+4*j+3}], v{V_BO} offset0:{8*j} offset1:{8*j+4}")
        e("s_waitcnt lgkmcnt(0)")
        tr_end("obr")
        final_projection(list(range(6)), {j: V_QB + 4 * j for j in range(6)})
    tr("sent")
    e(f"s_cmp_ge_u32 s{S_CT}, 40")
    e("s_cbranch_scc1 L_fin")
    e.c("reduce one 16-column tile over the 32 heads")
    e(f"s_mov_b32 s{S_SPIN}, {spin_max}")
    D = V_S
    A = V_RD
    e("L_poll:")
    for i in range(8):
        e(f"buffer_load_dwordx4 v[{D+4*i}:{D+4*i+3}], v{V_IA + (i >> 2)}, s[{R_RD}:{R_RD+3}], 0 offen offset:{1024*(i & 3)} sc1")
    for i in range(8):
        e(f"s_waitcnt vmcnt({7-i})")
        d = D + 4 * i
        for r in range(4):
            e(f"v_xor_b32 v{d+r}, s{S_TG+r}, v{d+r}")
        if i == 0:
            e(f"v_or3_b32 v{A+4}, v{d}, v{d+1}, v{d+2}")
            e(f"v_or_b32 v{A+4}, v{A+4}, v{d+3}")
        else:
            e(f"v_or3_b32 v{A+4}, v{A+4}, v{d}, v{d+1}")
            e(f"v_or3_b32 v{A+4}, v{A+4}, v{d+2}, v{d+3}")
            for r in range(4):
                e(f"v_add_f32 v{A+r}, v{A+r if i > 1 else D+r}, v{d+r}")
    e(f"v_and_b32 v{A+4}, 0xff, v{A+4}")
    e(f"v_cmp_ne_u32 vcc, 0, v{A+4}")
    e(f"s_sub_u32 s{S_SPIN}, s{S_SPIN}, 1")
    e("s_cbranch_scc1 L_ready")
    e("s_cbranch_vccnz L_poll")
    e("L_ready:")
    e(f"v_permlane32_swap_b32 v{A}, v{A+1}")
    e(f"v_permlane32_swap_b32 v{A+2}, v{A+3}")
    e("s_nop 0")
    e(f"v_add_f32 v{A}, v{A}, v{A+1}")
    e(f"v_add_f32 v{A+2}, v{A+2}, v{A+3}")
    e("s_nop 1")
    e(f"v_permlane16_swap_b32 v{A}, v{A+2}")
    e("s_nop 0")
    e(f"v_add_f32 v{A}, v{A}, v{A+2}")
    e(f"v_cvt_pk_bf16_f32 v{A}, v{A}, v{A}")
    e(f"buffer_store_short v{A}, v{V_OA}, s[{R_OUT}:{R_OUT+3}], 0 offen")
    e("L_fin:")
    if trace:
        e("s_waitcnt vmcnt(0)")
        e("s_memtime s[94:95]")
        tr("end")
        e("s_sub_u32 s94, s94, s96")
        e(f"v_writelane_b32 v{V_TR}, s94, 61")
        e(f"s_getreg_b32 s{S_T0}, hwreg(HW_REG_XCC_ID)")
        e(f"v_writelane_b32 v{V_TR}, s{S_T0}, 63")
        e(f"s_lshl_b32 s{S_T0}, s2, 2")
        e(f"s_add_u32 s{S_T0}, s{S_T0}, s{S_W}")
        e(f"s_lshl_b32 s{S_T0}, s{S_T0}, 8")
        e(f"s_add_u32 s{S_T0}, s{S_T0}, 0x2000000")
        srd(e, R_OUT, S_WS, S_T0, 256)
        e(f"v_lshlrev_b32 v{T+4}, 2, v{V_L}")
        e(f"buffer_store_dword v{V_TR}, v{T+4}, s[{R_OUT}:{R_OUT+3}], 0 offen")
        assert len(TRACE_NAMES) <= 60, len(TRACE_NAMES)
    e("L_end:")
    e("s_endpgm")

    return f"""; Fused q-projection + sliding-window attention + output projection, 256 workgroups = (batch, head).
; @launch grid=(256,1,1) block=(256,1,1) lds={LDS_BYTES}
.amdgcn_target "amdgcn-amd-amdhsa--gfx950"
.text
.globl {KN}
.p2align 12
.p2align 8
.type {KN},@function
{e.text()}
.section .rodata,"a"
.p2align 6
.amdhsa_kernel {KN}
  .amdhsa_next_free_vgpr 496
  .amdhsa_next_free_sgpr 102
  .amdhsa_accum_offset 256
  .amdhsa_group_segment_fixed_size 0
  .amdhsa_kernarg_size 64
  .amdhsa_user_sgpr_count 2
  .amdhsa_user_sgpr_kernarg_segment_ptr 1
  .amdhsa_system_sgpr_workgroup_id_x 1
.end_amdhsa_kernel
"""

if __name__ == "__main__":
    kw = eval("dict(" + (sys.argv[1] if len(sys.argv) > 1 else "") + ")")
    sys.stdout.write(gen(**kw))
```

```python
import struct, sys

KN = "standalone__sliding_block_cached__sampling_kernel"
TRACE_NAMES = []

def f32(x):
    return struct.unpack("<I", struct.pack("<f", x))[0]

class E:
    def __init__(self):
        self.lines = []
        self.vm = []
    def __call__(self, s=""):
        self.lines.append("    " + s if s and not s.endswith(":") else s)
    def c(self, s):
        self.lines.append("    ; " + s)
    def vmop(self, s, tag):
        self(s)
        self.vm.append(tag)
    def wait_vm(self, tag):
        idx = max([i for i, t in enumerate(self.vm) if t == tag], default=-1)
        if idx < 0:
            return
        n = len(self.vm) - 1 - idx
        self(f"s_waitcnt vmcnt({min(n, 63)})")
        self.vm = self.vm[idx + 1:]
    def text(self):
        return "\n".join(self.lines) + "\n"

SLOT = 6144
NSLOT = 6
RING = SLOT * NSLOT
MISC = 4 * RING
PART = MISC
PROW = 784
PWAVE = 4 * PROW
BROW = 400
QBF = MISC + 4 * PWAVE
RMAX = QBF + 4 * BROW
RSUM = RMAX + 256
LDS_BYTES = RSUM + 256

INBOX_B = 40 * 8192

S_W = 3
S_X, S_K, S_V, S_WQ, S_WO, S_OUT, S_DBG, S_WS = 4, 6, 8, 10, 12, 14, 16, 18
R_K, R_V, R_WQ, R_WO, R_X, R_IN, R_OUT, R_DBG = 20, 24, 28, 32, 36, 40, 44, 48
R_RD = 28
S_B, S_H, S_RING, S_OFF, S_T0, S_T1 = 52, 53, 54, 55, 56, 57
S_KW = 58
S_QW = 59
S_TP = 60
S_TG = 64
S_SCALE, S_L2E = 70, 71
S_CT = 72
S_SPIN = 73
S_XL = 74
S_G = 75
S_NC = 76
S_CO = 78
S_TR = 100

V_L = 1
V_KV = 2
V_WQ = 8
V_WO = 14
V_KA = 19
V_VA = 21
V_WA = 25
V_PW = 26
V_PR = 27
V_BW = 28
V_BR = 29
V_BO = 30
V_RW = 31
V_RR = 32
V_M = 33
V_T = 34
V_ST = 39
V_RD = 40
V_ACC = 64
V_QB = 112
V_S = 136
V_P = 200
V_XR = 232
V_IA = 232
V_OA = 234
V_UW = 235
V_CV = 236
V_CA = 238
V_EW = 242
V_ER = 243
V_TK = 252
V_DO = 253
V_TR = 254
V_XO = 255
V_ST2 = 255

def srd(e, r, base, off, nbytes):
    if off is None:
        e(f"s_mov_b32 s{r}, s{base}")
        e(f"s_and_b32 s{r+1}, s{base+1}, 0xffff")
    else:
        e(f"s_add_u32 s{r}, s{base}, s{off}")
        e(f"s_addc_u32 s{r+1}, s{base+1}, 0")
        e(f"s_and_b32 s{r+1}, s{r+1}, 0xffff")
    e(f"s_mov_b32 s{r+2}, {nbytes}")
    e(f"s_mov_b32 s{r+3}, 0x20000")

def nloads(tile):
    return 5 if tile[0] == "O" else 6

def gen(groups=((0, 0, 10), (3, 0, 2), (7, 2, 2), (10, 2, 1)), gmap=(0, 1, 2, 3, 0, 1, 2, 3), rots=(0, 2, 3, 4, 5, 7, 8, 9),
        nfl=11, nflq=11, nflt=10, backlog=2, pbacklog=4, wo_at=(13, 14, 16, 17, 19, 20, 22, 23, 25, 26, 28, 29), f_kv="nt", f_wq="", f_wo="",
        krot=(32, 0, 16), kw=1, krt=0, ncol=6, trace=0, spin_max=20000, tail_from=2, qs1=3, qs2=3, tag_pos=None, ss=2, half=1, k32=1, dbgtime=None):
    del TRACE_NAMES[:]
    T = V_T
    G, SS = T, T + 1

    class Ctx:
        pass
    cx = Ctx()
    cx.e = E()

    def tr_begin():
        if trace:
            cx.e(f"s_memrealtime s[{S_TR}:{S_TR+1}]")
    def tr_end(name):
        if trace:
            if name not in TRACE_NAMES:
                TRACE_NAMES.append(name)
            cx.e(f"v_writelane_b32 v{V_TR}, s{S_TR}, {TRACE_NAMES.index(name)}")
    def tr(name):
        if trace and not (trace == 2 and name in ("o.b1", "obr", "sent")):
            tr_begin()
            cx.e("s_waitcnt lgkmcnt(0)")
            tr_end(name)

    def nibble(dst, table):
        packed = sum(r << (4 * i) for i, r in enumerate(table))
        cx.e(f"s_lshr_b32 s{dst}, {packed:#x}, s{S_T1}")
        cx.e(f"s_and_b32 s{dst}, s{dst}, 15")

    nplain = 16 - ncol
    kv = [("K", t) for t in range(16)] + [("V", t) for t in range(nplain)]
    kv += [("C", (m, t0)) for m in range(3) for t0 in range(nplain, 16, 3)]
    if wo_at is None:
        wo_at = list(range(7, 31, 2))
    assert len(wo_at) == 12
    seq = []
    wo_i = 0
    for n, tl in enumerate(kv):
        seq.append(tl)
        while wo_i < 12 and wo_at[wo_i] == n + 1:
            seq.append(("O", wo_i)); wo_i += 1
    assert wo_i == 12
    main_slots = {tl: n % NSLOT for n, tl in enumerate(seq)}

    def group_plan(npre, npost, nq0):
        nring = min(npre, 4)
        nq = NSLOT - nring
        nq0 = min(nq0, 10)
        assert npre == 0 or nq0 <= nq
        order = [("Q", p) for p in range(nq0)] + seq[:npre] + [("Q", p) for p in range(nq0, 10)] + seq[npre:]
        slots = dict(main_slots)
        slots.update({("Q", p): nring + (p - (10 - nq)) % nq for p in range(10)})
        parked = seq[nring:npre + npost] if npre > nring or npost else []
        assert all(t[0] == "K" for t in seq[:npre + npost])
        park = {tl: 240 - 24 * (i + 1) for i, tl in enumerate(parked)}
        return order, slots, park
    plans = [group_plan(*g) for g in groups]
    MERGE = max(6, max(g[0] + g[1] for g in groups) + 1)

    e = cx.e
    e(f"{KN}:")
    e("s_cmp_ge_u32 s2, 256")
    e("s_cbranch_scc1 L_end")
    tr_begin()
    if trace:
        e("s_memtime s[96:97]")
    e(f"s_memrealtime s[{S_NC}:{S_NC+1}]")
    e("s_load_dwordx16 s[4:19], s[0:1], 0")
    e(f"v_lshrrev_b32 v{T}, 6, v0")
    e(f"v_and_b32 v{V_L}, 63, v0")
    e(f"v_readfirstlane_b32 s{S_W}, v{T}")
    if trace:
        e(f"v_mov_b32 v{V_TR}, 0")
    e.c("head = 4*(wg&7) + ((wg>>3)&3), batch = wg>>5")
    e(f"s_and_b32 s{S_H}, s2, 7")
    e(f"s_lshl_b32 s{S_H}, s{S_H}, 2")
    e(f"s_bfe_u32 s{S_T0}, s2, 0x20003")
    e(f"s_add_u32 s{S_H}, s{S_H}, s{S_T0}")
    e(f"s_lshr_b32 s{S_B}, s2, 5")
    e(f"s_mul_i32 s{S_RING}, s{S_W}, {RING}")
    e(f"s_mul_i32 s{S_QW}, s{S_W}, {160*12288}")
    e.c("first key tile of this wave, rotated per workgroup")
    e(f"s_mul_i32 s{S_KW}, s{S_B}, {krot[0]}")
    e(f"s_and_b32 s{S_T1}, s2, 7")
    e(f"s_mul_i32 s{S_T1}, s{S_T1}, {krot[1]}")
    e(f"s_mul_i32 s{S_T0}, s{S_T0}, {krot[2]}")
    e(f"s_add_u32 s{S_KW}, s{S_KW}, s{S_T1}")
    e(f"s_add_u32 s{S_KW}, s{S_KW}, s{S_T0}")
    e(f"s_mul_i32 s{S_T0}, s{S_W}, {kw}")
    e(f"s_add_u32 s{S_KW}, s{S_KW}, s{S_T0}")
    e.c("per-batch start order, first wq tile and its LDS slot")
    e(f"s_lshl_b32 s{S_T1}, s{S_B}, 2")
    nibble(S_G, gmap)
    nibble(S_TP, rots)
    nibble(S_SPIN, [plans[g][1][("Q", 0)] for g in gmap])
    e(f"s_mul_i32 s{S_SPIN}, s{S_SPIN}, {SLOT}")
    e(f"s_add_u32 s{S_SPIN}, s{S_SPIN}, s{S_RING}")
    for p in range(1, 10):
        e(f"s_add_u32 s{S_TP+p}, s{S_TP+p-1}, 1")
        e(f"s_cmp_eq_u32 s{S_TP+p}, 10")
        e(f"s_cselect_b32 s{S_TP+p}, 0, s{S_TP+p}")
    e.c("DMA source offsets (16-byte chunks XOR-swizzled inside each 128-byte line)")
    e(f"v_lshrrev_b32 v{T}, 3, v{V_L}")
    e(f"v_and_b32 v{T+1}, 7, v{V_L}")
    for i in range(6):
        e(f"v_add_u32 v{T+2}, {8*i}, v{T}")
        e(f"v_mul_u32_u24 v{T+3}, 43, v{T+2}")
        e(f"v_lshrrev_b32 v{T+3}, 7, v{T+3}")
        e(f"v_and_b32 v{T+4}, 6, v{T+3}")
        e(f"v_xor_b32 v{T+4}, v{T+4}, v{T+1}")
        e(f"v_lshlrev_b32 v{T+4}, 4, v{T+4}")
        e(f"v_lshl_add_u32 v{V_KV+i}, v{T+2}, 7, v{T+4}")
        e(f"v_mul_u32_u24 v{T+3}, {12288-384}, v{T+3}")
        e(f"v_add_u32 v{V_WQ+i}, v{V_KV+i}, v{T+3}")
    e(f"v_lshrrev_b32 v{G}, 4, v{V_L}")
    e(f"v_and_b32 v{SS}, 3, v{V_L}")
    e.c("x staging: 80 chunks of 16 bytes, LDS image [row][320 bytes]")
    e(f"v_mul_u32_u24 v{T+2}, 205, v{V_L}")
    e(f"v_lshrrev_b32 v{T+2}, 12, v{T+2}")
    e(f"v_mul_u32_u24 v{T+2}, {1280-320}, v{T+2}")
    e(f"v_lshl_add_u32 v{T+2}, v{V_L}, 4, v{T+2}")
    e(f"s_mul_i32 s{S_T0}, s{S_W}, 320")
    e(f"v_add_u32 v{V_XO}, s{S_T0}, v{T+2}")
    e(f"v_lshlrev_b32 v{T+2}, 4, v{V_L}")
    e(f"v_add_u32 v{T+2}, {3*1280 + 64}, v{T+2}")
    e(f"v_add_u32 v{V_TK}, s{S_T0}, v{T+2}")
    e(f"s_mul_i32 s{S_XL}, s{S_W}, {PWAVE}")
    e(f"s_add_u32 s{S_XL}, s{S_XL}, {PART}")
    e(f"s_mul_i32 s{S_OFF}, s{S_TP}, {16*12288}")
    e(f"s_add_u32 s{S_OFF}, s{S_OFF}, s{S_QW}")
    e("s_waitcnt lgkmcnt(0)")
    tr_end("start")
    e.c("first wq tile and the x operand")
    e(f"s_mul_i32 s{S_T0}, s{S_B}, 5120")
    srd(e, R_X, S_X, S_T0, 5120)
    e(f"s_mov_b32 m0, s{S_XL}")
    e("s_nop 0")
    e.vmop(f"buffer_load_dwordx4 v{V_XO}, s[{R_X}:{R_X+3}], 0 offen lds", ("x", 0))
    e(f"s_add_u32 m0, s{S_XL}, 1024")
    e("s_mov_b64 exec, 0xffff")
    e.vmop(f"buffer_load_dwordx4 v{V_TK}, s[{R_X}:{R_X+3}], 0 offen lds", ("x", 1))
    e("s_mov_b64 exec, -1")
    e(f"s_mul_i32 s{S_T0}, s{S_H}, 384")
    e(f"s_sub_u32 s{S_T1}, {640*12288}, s{S_T0}")
    srd(e, R_WQ, S_WQ, S_T0, f"s{S_T1}")
    for i in range(6):
        e(f"s_add_u32 m0, s{S_SPIN}, {i*1024}")
        e("s_nop 0")
        e.vmop(f"buffer_load_dwordx4 v{V_WQ+i}, s[{R_WQ}:{R_WQ+3}], s{S_OFF} offen {f_wq} lds", (("Q", 0), i))
    e(f"s_lshl_b32 s{S_T0}, s{S_B}, 5")
    e(f"s_add_u32 s{S_T0}, s{S_T0}, s{S_H}")
    e(f"s_mul_i32 s{S_T0}, s{S_T0}, 1572864")
    e(f"s_add_u32 s{S_T0}, s{S_T0}, {3072*384}")
    srd(e, R_K, S_K, S_T0, 393216)
    srd(e, R_V, S_V, S_T0, 393216)
    if krt:
        e(f"s_add_u32 s80, s{S_WS}, 0x3000000")
        e(f"s_addc_u32 s81, s{S_WS+1}, 0")
        e("s_load_dwordx4 s[84:87], s[80:81], 0")
        e("s_waitcnt lgkmcnt(0)")
        e(f"s_mul_i32 s{S_KW}, s{S_B}, s84")
        e(f"s_and_b32 s{S_T1}, s2, 7")
        e(f"s_mul_i32 s{S_T1}, s{S_T1}, s85")
        e(f"s_bfe_u32 s{S_T0}, s2, 0x20003")
        e(f"s_mul_i32 s{S_T0}, s{S_T0}, s86")
        e(f"s_add_u32 s{S_KW}, s{S_KW}, s{S_T1}")
        e(f"s_add_u32 s{S_KW}, s{S_KW}, s{S_T0}")
        e(f"s_mul_i32 s{S_T0}, s{S_W}, s87")
        e(f"s_add_u32 s{S_KW}, s{S_KW}, s{S_T0}")
        e("s_cmp_eq_u32 s87, 1")
        e("s_cselect_b32 s88, 4, 1")
    first_vm = list(e.vm)

    def key_tile_offset(t, extra=0):
        e = cx.e
        if krt:
            e(f"s_mul_i32 s{S_OFF}, s88, {t}")
            e(f"s_add_u32 s{S_OFF}, s{S_KW}, s{S_OFF}")
        else:
            e(f"s_add_u32 s{S_OFF}, s{S_KW}, {(4 if kw == 1 else 1)*t}")
        e(f"s_and_b32 s{S_OFF}, s{S_OFF}, 63")
        e(f"s_mul_i32 s{S_OFF}, s{S_OFF}, {SLOT}")
        if extra:
            e(f"s_add_u32 s{S_OFF}, s{S_OFF}, {extra}")

    def issue_one(tile, slot, park, i):
        e = cx.e
        kind, t = tile
        if kind in "KV":
            r, vo, fl = (R_K if kind == "K" else R_V), V_KV + i, f_kv
            if i == 0:
                key_tile_offset(t)
        elif kind == "C":
            r, vo, fl = R_V, V_CV + (i & 1), f_kv
            if i & 1 == 0:
                key_tile_offset(t[1] + (i >> 1), 128 * t[0])
        elif kind == "Q":
            r, vo, fl = R_WQ, V_WQ + i, f_wq
            if i == 0:
                e(f"s_mul_i32 s{S_OFF}, s{S_TP+t}, {16*12288}")
                e(f"s_add_u32 s{S_OFF}, s{S_OFF}, s{S_QW}")
        else:
            r, vo, fl = R_WO, V_WO + i, f_wo
            if i == 0:
                e(f"s_mov_b32 s{S_OFF}, {t*16*1280}")
        if park is not None:
            a = park + 4 * i
            e.vmop(f"buffer_load_dwordx4 a[{a}:{a+3}], v{vo}, s[{r}:{r+3}], s{S_OFF} offen {fl}", (tile, i))
        else:
            e(f"s_add_u32 m0, s{S_RING}, {slot*SLOT + i*1024}")
            e("s_nop 0")
            e.vmop(f"buffer_load_dwordx4 v{vo}, s[{r}:{r+3}], s{S_OFF} offen {fl} lds", (tile, i))

    class Stream:
        def __init__(self, order, slots, park):
            self.flat = [(tl, i) for tl in order for i in range(nloads(tl))]
            self.slot = dict(slots)
            self.park = park
            self.next = 0
            self.busy = set()
        def can_issue(self):
            if self.next >= len(self.flat):
                return False
            tl, i = self.flat[self.next]
            if i > 0 or tl in self.park:
                return True
            if tl[0] != "Q" and any(p not in done for p in self.park) and len(self.busy) >= NSLOT - 1 and seq.index(tl) >= 4:
                return False
            return self.slot[tl] not in self.busy
        def issue_next(self):
            tl, i = self.flat[self.next]
            if i == 0 and tl not in self.park:
                assert self.slot[tl] not in self.busy
                self.busy.add(self.slot[tl])
            issue_one(tl, self.slot[tl], self.park.get(tl), i)
            self.next += 1
        def stage_slot(self, tl):
            later = []
            for t2, i in self.flat[self.next:]:
                if i == 0 and t2 not in self.park and self.slot[t2] not in later:
                    later.append(self.slot[t2])
            free = [s for s in range(NSLOT) if s not in self.busy]
            free.sort(key=lambda s: -(later.index(s) if s in later else 99))
            self.slot[tl] = free[0]
            self.busy.add(free[0])
        def loads(self):
            return [t for t in cx.e.vm if not isinstance(t, str)]
        def gated(self, n):
            vm = self.loads()
            if len(vm) >= n:
                cx.e.wait_vm(vm[len(vm) - n])
            self.issue_next()
        def top_up(self, n):
            while len(self.loads()) < n and self.can_issue():
                self.issue_next()
        def wait_tile(self, tl, n):
            last = (tl, nloads(tl) - 1)
            while self.flat.index(last) >= self.next:
                self.gated(n)
            while last in cx.e.vm:
                vm = self.loads()
                if self.can_issue() and (len(vm) < n or vm.index(last) >= len(vm) - n):
                    if len(vm) < n:
                        self.top_up(n)
                    else:
                        self.gated(n)
                else:
                    cx.e.wait_vm(last)
        def release(self, tl, n):
            self.busy.discard(self.slot[tl])
            if len(self.loads()) < n:
                self.top_up(n)
            else:
                for _ in range(pbacklog if tl in self.park else backlog):
                    if self.can_issue():
                        self.gated(n)
        def sprinkle(self, k=1):
            for _ in range(k):
                if self.can_issue():
                    self.issue_next()
        def next_tile(self):
            tl, i = self.flat[self.next]
            if i > 0:
                tl = self.flat[self.next + nloads(tl) - i][0]
            return tl

    def late_setup():
        e = cx.e
        e.c("remaining address registers and descriptors")
        e(f"s_mov_b32 s{S_SCALE}, {f32(192 ** -0.5):#x}")
        e(f"s_mov_b32 s{S_L2E}, {f32(1.4426950408889634):#x}")
        e(f"s_mul_i32 s{S_T0}, s{S_H}, 245760")
        srd(e, R_WO, S_WO, S_T0, 245760)
        e(f"s_mul_i32 s{S_T0}, s{S_W}, 320")
        for i in range(5):
            e(f"v_add_u32 v{T+2}, {64*i}, v{V_L}")
            e(f"v_mul_u32_u24 v{T+3}, 205, v{T+2}")
            e(f"v_lshrrev_b32 v{T+3}, 12, v{T+3}")
            e(f"v_mul_u32_u24 v{T+3}, {1280-320}, v{T+3}")
            e(f"v_lshl_add_u32 v{T+3}, v{T+2}, 4, v{T+3}")
            e(f"v_add_u32 v{V_WO+i}, s{S_T0}, v{T+3}")
        e.c("K operand read addresses")
        e(f"v_and_b32 v{T+2}, 15, v{V_L}")
        e(f"v_and_b32 v{T+3}, 6, v{T+2}")
        e(f"v_xor_b32 v{T+3}, v{T+3}, v{G}")
        e(f"v_lshlrev_b32 v{T+3}, 4, v{T+3}")
        e(f"v_mul_u32_u24 v{T+2}, 384, v{T+2}")
        e(f"v_add3_u32 v{V_KA}, v{T+2}, v{T+3}, s{S_RING}")
        e(f"v_xor_b32 v{V_KA+1}, 64, v{V_KA}")
        e.c("transposing read addresses: row = lane>>2, column group = lane&3")
        e(f"v_lshrrev_b32 v{T+2}, 2, v{V_L}")
        e(f"v_and_b32 v{T+3}, 6, v{T+2}")
        e(f"v_lshlrev_b32 v{T+3}, 4, v{T+3}")
        e(f"v_lshl_add_u32 v{T+3}, v{SS}, 3, v{T+3}")
        e(f"v_mul_u32_u24 v{T+4}, 384, v{T+2}")
        e(f"v_add3_u32 v{V_VA}, v{T+4}, v{T+3}, s{S_RING}")
        for q in range(1, 4):
            e(f"v_xor_b32 v{V_VA+q}, {32*q}, v{V_VA}")
        e(f"v_mul_u32_u24 v{T+4}, 320, v{T+2}")
        e(f"v_lshl_add_u32 v{T+4}, v{SS}, 3, v{T+4}")
        e(f"v_add_u32 v{V_WA}, s{S_RING}, v{T+4}")
        e.c("cross-wave exchange addresses")
        e(f"v_mul_u32_u24 v{T+2}, {PROW}, v{SS}")
        e(f"v_lshl_add_u32 v{T+2}, v{G}, 4, v{T+2}")
        e(f"v_add_u32 v{V_PW}, s{S_XL}, v{T+2}")
        e(f"v_mul_u32_u24 v{T+3}, 1366, v0")
        e(f"v_lshrrev_b32 v{T+3}, 16, v{T+3}")
        e(f"v_lshlrev_b32 v{T+3}, 4, v{T+3}")
        e(f"v_lshl_add_u32 v{T+2}, v0, 4, v{T+3}")
        e(f"v_add_u32 v{V_PR}, {PART}, v{T+2}")
        e(f"v_lshl_add_u32 v{T+2}, v0, 3, v{T+3}")
        e(f"v_add_u32 v{V_BW}, {QBF}, v{T+2}")
        e(f"v_mul_u32_u24 v{T+2}, {BROW}, v{SS}")
        e(f"v_add_u32 v{T+2}, {QBF}, v{T+2}")
        e(f"v_lshl_add_u32 v{V_BR}, v{G}, 4, v{T+2}")
        e(f"v_lshl_add_u32 v{V_BO}, v{G}, 3, v{T+2}")
        e(f"v_lshlrev_b32 v{T+2}, 6, v{SS}")
        e(f"v_add_u32 v{V_RR}, {RMAX}, v{T+2}")
        e(f"s_lshl_b32 s{S_T0}, s{S_W}, 4")
        e(f"v_lshl_add_u32 v{T+2}, v{G}, 2, v{V_RR}")
        e(f"v_add_u32 v{V_RW}, s{S_T0}, v{T+2}")
        e.c("x operand")
        e(f"v_mul_u32_u24 v{T+2}, 320, v{SS}")
        e(f"v_lshl_add_u32 v{T+2}, v{G}, 3, v{T+2}")
        e(f"v_add_u32 v{T+2}, s{S_XL}, v{T+2}")
        e.wait_vm(("x", 1))
        for p in range(10):
            e(f"v_lshl_add_u32 v{T+3}, s{S_TP+p}, 5, v{T+2}")
            e(f"ds_read_b64 v[{V_XR+2*p}:{V_XR+2*p+1}], v{T+3}")

    def post_q_setup():
        e = cx.e
        e.c("inbox slot of this head: [batch][tile][head][16 lanes x 16 bytes], lane quad c carries tile 4m+c")
        e(f"s_mul_i32 s{S_T0}, s{S_B}, {INBOX_B}")
        e(f"s_lshl_b32 s{S_T1}, s{S_H}, {7 if half else 8}")
        e(f"s_add_u32 s{S_T0}, s{S_T0}, s{S_T1}")
        e(f"s_sub_u32 s{S_T1}, {INBOX_B}, s{S_T1}")
        srd(e, R_IN, S_WS, S_T0, f"s{S_T1}")
        if half:
            e(f"v_and_b32 v{T+2}, 1, v{G}")
            e(f"v_lshl_add_u32 v{T+2}, v{T+2}, 2, v{SS}")
            e(f"v_lshlrev_b32 v{T+2}, 4, v{T+2}")
            e(f"v_lshrrev_b32 v{T+3}, 1, v{G}")
            e(f"v_lshl_add_u32 v{T+2}, v{T+3}, 12, v{T+2}")
        else:
            e(f"v_lshl_add_u32 v{T+2}, v{G}, 2, v{SS}")
            e(f"v_lshlrev_b32 v{T+2}, 4, v{T+2}")
        e(f"s_mul_i32 s{S_T0}, s{S_W}, {10*8192}")
        e(f"v_add_u32 v{V_ST}, s{S_T0}, v{T+2}")
        e(f"v_and_b32 v{T+2}, 12, v{V_L}")
        e(f"v_lshl_add_u32 v{V_ST}, v{T+2}, 11, v{V_ST}")
        e(f"v_and_b32 v{T+2}, 8, v{V_L}")
        e(f"v_lshl_add_u32 v{V_ST2}, v{T+2}, 24, v{V_ST}")
        for m in range(3):
            e(f"s_mov_b32 s{S_TP+m}, {4*8192*m}")
        e.c("head 0 of each batch publishes this launch's tag in d_debug (lane 0 of wave 3, other lanes out of range)")
        srd(e, R_DBG, S_DBG, None, 256)
        e(f"s_and_b32 s{S_T0}, s{S_B}, 1")
        e(f"s_lshl_b32 s{S_T0}, s{S_T0}, 7")
        e(f"s_lshl_b32 s{S_T1}, s{S_B}, 1")
        e(f"s_and_b32 s{S_T1}, s{S_T1}, 12")
        e(f"s_add_u32 s{S_CO}, s{S_T0}, s{S_T1}")
        e(f"v_xor_b32 v{T+2}, 192, v0")
        e(f"v_or_b32 v{T+2}, s{S_H}, v{T+2}")
        e(f"v_lshlrev_b32 v{V_DO}, 8, v{T+2}")
        e(f"s_or_b32 s{S_T0}, s{S_NC}, 1")
        e(f"v_mov_b32 v{V_TK}, s{S_T0}")
        e.vmop(f"buffer_store_dword v{V_TK}, v{V_DO}, s[{R_DBG}:{R_DBG+3}], s{S_CO} offen sc1", "tagst")
        e.c("unit this wave reduces at the end: 32*wave + head")
        e(f"s_lshl_b32 s{S_CT}, s{S_W}, 5")
        e(f"s_add_u32 s{S_CT}, s{S_CT}, s{S_H}")
        e(f"s_mul_i32 s{S_T0}, s{S_B}, {80 if half else 40}")
        e(f"s_add_u32 s{S_T0}, s{S_T0}, s{S_CT}")
        e(f"s_lshl_b32 s{S_T0}, s{S_T0}, {12 if half else 13}")
        srd(e, R_RD, S_WS, S_T0, 4096 if half else 8192)
        e(f"s_mul_i32 s{S_T0}, s{S_B}, 5120")
        srd(e, R_OUT, S_OUT, S_T0, 5120)
        e(f"v_lshlrev_b32 v{V_IA}, 4, v{V_L}")
        e(f"v_add_u32 v{V_IA+1}, 4096, v{V_IA}")
        e(f"v_add_u32 v{V_UW}, s{S_RING}, v{V_IA}")
        e.c("output byte offset: row = lane&3, column 16*tile + 4*((lane>>2)&3) + {0,2,1,3}[lane>>4]")
        e(f"v_mul_u32_u24 v{V_OA}, 1280, v{SS}")
        e(f"v_and_b32 v{T+2}, {4 if half else 12}, v{V_L}")
        e(f"v_lshl_add_u32 v{V_OA}, v{T+2}, 1, v{V_OA}")
        if half:
            e(f"v_and_b32 v{T+2}, 8, v{V_L}")
            e(f"v_lshl_add_u32 v{V_OA}, v{T+2}, 20, v{V_OA}")
        e(f"v_bfe_u32 v{T+2}, v{V_L}, 4, 1")
        e(f"v_lshl_add_u32 v{V_OA}, v{T+2}, 2, v{V_OA}")
        e(f"v_lshrrev_b32 v{T+2}, 5, v{V_L}")
        e(f"v_lshl_add_u32 v{V_OA}, v{T+2}, 1, v{V_OA}")
        e(f"s_lshl_b32 s{S_T0}, s{S_CT}, {4 if half else 5}")
        e(f"v_add_u32 v{V_OA}, s{S_T0}, v{V_OA}")
        if ncol:
            e.c("column tiles: 48 rows x 128 bytes")
            e(f"v_lshrrev_b32 v{T+2}, 3, v{V_L}")
            e(f"v_and_b32 v{T+3}, 6, v{T+2}")
            e(f"v_and_b32 v{T+4}, 7, v{V_L}")
            e(f"v_xor_b32 v{T+3}, v{T+3}, v{T+4}")
            e(f"v_lshlrev_b32 v{T+3}, 4, v{T+3}")
            e(f"v_mul_u32_u24 v{T+2}, 384, v{T+2}")
            e(f"v_add_u32 v{V_CV}, v{T+2}, v{T+3}")
            e(f"v_add_u32 v{V_CV+1}, {8*384}, v{V_CV}")
            e(f"v_lshrrev_b32 v{T+2}, 2, v{V_L}")
            e(f"v_and_b32 v{T+3}, 6, v{T+2}")
            e(f"v_lshlrev_b32 v{T+3}, 4, v{T+3}")
            e(f"v_lshl_add_u32 v{T+3}, v{SS}, 3, v{T+3}")
            e(f"v_lshlrev_b32 v{T+2}, 7, v{T+2}")
            e(f"v_add3_u32 v{V_CA}, v{T+2}, v{T+3}, s{S_RING}")
            for q in range(1, 4):
                e(f"v_xor_b32 v{V_CA+q}, {32*q}, v{V_CA}")
            e.c("o exchange: [d tile][g][wave][row] x 16 bytes")
            e(f"v_and_b32 v{T+2}, 15, v{V_L}")
            e(f"v_lshlrev_b32 v{T+2}, 4, v{T+2}")
            e(f"v_lshl_add_u32 v{T+2}, v{G}, 8, v{T+2}")
            e(f"v_add_u32 v{V_ER}, {PART}, v{T+2}")
            e(f"s_lshl_b32 s{S_T0}, s{S_W}, 6")
            e(f"v_add_u32 v{V_EW}, s{S_T0}, v{V_ER}")

    def tr_reads(slot):
        for dt in range(12):
            cx.e(f"ds_read_b64_tr_b16 v[{V_RD+2*dt}:{V_RD+2*dt+1}], v{V_VA + (dt & 3)} offset:{slot*SLOT + 128*(dt >> 2)}")

    def pv_mfma(breg, first):
        for dt in range(12):
            a = V_ACC + 4 * dt
            cc = "0" if first else f"v[{a}:{a+3}]"
            cx.e(f"v_mfma_f32_16x16x16_bf16 v[{a}:{a+3}], v[{V_RD+2*dt}:{V_RD+2*dt+1}], v[{breg}:{breg+1}], {cc}")

    def reduce_partials(label, st):
        e = cx.e
        e.c("sum the four waves' partial rows, round to bf16")
        e("s_mov_b32 exec_lo, 0x000f000f")
        e("s_mov_b32 exec_hi, 0x000f000f")
        for dt in range(12):
            a = V_ACC + 4 * dt
            e(f"ds_write_b128 v{V_PW}, v[{a}:{a+3}] offset:{64*dt}")
        e("s_mov_b64 exec, -1")
        if st:
            st.sprinkle(qs1)
        e("s_waitcnt lgkmcnt(0)")
        e("s_barrier")
        tr(label[2] + ".b1")
        e(f"s_cmp_eq_u32 s{S_W}, 3")
        e(f"s_cbranch_scc1 {label}")
        for w in range(4):
            e(f"ds_read_b128 v[{V_RD+4*w}:{V_RD+4*w+3}], v{V_PR} offset:{PWAVE*w}")
        e("s_waitcnt lgkmcnt(0)")
        for r in range(4):
            e(f"v_add_f32 v{V_RD+r}, v{V_RD+r}, v{V_RD+4+r}")
        for r in range(4):
            e(f"v_add_f32 v{V_RD+8+r}, v{V_RD+8+r}, v{V_RD+12+r}")
        for r in range(4):
            e(f"v_add_f32 v{V_RD+r}, v{V_RD+r}, v{V_RD+8+r}")
        e(f"v_cvt_pk_bf16_f32 v{V_RD+4}, v{V_RD}, v{V_RD+1}")
        e(f"v_cvt_pk_bf16_f32 v{V_RD+5}, v{V_RD+2}, v{V_RD+3}")
        e(f"ds_write_b64 v{V_BW}, v[{V_RD+4}:{V_RD+5}]")
        e("s_waitcnt lgkmcnt(0)")
        e(f"{label}:")
        if st:
            st.sprinkle(qs2)
        e("s_barrier")

    def score_post(t):
        e = cx.e
        s = V_S + 4 * t
        a, b = T + 2, T + 3
        for rnd in range(2):
            e(f"v_cvt_pk_bf16_f32 v{a}, v{s}, v{s+1}")
            e(f"v_cvt_pk_bf16_f32 v{b}, v{s+2}, v{s+3}")
            e(f"v_lshlrev_b32 v{s}, 16, v{a}")
            e(f"v_and_b32 v{s+1}, 0xffff0000, v{a}")
            e(f"v_lshlrev_b32 v{s+2}, 16, v{b}")
            e(f"v_and_b32 v{s+3}, 0xffff0000, v{b}")
            if rnd == 0:
                for r in range(4):
                    e(f"v_mul_f32 v{s+r}, s{S_SCALE}, v{s+r}")
        e(f"v_max3_f32 v{V_M}, v{V_M}, v{s}, v{s+1}")
        e(f"v_max3_f32 v{V_M}, v{V_M}, v{s+2}, v{s+3}")

    def softmax(st):
        e = cx.e
        e.c("softmax over the 1024 keys of each query row")
        e("s_nop 7")
        score_post(15)
        st.sprinkle(ss)
        e(f"ds_write_b32 v{V_RW}, v{V_M}")
        e("s_waitcnt lgkmcnt(0)")
        e("s_barrier")
        for i in range(4):
            e(f"ds_read_b128 v[{V_RD+4*i}:{V_RD+4*i+3}], v{V_RR} offset:{16*i}")
        e("s_waitcnt lgkmcnt(0)")
        for i in range(8):
            e(f"v_max3_f32 v{V_M}, v{V_M}, v{V_RD+2*i}, v{V_RD+2*i+1}")
        e(f"v_mul_f32 v{V_M}, s{S_L2E}, v{V_M}")
        st.sprinkle(ss)
        l0, l1 = T + 2, T + 3
        for r in range(64):
            e(f"v_fma_f32 v{V_S+r}, v{V_S+r}, s{S_L2E}, -v{V_M}")
        st.sprinkle(ss)
        for r in range(64):
            e(f"v_exp_f32 v{V_S+r}, v{V_S+r}")
            if r == 31:
                st.sprinkle(ss)
        st.sprinkle(ss)
        e(f"v_add_f32 v{l0}, v{V_S}, v{V_S+1}")
        e(f"v_add_f32 v{l1}, v{V_S+2}, v{V_S+3}")
        for r in range(4, 64, 2):
            e(f"v_add_f32 v{l0}, v{l0}, v{V_S+r}")
            e(f"v_add_f32 v{l1}, v{l1}, v{V_S+r+1}")
        e(f"v_add_f32 v{l0}, v{l0}, v{l1}")
        e(f"ds_write_b32 v{V_RW}, v{l0} offset:{RSUM-RMAX}")
        e("s_waitcnt lgkmcnt(0)")
        e("s_barrier")
        for i in range(4):
            e(f"ds_read_b128 v[{V_RD+4*i}:{V_RD+4*i+3}], v{V_RR} offset:{RSUM-RMAX+16*i}")
        st.sprinkle(ss)
        e("s_waitcnt lgkmcnt(0)")
        for i in range(8):
            e(f"v_add_f32 v{V_RD+i}, v{V_RD+i}, v{V_RD+8+i}")
        for i in range(4):
            e(f"v_add_f32 v{V_RD+i}, v{V_RD+i}, v{V_RD+4+i}")
        e(f"v_add_f32 v{V_RD}, v{V_RD}, v{V_RD+1}")
        e(f"v_add_f32 v{V_RD+2}, v{V_RD+2}, v{V_RD+3}")
        e(f"v_add_f32 v{V_RD}, v{V_RD}, v{V_RD+2}")
        e(f"v_rcp_f32 v{l0}, v{V_RD}")
        e("s_nop 0")
        for r in range(64):
            e(f"v_mul_f32 v{V_S+r}, v{l0}, v{V_S+r}")
        st.sprinkle(ss)
        for r in range(32):
            e(f"v_cvt_pk_bf16_f32 v{V_P+r}, v{V_S+2*r}, v{V_S+2*r+1}")
        e(f"v_mov_b32 v{V_M}, 0xffffff00")
        e("s_nop 0")

    def D_(nt):
        return V_S + 4 * nt
    def out_mfma(nt, j, breg):
        d = D_(nt)
        a = (j * 10 + nt) * 4
        cc = "0" if j == 0 else f"v[{d}:{d+3}]"
        cx.e(f"v_mfma_f32_16x16x32_bf16 v[{d}:{d+3}], a[{a}:{a+3}], v[{breg}:{breg+3}], {cc}")

    def final_projection(js, bregs):
        e = cx.e
        ready = {}
        for nt in range(10):
            m, c = nt >> 2, nt & 3
            d = D_(4 * m)
            ops = []
            if c > 0:
                ops = [f"v_mov_b32_dpp v{d+r}, v{D_(nt)+r} quad_perm:[0,1,2,3] row_mask:0xf bank_mask:{1 << c:#x}" for r in range(4)]
            if c == 3 or nt == 9:
                ops += [f"v_and_or_b32 v{d+r}, v{d+r}, v{V_M}, s{S_TG+r}" for r in range(4)]
                ops.append(f"buffer_store_dwordx4 v[{d}:{d+3}], v{V_ST if m < 2 else V_ST2}, s[{R_IN}:{R_IN+3}], s{S_TP+m} offen sc1")
            ready[nt] = ops
        pend, since = [], {}
        def tick():
            for k in since:
                since[k] += 1
        def promote():
            for k in sorted(ready):
                if since.get(k, -1) >= 8 and since.get(k & ~3, -1) >= 8:
                    pend.extend(ready.pop(k))
                else:
                    break
        per_gap = 1 if len(js) > 2 else 2
        for nt in range(10):
            for j in js:
                out_mfma(nt, j, bregs[j])
                tick()
                if j == js[-1]:
                    since[nt] = 0
                promote()
                for _ in range(per_gap):
                    if pend:
                        e(pend.pop(0)); tick()
        while pend or ready:
            promote()
            if pend:
                e(pend.pop(0)); tick()
            elif ready:
                k = min(ready)
                need = 8 - min(since[k], since[k & ~3])
                e(f"s_nop {need - 1}")
                for _ in range(need):
                    tick()

    def stage(st, m):
        e = cx.e
        e("s_mov_b32 exec_lo, 0x000f000f")
        e("s_mov_b32 exec_hi, 0x000f000f")
        e("s_nop 2")
        for q in range(4):
            a = V_ACC + 4 * (4 * m + q)
            e(f"ds_write_b128 v{V_EW}, v[{a}:{a+3}] offset:{1024*(4*m+q)}")
        e("s_mov_b64 exec, -1")
        st.sprinkle(1)
        e("s_waitcnt lgkmcnt(0)")
        e("s_barrier")
        if m == 2:
            tr("o.b1")
        for q in range(4):
            e(f"ds_read_b128 v[{V_RD+4*q}:{V_RD+4*q+3}], v{V_ER} offset:{1024*(4*m+q)}")
        for q in range(4):
            e(f"s_waitcnt lgkmcnt({3-q})")
            for r in range(4 * q, 4 * q + 4):
                e(f"v_add_f32_dpp v{V_RD+r}, v{V_RD+r}, v{V_RD+r} row_ror:8 row_mask:0xf bank_mask:0xf")
        for r in range(16):
            e(f"v_add_f32_dpp v{V_RD+r}, v{V_RD+r}, v{V_RD+r} row_ror:4 row_mask:0xf bank_mask:0xf")
        for r in range(8):
            e(f"v_cvt_pk_bf16_f32 v{V_QB+r}, v{V_RD+2*r}, v{V_RD+2*r+1}")
        st.sprinkle(1)
        e("s_nop 0")
        bregs = {2 * m: V_QB, 2 * m + 1: V_QB + 4}
        if m < 2:
            for j in (2 * m, 2 * m + 1):
                for nt in range(10):
                    out_mfma(nt, j, bregs[j])
        else:
            tr("obr")
            final_projection([4, 5], bregs)

    def consume(st, tl):
        e = cx.e
        kind, t = tl
        if tl in st.park:
            st.stage_slot(tl)
            for i in range(6):
                a = st.park[tl] + 4 * i
                e(f"ds_write_b128 v{V_UW}, a[{a}:{a+3}] offset:{st.slot[tl]*SLOT + 1024*i}")
        sl = st.slot[tl]
        done.add(tl)
        tr_begin()
        if kind == "K":
            for j in range(6):
                e(f"ds_read_b128 v[{V_RD+4*j}:{V_RD+4*j+3}], v{V_KA + (j & 1)} offset:{sl*SLOT + 128*(j >> 1)}")
            if t > 0:
                e("s_nop 1")
                score_post(t - 1)
            e("s_waitcnt lgkmcnt(0)")
            tr_end(f"K{t}")
            s = V_S + 4 * t
            for j in range(6):
                cc = "0" if j == 0 else f"v[{s}:{s+3}]"
                e(f"v_mfma_f32_16x16x32_bf16 v[{s}:{s+3}], v[{V_RD+4*j}:{V_RD+4*j+3}], v[{V_QB+4*j}:{V_QB+4*j+3}], {cc}")
            st.release(tl, nfl)
            if t == 15:
                softmax(st)
                tr("sm")
        elif kind == "V":
            tr_reads(sl)
            e("s_waitcnt lgkmcnt(0)")
            tr_end(f"V{t}")
            pv_mfma(V_P + 2 * t, t == 0)
            st.release(tl, nfl)
        elif kind == "C":
            m, t0 = t
            def rreg(u, q):
                if not k32:
                    return V_RD + 2 * (4 * u + q)
                return V_RD + 4 * q + 2 * u if u < 2 else V_RD + 16 + 2 * q
            order = [(u, q) for u in range(3) for q in range(4)]
            if k32:
                order = [(u, q) for q in range(4) for u in range(2)] + [(2, q) for q in range(4)]
            for u, q in order:
                r = rreg(u, q)
                e(f"ds_read_b64_tr_b16 v[{r}:{r+1}], v{V_CA+q} offset:{sl*SLOT + 2048*u}")
            name = f"V{nplain + kv[16+nplain:].index(tl)}"
            last_tile = tl == seq[-1]
            if not (k32 and last_tile and not trace):
                e("s_waitcnt lgkmcnt(0)")
                tr_end(name)
                st.release(tl, nfl)
            if k32:
                for q in range(4):
                    if last_tile and not trace:
                        e(f"s_waitcnt lgkmcnt({10 - 2*q})")
                    r = rreg(0, q)
                    a = V_ACC + 4 * (4 * m + q)
                    b = V_P + 2 * t0
                    e(f"v_mfma_f32_16x16x32_bf16 v[{a}:{a+3}], v[{r}:{r+3}], v[{b}:{b+3}], v[{a}:{a+3}]")
                if not (last_tile and not trace):
                    e("s_nop 2")
                for q in range(4):
                    if last_tile and not trace:
                        e(f"s_waitcnt lgkmcnt({3 - q})")
                    r = rreg(2, q)
                    a = V_ACC + 4 * (4 * m + q)
                    b = V_P + 2 * (t0 + 2)
                    e(f"v_mfma_f32_16x16x16_bf16 v[{a}:{a+3}], v[{r}:{r+1}], v[{b}:{b+1}], v[{a}:{a+3}]")
            else:
                for u, q in order:
                    r = rreg(u, q)
                    a = V_ACC + 4 * (4 * m + q)
                    b = V_P + 2 * (t0 + u)
                    e(f"v_mfma_f32_16x16x16_bf16 v[{a}:{a+3}], v[{r}:{r+1}], v[{b}:{b+1}], v[{a}:{a+3}]")
            if t0 == 13:
                assert not any(x[0] == "O" and x[1] < 4 * m + 4 for x in seq[seq.index(tl):])
                stage(st, m)
        elif kind == "Q":
            tr_reads(sl)
            e("s_waitcnt lgkmcnt(0)")
            tr_end(f"Q{t}")
            st.busy.discard(sl)
            st.top_up(nflq if t < 8 else nflt)
            pv_mfma(V_XR + 2 * t, t == 0)
        else:
            j, half = t >> 1, t & 1
            assert all(a >= 40 * j + 40 or p in done for p, a in st.park.items())
            for nt in range(10):
                a = (j * 10 + nt) * 4 + 2 * half
                e(f"ds_read_b64_tr_b16 a[{a}:{a+1}], v{V_WA} offset:{sl*SLOT + 32*nt}")
            e("s_waitcnt lgkmcnt(0)")
            tr_end(f"O{t & ~1}")
            st.release(tl, nfl)
        done.add(tl)

    def group(gi):
        done.clear()
        st = Stream(*plans[gi])
        st.next = 6
        st.busy.add(st.slot[("Q", 0)])
        cx.e.vm = list(first_vm)
        st.top_up(nflq)
        late_setup()
        for p in range(10):
            st.wait_tile(("Q", p), nflq)
            consume(st, ("Q", p))
        reduce_partials(f"L_qred_{gi}", st)
        for j in range(6):
            cx.e(f"ds_read_b128 v[{V_QB+4*j}:{V_QB+4*j+3}], v{V_BR} offset:{64*j}")
        cx.e(f"v_mov_b32 v{V_M}, 0xff800000")
        st.sprinkle()
        cx.e("s_waitcnt lgkmcnt(0)")
        tr("qrdy")
        for pos in range(MERGE):
            tl = seq[pos]
            cx.e.c(f"consume {tl[0]}{tl[1]}")
            st.wait_tile(tl, nfl)
            consume(st, tl)
            if pos == 0:
                post_q_setup()
        return st

    done = set()
    head = cx.e
    for gi in range(1, len(groups)):
        head(f"s_cmp_eq_u32 s{S_G}, {gi}")
        head(f"s_cbranch_scc1 L_grp_{gi}")
    paths = []
    for gi in range(len(groups)):
        cx.e = E()
        paths.append((group(gi), cx.e))
    X = max(st.next for st, _ in paths)
    for st, em in paths:
        cx.e = em
        while st.next < X:
            st.gated(nfl)
        em.wait_vm("tagst")
    n = max(len(em.vm) for _, em in paths)
    for st, em in paths:
        assert st.busy == paths[0][0].busy and st.flat[X - n:] == paths[0][0].flat[X - n:]
    e = cx.e = head
    for gi, (st, em) in enumerate(paths):
        if gi:
            e(f"L_grp_{gi}:")
        e.lines += em.lines
        if gi < len(paths) - 1:
            e("s_branch L_merge")
    e("L_merge:")
    st = paths[0][0]
    st.park = {}
    e.vm = list(st.flat[X - n:X])

    hooks = {}
    def h_tagload():
        e.vmop(f"buffer_load_dword v{V_TK}, off, s[{R_DBG}:{R_DBG+3}], s{S_CO} sc1", "tagld")
        hooks[seq.index(st.next_tile())] = h_tagcheck
    def h_tagcheck():
        assert "tagld" not in e.vm
        e(f"s_mov_b32 s{S_SPIN}, {spin_max}")
        e("L_spin:")
        e(f"v_readfirstlane_b32 s{S_T0}, v{V_TK}")
        e(f"s_sub_u32 s{S_SPIN}, s{S_SPIN}, 1")
        e("s_cbranch_scc1 L_spin_done")
        e(f"s_cmp_lg_u32 s{S_T0}, 0")
        e("s_cbranch_scc1 L_spin_done")
        e(f"buffer_load_dword v{V_TK}, off, s[{R_DBG}:{R_DBG+3}], s{S_CO} sc1")
        e("s_waitcnt vmcnt(0)")
        e("s_branch L_spin")
        e("L_spin_done:")
        for r in range(4):
            e(f"s_bfe_u32 s{S_TG+r}, s{S_T0}, {0x80000 + 8*r:#x}")
    hooks[tag_pos if tag_pos else seq.index(("V", 4))] = h_tagload
    for pos in range(MERGE, len(seq)):
        tl = seq[pos]
        if pos == len(seq) - tail_from:
            e.c("the rest of the kernel sits in one 4 KiB code page")
            e("s_branch L_tailpage")
            e(".p2align 12")
            e("L_tailpage:")
        e.c(f"consume {tl[0]}{tl[1]}")
        st.wait_tile(tl, nfl)
        if pos in hooks:
            hooks.pop(pos)()
        consume(st, tl)
    assert st.next == len(st.flat) and not hooks, hooks

    if not ncol:
        e.c("output projection of this head")
        reduce_partials("L_ored", None)
        tr_begin()
        for j in range(6):
            e(f"ds_read2_b64 v[{V_QB+4*j}:{V_QB+4*j+3}], v{V_BO} offset0:{8*j} offset1:{8*j+4}")
        e("s_waitcnt lgkmcnt(0)")
        tr_end("obr")
        final_projection(list(range(6)), {j: V_QB + 4 * j for j in range(6)})
    tr("sent")
    NL = 4 if half else 8
    e(f"s_cmp_ge_u32 s{S_CT}, {80 if half else 40}")
    e("s_cbranch_scc1 L_fin")
    e.c("reduce one 16-column tile over the 32 heads")
    e(f"s_mov_b32 s{S_SPIN}, {spin_max}")
    D = V_S
    A = V_RD
    e("L_poll:")
    for i in range(NL):
        e(f"buffer_load_dwordx4 v[{D+4*i}:{D+4*i+3}], v{V_IA + (i >> 2)}, s[{R_RD}:{R_RD+3}], 0 offen offset:{1024*(i & 3)} sc1")
    for i in range(NL):
        e(f"s_waitcnt vmcnt({NL-1-i})")
        d = D + 4 * i
        for r in range(4):
            e(f"v_xor_b32 v{d+r}, s{S_TG+r}, v{d+r}")
        if i == 0:
            e(f"v_or3_b32 v{A+4}, v{d}, v{d+1}, v{d+2}")
            e(f"v_or_b32 v{A+4}, v{A+4}, v{d+3}")
        else:
            e(f"v_or3_b32 v{A+4}, v{A+4}, v{d}, v{d+1}")
            e(f"v_or3_b32 v{A+4}, v{A+4}, v{d+2}, v{d+3}")
            for r in range(4):
                e(f"v_add_f32 v{A+r}, v{A+r if i > 1 else D+r}, v{d+r}")
    e(f"v_and_b32 v{A+4}, 0xff, v{A+4}")
    e(f"v_cmp_ne_u32 vcc, 0, v{A+4}")
    e(f"s_sub_u32 s{S_SPIN}, s{S_SPIN}, 1")
    e("s_cbranch_scc1 L_ready")
    e("s_cbranch_vccnz L_poll")
    e("L_ready:")
    e(f"v_permlane32_swap_b32 v{A}, v{A+1}")
    e(f"v_permlane32_swap_b32 v{A+2}, v{A+3}")
    e("s_nop 0")
    e(f"v_add_f32 v{A}, v{A}, v{A+1}")
    e(f"v_add_f32 v{A+2}, v{A+2}, v{A+3}")
    e("s_nop 1")
    e(f"v_permlane16_swap_b32 v{A}, v{A+2}")
    e("s_nop 0")
    e(f"v_add_f32 v{A}, v{A}, v{A+2}")
    if half:
        e("s_nop 1")
        e(f"v_add_f32_dpp v{A}, v{A}, v{A} row_ror:8 row_mask:0xf bank_mask:0xf")
    e(f"v_cvt_pk_bf16_f32 v{A}, v{A}, v{A}")
    e(f"buffer_store_short v{A}, v{V_OA}, s[{R_OUT}:{R_OUT+3}], 0 offen")
    e("L_fin:")
    if trace:
        e("s_waitcnt vmcnt(0)")
        e("s_memtime s[94:95]")
        tr("end")
        e("s_sub_u32 s94, s94, s96")
        e(f"v_writelane_b32 v{V_TR}, s94, 61")
        e(f"s_getreg_b32 s{S_T0}, hwreg(HW_REG_XCC_ID)")
        e(f"v_writelane_b32 v{V_TR}, s{S_T0}, 63")
        e(f"s_lshl_b32 s{S_T0}, s2, 2")
        e(f"s_add_u32 s{S_T0}, s{S_T0}, s{S_W}")
        e(f"s_lshl_b32 s{S_T0}, s{S_T0}, 8")
        e(f"s_add_u32 s{S_T0}, s{S_T0}, 0x2000000")
        srd(e, R_OUT, S_WS, S_T0, 256)
        e(f"v_lshlrev_b32 v{T+4}, 2, v{V_L}")
        e(f"buffer_store_dword v{V_TR}, v{T+4}, s[{R_OUT}:{R_OUT+3}], 0 offen")
        assert len(TRACE_NAMES) <= 60, len(TRACE_NAMES)
    e("L_end:")
    e("s_endpgm")

    return f"""; Fused q-projection + sliding-window attention + output projection, 256 workgroups = (batch, head).
; @launch grid=(256,1,1) block=(256,1,1) lds={LDS_BYTES}
.amdgcn_target "amdgcn-amd-amdhsa--gfx950"
.text
.globl {KN}
.p2align 12
.p2align 8
.type {KN},@function
{e.text()}
.section .rodata,"a"
.p2align 6
.amdhsa_kernel {KN}
  .amdhsa_next_free_vgpr 496
  .amdhsa_next_free_sgpr 102
  .amdhsa_accum_offset 256
  .amdhsa_group_segment_fixed_size 0
  .amdhsa_kernarg_size 64
  .amdhsa_user_sgpr_count 2
  .amdhsa_user_sgpr_kernarg_segment_ptr 1
  .amdhsa_system_sgpr_workgroup_id_x 1
.end_amdhsa_kernel
"""

if __name__ == "__main__":
    kw = eval("dict(" + (sys.argv[1] if len(sys.argv) > 1 else "") + ")")
    sys.stdout.write(gen(**kw))
```

```python
import struct, sys

KN = "standalone__sliding_block_cached__sampling_kernel"
TRACE_NAMES = []

def f32(x):
    return struct.unpack("<I", struct.pack("<f", x))[0]

class E:
    def __init__(self):
        self.lines = []
        self.vm = []
    def __call__(self, s=""):
        self.lines.append("    " + s if s and not s.endswith(":") else s)
    def c(self, s):
        self.lines.append("    ; " + s)
    def vmop(self, s, tag):
        self(s)
        self.vm.append(tag)
    def wait_vm(self, tag):
        idx = max([i for i, t in enumerate(self.vm) if t == tag], default=-1)
        if idx < 0:
            return
        n = len(self.vm) - 1 - idx
        self(f"s_waitcnt vmcnt({min(n, 63)})")
        self.vm = self.vm[idx + 1:]
    def text(self):
        return "\n".join(self.lines) + "\n"

SLOT = 6144
NSLOT = 6
RING = SLOT * NSLOT
MISC = 4 * RING
PART = MISC
PROW = 784
PWAVE = 4 * PROW
BROW = 400
QBF = MISC + 4 * PWAVE
RMAX = QBF + 4 * BROW
RSUM = RMAX + 256
LDS_BYTES = RSUM + 256

INBOX_B = 40 * 8192

S_W = 3
S_X, S_K, S_V, S_WQ, S_WO, S_OUT, S_DBG, S_WS = 4, 6, 8, 10, 12, 14, 16, 18
R_K, R_V, R_WQ, R_WO, R_X, R_IN, R_OUT, R_DBG = 20, 24, 28, 32, 36, 40, 44, 48
R_RD = 28
S_B, S_H, S_RING, S_OFF, S_T0, S_T1 = 52, 53, 54, 55, 56, 57
S_KW = 58
S_QW = 59
S_TP = 60
S_TG = 64
S_SCALE, S_L2E = 70, 71
S_CT = 72
S_SPIN = 73
S_XL = 74
S_G = 75
S_NC = 76
S_CO = 78
S_PK = 79
R_PV = 36
S_TR = 100

V_L = 1
V_KV = 2
V_WQ = 8
V_WO = 14
V_KA = 19
V_VA = 21
V_WA = 25
V_PW = 26
V_PR = 27
V_BW = 28
V_BR = 29
V_BO = 30
V_RW = 31
V_RR = 32
V_M = 33
V_T = 34
V_ST = 39
V_RD = 40
V_ACC = 64
V_QB = 112
V_S = 136
V_P = 200
V_XR = 232
V_IA = 232
V_OA = 234
V_UW = 235
V_CV = 236
V_CA = 238
V_EW = 242
V_ER = 243
V_TK = 252
V_DO = 253
V_TR = 254
V_XO = 255
V_ST2 = 255

def srd(e, r, base, off, nbytes):
    if off is None:
        e(f"s_mov_b32 s{r}, s{base}")
        e(f"s_and_b32 s{r+1}, s{base+1}, 0xffff")
    else:
        e(f"s_add_u32 s{r}, s{base}, s{off}")
        e(f"s_addc_u32 s{r+1}, s{base+1}, 0")
        e(f"s_and_b32 s{r+1}, s{r+1}, 0xffff")
    e(f"s_mov_b32 s{r+2}, {nbytes}")
    e(f"s_mov_b32 s{r+3}, 0x20000")

def nloads(tile):
    return 5 if tile[0] == "O" else 6

def gen(groups=((0, 0, 10), (3, 0, 2), (7, 2, 2), (10, 2, 1)), gmap=(0, 1, 2, 3, 0, 1, 2, 3), rots=(0, 2, 3, 4, 5, 7, 8, 9),
        nfl=11, nflq=11, nflt=10, backlog=2, pbacklog=4, wo_at=(13, 14, 16, 17, 19, 20, 22, 23, 25, 26, 28, 29), f_kv="nt", f_wq="", f_wo="",
        krot=(32, 0, 16), kw=1, krt=0, ncol=6, trace=0, spin_max=100000, tail_from=2, qs1=3, qs2=3, tag_pos=None, ss=2, half=1, k32=1, f_st='sc1', f_poll='sc1', f_out='', warm=0, helps=(), f_last='', hx=1, hpos=2, deflast=(), nfle=None, touch=0, tshift=15, fast=1, ackwait=1, dbgtime=None):
    del TRACE_NAMES[:]
    T = V_T
    G, SS = T, T + 1

    class Ctx:
        pass
    cx = Ctx()
    cx.e = E()

    def tr_begin():
        if trace:
            cx.e(f"s_memrealtime s[{S_TR}:{S_TR+1}]")
    def tr_end(name):
        if dbgtime == name:
            cx.e("s_memrealtime s[90:91]")
        if trace:
            if name not in TRACE_NAMES:
                TRACE_NAMES.append(name)
            cx.e(f"v_writelane_b32 v{V_TR}, s{S_TR}, {TRACE_NAMES.index(name)}")
    def tr(name):
        if dbgtime == name:
            cx.e("s_memrealtime s[90:91]")
        if trace and not (trace == 2 and name in ("o.b1", "obr", "sent")) and not (trace == 3 and name in ("o.b1", "obr")):
            tr_begin()
            cx.e("s_waitcnt lgkmcnt(0)")
            tr_end(name)

    def nibble(dst, table):
        packed = sum(r << (4 * i) for i, r in enumerate(table))
        cx.e(f"s_lshr_b32 s{dst}, {packed:#x}, s{S_T1}")
        cx.e(f"s_and_b32 s{dst}, s{dst}, 15")

    nplain = 16 - ncol
    kv = [("K", t) for t in range(16)] + [("V", t) for t in range(nplain)]
    kv += [("C", (m, t0)) for m in range(3) for t0 in range(nplain, 16, 3)]
    if wo_at is None:
        wo_at = list(range(7, 31, 2))
    assert len(wo_at) == 12
    seq = []
    wo_i = 0
    for n, tl in enumerate(kv):
        seq.append(tl)
        while wo_i < 12 and wo_at[wo_i] == n + 1:
            seq.append(("O", wo_i)); wo_i += 1
    assert wo_i == 12
    main_slots = {tl: n % NSLOT for n, tl in enumerate(seq)}

    def group_plan(npre, npost, nq0):
        nring = min(npre, 4)
        nq = NSLOT - nring
        nq0 = min(nq0, 10)
        assert npre == 0 or nq0 <= nq
        order = [("Q", p) for p in range(nq0)] + seq[:npre] + [("Q", p) for p in range(nq0, 10)] + seq[npre:]
        slots = dict(main_slots)
        slots.update({("Q", p): nring + (p - (10 - nq)) % nq for p in range(10)})
        parked = seq[nring:npre + npost] if npre > nring or npost else []
        assert all(t[0] == "K" for t in seq[:npre + npost])
        park = {tl: 240 - 24 * (i + 1) for i, tl in enumerate(parked)}
        return order, slots, park
    plans = [group_plan(*g) for g in groups]
    MERGE = max(6, max(g[0] + g[1] for g in groups) + 1)

    e = cx.e
    e(f"{KN}:")
    e("s_cmp_ge_u32 s2, 256")
    e("s_cbranch_scc1 L_end")
    tr_begin()
    if trace:
        e("s_memtime s[96:97]")
    e(f"s_memrealtime s[{S_NC}:{S_NC+1}]")
    e("s_load_dwordx16 s[4:19], s[0:1], 0")
    e(f"v_lshrrev_b32 v{T}, 6, v0")
    e(f"v_and_b32 v{V_L}, 63, v0")
    e(f"v_readfirstlane_b32 s{S_W}, v{T}")
    if trace:
        e(f"v_mov_b32 v{V_TR}, 0")
    e.c("head = 4*(wg&7) + ((wg>>3)&3), batch = wg>>5")
    e(f"s_and_b32 s{S_H}, s2, 7")
    e(f"s_lshl_b32 s{S_H}, s{S_H}, 2")
    e(f"s_bfe_u32 s{S_T0}, s2, 0x20003")
    e(f"s_add_u32 s{S_H}, s{S_H}, s{S_T0}")
    e(f"s_lshr_b32 s{S_B}, s2, 5")
    e(f"s_mul_i32 s{S_RING}, s{S_W}, {RING}")
    e(f"s_mul_i32 s{S_QW}, s{S_W}, {160*12288}")
    e.c("first key tile of this wave, rotated per workgroup")
    e(f"s_mul_i32 s{S_KW}, s{S_B}, {krot[0]}")
    e(f"s_and_b32 s{S_T1}, s2, 7")
    e(f"s_mul_i32 s{S_T1}, s{S_T1}, {krot[1]}")
    e(f"s_mul_i32 s{S_T0}, s{S_T0}, {krot[2]}")
    e(f"s_add_u32 s{S_KW}, s{S_KW}, s{S_T1}")
    e(f"s_add_u32 s{S_KW}, s{S_KW}, s{S_T0}")
    e(f"s_mul_i32 s{S_T0}, s{S_W}, {kw}")
    e(f"s_add_u32 s{S_KW}, s{S_KW}, s{S_T0}")
    e.c("per-batch start order, first wq tile and its LDS slot")
    e(f"s_lshl_b32 s{S_T1}, s{S_B}, 2")
    nibble(S_G, gmap)
    nibble(S_TP, rots)
    nibble(S_SPIN, [plans[g][1][("Q", 0)] for g in gmap])
    e(f"s_mul_i32 s{S_SPIN}, s{S_SPIN}, {SLOT}")
    e(f"s_add_u32 s{S_SPIN}, s{S_SPIN}, s{S_RING}")
    for p in range(1, 10):
        e(f"s_add_u32 s{S_TP+p}, s{S_TP+p-1}, 1")
        e(f"s_cmp_eq_u32 s{S_TP+p}, 10")
        e(f"s_cselect_b32 s{S_TP+p}, 0, s{S_TP+p}")
    e.c("DMA source offsets (16-byte chunks XOR-swizzled inside each 128-byte line)")
    e(f"v_lshrrev_b32 v{T}, 3, v{V_L}")
    e(f"v_and_b32 v{T+1}, 7, v{V_L}")
    for i in range(6):
        e(f"v_add_u32 v{T+2}, {8*i}, v{T}")
        e(f"v_mul_u32_u24 v{T+3}, 43, v{T+2}")
        e(f"v_lshrrev_b32 v{T+3}, 7, v{T+3}")
        e(f"v_and_b32 v{T+4}, 6, v{T+3}")
        e(f"v_xor_b32 v{T+4}, v{T+4}, v{T+1}")
        e(f"v_lshlrev_b32 v{T+4}, 4, v{T+4}")
        e(f"v_lshl_add_u32 v{V_KV+i}, v{T+2}, 7, v{T+4}")
        e(f"v_mul_u32_u24 v{T+3}, {12288-384}, v{T+3}")
        e(f"v_add_u32 v{V_WQ+i}, v{V_KV+i}, v{T+3}")
    e(f"v_lshrrev_b32 v{G}, 4, v{V_L}")
    e(f"v_and_b32 v{SS}, 3, v{V_L}")
    e.c("x staging: 80 chunks of 16 bytes, LDS image [row][320 bytes]")
    e(f"v_mul_u32_u24 v{T+2}, 205, v{V_L}")
    e(f"v_lshrrev_b32 v{T+2}, 12, v{T+2}")
    e(f"v_mul_u32_u24 v{T+2}, {1280-320}, v{T+2}")
    e(f"v_lshl_add_u32 v{T+2}, v{V_L}, 4, v{T+2}")
    e(f"s_mul_i32 s{S_T0}, s{S_W}, 320")
    e(f"v_add_u32 v{V_XO}, s{S_T0}, v{T+2}")
    e(f"v_lshlrev_b32 v{T+2}, 4, v{V_L}")
    e(f"v_add_u32 v{T+2}, {3*1280 + 64}, v{T+2}")
    e(f"v_add_u32 v{V_TK}, s{S_T0}, v{T+2}")
    e(f"s_mul_i32 s{S_XL}, s{S_W}, {PWAVE}")
    e(f"s_add_u32 s{S_XL}, s{S_XL}, {PART}")
    e(f"s_mul_i32 s{S_OFF}, s{S_TP}, {16*12288}")
    e(f"s_add_u32 s{S_OFF}, s{S_OFF}, s{S_QW}")
    e("s_waitcnt lgkmcnt(0)")
    tr_end("start")
    e.c("first wq tile and the x operand")
    e(f"s_mul_i32 s{S_T0}, s{S_B}, 5120")
    srd(e, R_X, S_X, S_T0, 5120)
    e(f"s_mov_b32 m0, s{S_XL}")
    e("s_nop 0")
    e.vmop(f"buffer_load_dwordx4 v{V_XO}, s[{R_X}:{R_X+3}], 0 offen lds", ("x", 0))
    e(f"s_add_u32 m0, s{S_XL}, 1024")
    e("s_mov_b64 exec, 0xffff")
    e.vmop(f"buffer_load_dwordx4 v{V_TK}, s[{R_X}:{R_X+3}], 0 offen lds", ("x", 1))
    e("s_mov_b64 exec, -1")
    e(f"s_mul_i32 s{S_T0}, s{S_H}, 384")
    e(f"s_sub_u32 s{S_T1}, {640*12288}, s{S_T0}")
    srd(e, R_WQ, S_WQ, S_T0, f"s{S_T1}")
    for i in range(6):
        e(f"s_add_u32 m0, s{S_SPIN}, {i*1024}")
        e("s_nop 0")
        e.vmop(f"buffer_load_dwordx4 v{V_WQ+i}, s[{R_WQ}:{R_WQ+3}], s{S_OFF} offen {f_wq} lds", (("Q", 0), i))
    e(f"s_lshl_b32 s{S_T0}, s{S_B}, 5")
    e(f"s_add_u32 s{S_T0}, s{S_T0}, s{S_H}")
    e(f"s_mul_i32 s{S_T0}, s{S_T0}, 1572864")
    e(f"s_add_u32 s{S_T0}, s{S_T0}, {3072*384}")
    srd(e, R_K, S_K, S_T0, 393216)
    srd(e, R_V, S_V, S_T0, 393216)
    if krt:
        e(f"s_add_u32 s80, s{S_WS}, 0x3000000")
        e(f"s_addc_u32 s81, s{S_WS+1}, 0")
        e("s_load_dwordx4 s[84:87], s[80:81], 0")
        e("s_waitcnt lgkmcnt(0)")
        e(f"s_mul_i32 s{S_KW}, s{S_B}, s84")
        e(f"s_and_b32 s{S_T1}, s2, 7")
        e(f"s_mul_i32 s{S_T1}, s{S_T1}, s85")
        e(f"s_bfe_u32 s{S_T0}, s2, 0x20003")
        e(f"s_mul_i32 s{S_T0}, s{S_T0}, s86")
        e(f"s_add_u32 s{S_KW}, s{S_KW}, s{S_T1}")
        e(f"s_add_u32 s{S_KW}, s{S_KW}, s{S_T0}")
        e(f"s_mul_i32 s{S_T0}, s{S_W}, s87")
        e(f"s_add_u32 s{S_KW}, s{S_KW}, s{S_T0}")
        e("s_cmp_eq_u32 s87, 1")
        e("s_cselect_b32 s88, 4, 1")
    first_vm = list(e.vm)

    def key_tile_offset(t, extra=0, S_KW=S_KW):
        e = cx.e
        if krt:
            e(f"s_mul_i32 s{S_OFF}, s88, {t}")
            e(f"s_add_u32 s{S_OFF}, s{S_KW}, s{S_OFF}")
        else:
            e(f"s_add_u32 s{S_OFF}, s{S_KW}, {(4 if kw == 1 else 1)*t}")
        e(f"s_and_b32 s{S_OFF}, s{S_OFF}, 63")
        e(f"s_mul_i32 s{S_OFF}, s{S_OFF}, {SLOT}")
        if extra:
            e(f"s_add_u32 s{S_OFF}, s{S_OFF}, {extra}")

    def issue_one(tile, slot, park, i):
        e = cx.e
        kind, t = tile
        if kind in "KV":
            r, vo, fl = (R_K if kind == "K" else R_V), V_KV + i, f_kv
            if i == 0:
                key_tile_offset(t)
        elif kind == "C":
            r, vo, fl = R_V, V_CV + (i & 1), (f_last if any(t in h_ for h_ in helps) or t in deflast else f_kv)
            if i & 1 == 0:
                key_tile_offset(t[1] + (i >> 1), 128 * t[0])
        elif kind == "Q":
            r, vo, fl = R_WQ, V_WQ + i, f_wq
            if i == 0:
                e(f"s_mul_i32 s{S_OFF}, s{S_TP+t}, {16*12288}")
                e(f"s_add_u32 s{S_OFF}, s{S_OFF}, s{S_QW}")
        else:
            r, vo, fl = R_WO, V_WO + i, f_wo
            if i == 0:
                e(f"s_mov_b32 s{S_OFF}, {t*16*1280}")
        if park is not None:
            a = park + 4 * i
            e.vmop(f"buffer_load_dwordx4 a[{a}:{a+3}], v{vo}, s[{r}:{r+3}], s{S_OFF} offen {fl}", (tile, i))
        else:
            e(f"s_add_u32 m0, s{S_RING}, {slot*SLOT + i*1024}")
            e("s_nop 0")
            e.vmop(f"buffer_load_dwordx4 v{vo}, s[{r}:{r+3}], s{S_OFF} offen {fl} lds", (tile, i))

    class Stream:
        def __init__(self, order, slots, park):
            self.flat = [(tl, i) for tl in order for i in range(nloads(tl))]
            self.slot = dict(slots)
            self.park = park
            self.next = 0
            self.busy = set()
        def can_issue(self):
            if self.next >= len(self.flat):
                return False
            tl, i = self.flat[self.next]
            if i > 0 or tl in self.park:
                return True
            if tl[0] != "Q" and any(p not in done for p in self.park) and len(self.busy) >= NSLOT - 1 and seq.index(tl) >= 4:
                return False
            return self.slot[tl] not in self.busy
        def issue_next(self):
            tl, i = self.flat[self.next]
            if i == 0 and tl not in self.park:
                assert self.slot[tl] not in self.busy
                self.busy.add(self.slot[tl])
            issue_one(tl, self.slot[tl], self.park.get(tl), i)
            self.next += 1
        def stage_slot(self, tl):
            later = []
            for t2, i in self.flat[self.next:]:
                if i == 0 and t2 not in self.park and self.slot[t2] not in later:
                    later.append(self.slot[t2])
            free = [s for s in range(NSLOT) if s not in self.busy]
            free.sort(key=lambda s: -(later.index(s) if s in later else 99))
            self.slot[tl] = free[0]
            self.busy.add(free[0])
        def loads(self):
            return [t for t in cx.e.vm if not isinstance(t, str)]
        def gated(self, n):
            vm = self.loads()
            if len(vm) >= n:
                cx.e.wait_vm(vm[len(vm) - n])
            self.issue_next()
        def top_up(self, n):
            while len(self.loads()) < n and self.can_issue():
                self.issue_next()
        def wait_tile(self, tl, n):
            last = (tl, nloads(tl) - 1)
            while self.flat.index(last) >= self.next:
                self.gated(n)
            while last in cx.e.vm:
                vm = self.loads()
                if self.can_issue() and (len(vm) < n or vm.index(last) >= len(vm) - n):
                    if len(vm) < n:
                        self.top_up(n)
                    else:
                        self.gated(n)
                else:
                    cx.e.wait_vm(last)
        def release(self, tl, n):
            self.busy.discard(self.slot[tl])
            if len(self.loads()) < n:
                self.top_up(n)
            else:
                for _ in range(pbacklog if tl in self.park else backlog):
                    if self.can_issue():
                        self.gated(n)
        def sprinkle(self, k=1):
            for _ in range(k):
                if self.can_issue():
                    self.issue_next()
        def next_tile(self):
            tl, i = self.flat[self.next]
            if i > 0:
                tl = self.flat[self.next + nloads(tl) - i][0]
            return tl

    def late_setup():
        e = cx.e
        e.c("remaining address registers and descriptors")
        e(f"s_mov_b32 s{S_SCALE}, {f32(192 ** -0.5):#x}")
        e(f"s_mov_b32 s{S_L2E}, {f32(1.4426950408889634):#x}")
        e(f"s_mul_i32 s{S_T0}, s{S_H}, 245760")
        srd(e, R_WO, S_WO, S_T0, 245760)
        e(f"s_mul_i32 s{S_T0}, s{S_W}, 320")
        for i in range(5):
            e(f"v_add_u32 v{T+2}, {64*i}, v{V_L}")
            e(f"v_mul_u32_u24 v{T+3}, 205, v{T+2}")
            e(f"v_lshrrev_b32 v{T+3}, 12, v{T+3}")
            e(f"v_mul_u32_u24 v{T+3}, {1280-320}, v{T+3}")
            e(f"v_lshl_add_u32 v{T+3}, v{T+2}, 4, v{T+3}")
            e(f"v_add_u32 v{V_WO+i}, s{S_T0}, v{T+3}")
        e.c("K operand read addresses")
        e(f"v_and_b32 v{T+2}, 15, v{V_L}")
        e(f"v_and_b32 v{T+3}, 6, v{T+2}")
        e(f"v_xor_b32 v{T+3}, v{T+3}, v{G}")
        e(f"v_lshlrev_b32 v{T+3}, 4, v{T+3}")
        e(f"v_mul_u32_u24 v{T+2}, 384, v{T+2}")
        e(f"v_add3_u32 v{V_KA}, v{T+2}, v{T+3}, s{S_RING}")
        e(f"v_xor_b32 v{V_KA+1}, 64, v{V_KA}")
        e.c("transposing read addresses: row = lane>>2, column group = lane&3")
        e(f"v_lshrrev_b32 v{T+2}, 2, v{V_L}")
        e(f"v_and_b32 v{T+3}, 6, v{T+2}")
        e(f"v_lshlrev_b32 v{T+3}, 4, v{T+3}")
        e(f"v_lshl_add_u32 v{T+3}, v{SS}, 3, v{T+3}")
        e(f"v_mul_u32_u24 v{T+4}, 384, v{T+2}")
        e(f"v_add3_u32 v{V_VA}, v{T+4}, v{T+3}, s{S_RING}")
        for q in range(1, 4):
            e(f"v_xor_b32 v{V_VA+q}, {32*q}, v{V_VA}")
        e(f"v_mul_u32_u24 v{T+4}, 320, v{T+2}")
        e(f"v_lshl_add_u32 v{T+4}, v{SS}, 3, v{T+4}")
        e(f"v_add_u32 v{V_WA}, s{S_RING}, v{T+4}")
        e.c("cross-wave exchange addresses")
        e(f"v_mul_u32_u24 v{T+2}, {PROW}, v{SS}")
        e(f"v_lshl_add_u32 v{T+2}, v{G}, 4, v{T+2}")
        e(f"v_add_u32 v{V_PW}, s{S_XL}, v{T+2}")
        e(f"v_mul_u32_u24 v{T+3}, 1366, v0")
        e(f"v_lshrrev_b32 v{T+3}, 16, v{T+3}")
        e(f"v_lshlrev_b32 v{T+3}, 4, v{T+3}")
        e(f"v_lshl_add_u32 v{T+2}, v0, 4, v{T+3}")
        e(f"v_add_u32 v{V_PR}, {PART}, v{T+2}")
        e(f"v_lshl_add_u32 v{T+2}, v0, 3, v{T+3}")
        e(f"v_add_u32 v{V_BW}, {QBF}, v{T+2}")
        e(f"v_mul_u32_u24 v{T+2}, {BROW}, v{SS}")
        e(f"v_add_u32 v{T+2}, {QBF}, v{T+2}")
        e(f"v_lshl_add_u32 v{V_BR}, v{G}, 4, v{T+2}")
        if not ncol:
            e(f"v_lshl_add_u32 v{V_BO}, v{G}, 3, v{T+2}")
        e(f"v_lshlrev_b32 v{T+2}, 6, v{SS}")
        e(f"v_add_u32 v{V_RR}, {RMAX}, v{T+2}")
        e(f"s_lshl_b32 s{S_T0}, s{S_W}, 4")
        e(f"v_lshl_add_u32 v{T+2}, v{G}, 2, v{V_RR}")
        e(f"v_add_u32 v{V_RW}, s{S_T0}, v{T+2}")
        if touch:
            e(f"v_lshlrev_b32 v{T+2}, {tshift}, v0")
            for bit, r in enumerate((R_K, R_V, R_WO)):
                if touch >> bit & 1:
                    e.vmop(f"buffer_load_dword v{V_P+bit}, v{T+2}, s[{r}:{r+3}], 0 offen nt", "tch")
        e.c("x operand")
        e(f"v_mul_u32_u24 v{T+2}, 320, v{SS}")
        e(f"v_lshl_add_u32 v{T+2}, v{G}, 3, v{T+2}")
        e(f"v_add_u32 v{T+2}, s{S_XL}, v{T+2}")
        e.wait_vm(("x", 1))
        for p in range(10):
            e(f"v_lshl_add_u32 v{T+3}, s{S_TP+p}, 5, v{T+2}")
            e(f"ds_read_b64 v[{V_XR+2*p}:{V_XR+2*p+1}], v{T+3}")

    def post_q_setup():
        e = cx.e
        e.c("inbox slot of this head: [batch][tile][head][16 lanes x 16 bytes], lane quad c carries tile 4m+c")
        e(f"s_mul_i32 s{S_T0}, s{S_B}, {INBOX_B}")
        e(f"s_lshl_b32 s{S_T1}, s{S_H}, {7 if half else 8}")
        e(f"s_add_u32 s{S_T0}, s{S_T0}, s{S_T1}")
        e(f"s_sub_u32 s{S_T1}, {INBOX_B}, s{S_T1}")
        srd(e, R_IN, S_WS, S_T0, f"s{S_T1}")
        if half:
            e(f"v_and_b32 v{T+2}, 1, v{G}")
            e(f"v_lshl_add_u32 v{T+2}, v{T+2}, 2, v{SS}")
            e(f"v_lshlrev_b32 v{T+2}, 4, v{T+2}")
            e(f"v_lshrrev_b32 v{T+3}, 1, v{G}")
            e(f"v_lshl_add_u32 v{T+2}, v{T+3}, 12, v{T+2}")
        else:
            e(f"v_lshl_add_u32 v{T+2}, v{G}, 2, v{SS}")
            e(f"v_lshlrev_b32 v{T+2}, 4, v{T+2}")
        e(f"s_mul_i32 s{S_T0}, s{S_W}, {10*8192}")
        e(f"v_add_u32 v{V_ST}, s{S_T0}, v{T+2}")
        e(f"v_and_b32 v{T+2}, 12, v{V_L}")
        e(f"v_lshl_add_u32 v{V_ST}, v{T+2}, 11, v{V_ST}")
        e(f"v_and_b32 v{T+2}, 8, v{V_L}")
        e(f"v_lshl_add_u32 v{V_ST2}, v{T+2}, 24, v{V_ST}")
        for m in range(3):
            e(f"s_mov_b32 s{S_TP+m}, {4*8192*m}")
        e.c("head 0 of each batch publishes this launch's tag in d_debug (lane 0 of wave 3, other lanes out of range)")
        srd(e, R_DBG, S_DBG, None, 256)
        e(f"s_and_b32 s{S_T0}, s{S_B}, 1")
        e(f"s_lshl_b32 s{S_T0}, s{S_T0}, 7")
        e(f"s_lshl_b32 s{S_T1}, s{S_B}, 1")
        e(f"s_and_b32 s{S_T1}, s{S_T1}, 12")
        e(f"s_add_u32 s{S_CO}, s{S_T0}, s{S_T1}")
        e(f"v_xor_b32 v{T+2}, 192, v0")
        e(f"v_or_b32 v{T+2}, s{S_H}, v{T+2}")
        e(f"v_lshlrev_b32 v{V_DO}, 8, v{T+2}")
        e(f"s_mul_i32 s{S_T0}, s{S_NC}, 0x9e3779b1")
        e(f"s_or_b32 s{S_T0}, s{S_T0}, 1")
        e(f"v_mov_b32 v{V_TK}, s{S_T0}")
        e.vmop(f"buffer_store_dword v{V_TK}, v{V_DO}, s[{R_DBG}:{R_DBG+3}], s{S_CO} offen sc1", "tagst")
        e.c("unit this wave reduces at the end: 32*wave + head")
        e(f"s_lshl_b32 s{S_CT}, s{S_W}, 5")
        e(f"s_add_u32 s{S_CT}, s{S_CT}, s{S_H}")
        e(f"s_mul_i32 s{S_T0}, s{S_B}, {80 if half else 40}")
        e(f"s_add_u32 s{S_T0}, s{S_T0}, s{S_CT}")
        e(f"s_lshl_b32 s{S_T0}, s{S_T0}, {12 if half else 13}")
        e(f"s_cmp_lt_u32 s{S_CT}, {80 if half else 40}")
        e(f"s_cselect_b32 s{S_T1}, {4096 if half else 8192}, 0")
        srd(e, R_RD, S_WS, S_T0, f"s{S_T1}")
        e(f"s_mul_i32 s{S_T0}, s{S_B}, 5120")
        srd(e, R_OUT, S_OUT, S_T0, 5120)
        e(f"v_lshlrev_b32 v{V_IA}, 4, v{V_L}")
        e(f"v_add_u32 v{V_IA+1}, 4096, v{V_IA}")
        e(f"v_add_u32 v{V_UW}, s{S_RING}, v{V_IA}")
        e.c("output byte offset: row = lane&3, column 16*tile + 4*((lane>>2)&3) + {0,2,1,3}[lane>>4]")
        e(f"v_mul_u32_u24 v{V_OA}, 1280, v{SS}")
        e(f"v_and_b32 v{T+2}, {4 if half else 12}, v{V_L}")
        e(f"v_lshl_add_u32 v{V_OA}, v{T+2}, 1, v{V_OA}")
        if half:
            e(f"v_and_b32 v{T+2}, 8, v{V_L}")
            e(f"v_lshl_add_u32 v{V_OA}, v{T+2}, 20, v{V_OA}")
        e(f"v_bfe_u32 v{T+2}, v{V_L}, 4, 1")
        e(f"v_lshl_add_u32 v{V_OA}, v{T+2}, 2, v{V_OA}")
        e(f"v_lshrrev_b32 v{T+2}, 5, v{V_L}")
        e(f"v_lshl_add_u32 v{V_OA}, v{T+2}, 1, v{V_OA}")
        e(f"s_lshl_b32 s{S_T0}, s{S_CT}, {4 if half else 5}")
        e(f"v_add_u32 v{V_OA}, s{S_T0}, v{V_OA}")
        if helps:
            e.c("V window and tile order of the neighbouring head")
            e(f"s_xor_b32 s{S_T1}, s{S_H}, {hx}")
            e(f"s_and_b32 s{S_T0}, s{S_T1}, 3")
            e(f"s_and_b32 s{S_PK}, s{S_H}, 3")
            e(f"s_sub_u32 s{S_T0}, s{S_T0}, s{S_PK}")
            e(f"s_mul_i32 s{S_T0}, s{S_T0}, {krot[2]}")
            e(f"s_add_u32 s{S_PK}, s{S_KW}, s{S_T0}")
            e(f"s_lshl_b32 s{S_T0}, s{S_B}, 5")
            e(f"s_add_u32 s{S_T0}, s{S_T0}, s{S_T1}")
            e(f"s_mul_i32 s{S_T0}, s{S_T0}, 1572864")
            e(f"s_add_u32 s{S_T0}, s{S_T0}, {3072*384}")
            srd(e, R_PV, S_V, S_T0, 393216)
        if ncol:
            e.c("column tiles: 48 rows x 128 bytes")
            e(f"v_lshrrev_b32 v{T+2}, 3, v{V_L}")
            e(f"v_and_b32 v{T+3}, 6, v{T+2}")
            e(f"v_and_b32 v{T+4}, 7, v{V_L}")
            e(f"v_xor_b32 v{T+3}, v{T+3}, v{T+4}")
            e(f"v_lshlrev_b32 v{T+3}, 4, v{T+3}")
            e(f"v_mul_u32_u24 v{T+2}, 384, v{T+2}")
            e(f"v_add_u32 v{V_CV}, v{T+2}, v{T+3}")
            e(f"v_add_u32 v{V_CV+1}, {8*384}, v{V_CV}")
            e(f"v_lshrrev_b32 v{T+2}, 2, v{V_L}")
            e(f"v_and_b32 v{T+3}, 6, v{T+2}")
            e(f"v_lshlrev_b32 v{T+3}, 4, v{T+3}")
            e(f"v_lshl_add_u32 v{T+3}, v{SS}, 3, v{T+3}")
            e(f"v_lshlrev_b32 v{T+2}, 7, v{T+2}")
            e(f"v_add3_u32 v{V_CA}, v{T+2}, v{T+3}, s{S_RING}")
            for q in range(1, 4):
                e(f"v_xor_b32 v{V_CA+q}, {32*q}, v{V_CA}")
            e.c("o exchange: [d tile][g][wave][row] x 16 bytes")
            e(f"v_and_b32 v{T+2}, 15, v{V_L}")
            e(f"v_lshlrev_b32 v{T+2}, 4, v{T+2}")
            e(f"v_lshl_add_u32 v{T+2}, v{G}, 8, v{T+2}")
            e(f"v_add_u32 v{V_ER}, {PART}, v{T+2}")
            e(f"s_lshl_b32 s{S_T0}, s{S_W}, 6")
            e(f"v_add_u32 v{V_EW}, s{S_T0}, v{V_ER}")

    def tr_reads(slot):
        for dt in range(12):
            cx.e(f"ds_read_b64_tr_b16 v[{V_RD+2*dt}:{V_RD+2*dt+1}], v{V_VA + (dt & 3)} offset:{slot*SLOT + 128*(dt >> 2)}")

    def pv_mfma(breg, first):
        for dt in range(12):
            a = V_ACC + 4 * dt
            cc = "0" if first else f"v[{a}:{a+3}]"
            cx.e(f"v_mfma_f32_16x16x16_bf16 v[{a}:{a+3}], v[{V_RD+2*dt}:{V_RD+2*dt+1}], v[{breg}:{breg+1}], {cc}")

    def reduce_partials(label, st):
        e = cx.e
        e.c("sum the four waves' partial rows, round to bf16")
        e("s_mov_b32 exec_lo, 0x000f000f")
        e("s_mov_b32 exec_hi, 0x000f000f")
        for dt in range(12):
            a = V_ACC + 4 * dt
            e(f"ds_write_b128 v{V_PW}, v[{a}:{a+3}] offset:{64*dt}")
        e("s_mov_b64 exec, -1")
        if st:
            st.sprinkle(qs1)
        e("s_waitcnt lgkmcnt(0)")
        e("s_barrier")
        tr(label[2] + ".b1")
        e(f"s_cmp_eq_u32 s{S_W}, 3")
        e(f"s_cbranch_scc1 {label}")
        for w in range(4):
            e(f"ds_read_b128 v[{V_RD+4*w}:{V_RD+4*w+3}], v{V_PR} offset:{PWAVE*w}")
        e("s_waitcnt lgkmcnt(0)")
        for r in range(4):
            e(f"v_add_f32 v{V_RD+r}, v{V_RD+r}, v{V_RD+4+r}")
        for r in range(4):
            e(f"v_add_f32 v{V_RD+8+r}, v{V_RD+8+r}, v{V_RD+12+r}")
        for r in range(4):
            e(f"v_add_f32 v{V_RD+r}, v{V_RD+r}, v{V_RD+8+r}")
        e(f"v_cvt_pk_bf16_f32 v{V_RD+4}, v{V_RD}, v{V_RD+1}")
        e(f"v_cvt_pk_bf16_f32 v{V_RD+5}, v{V_RD+2}, v{V_RD+3}")
        e(f"ds_write_b64 v{V_BW}, v[{V_RD+4}:{V_RD+5}]")
        e("s_waitcnt lgkmcnt(0)")
        e(f"{label}:")
        if st:
            st.sprinkle(qs2)
        e("s_barrier")

    def score_post(t):
        e = cx.e
        s = V_S + 4 * t
        a, b = T + 2, T + 3
        for rnd in range(2):
            e(f"v_cvt_pk_bf16_f32 v{a}, v{s}, v{s+1}")
            e(f"v_cvt_pk_bf16_f32 v{b}, v{s+2}, v{s+3}")
            e(f"v_lshlrev_b32 v{s}, 16, v{a}")
            e(f"v_and_b32 v{s+1}, 0xffff0000, v{a}")
            e(f"v_lshlrev_b32 v{s+2}, 16, v{b}")
            e(f"v_and_b32 v{s+3}, 0xffff0000, v{b}")
            if rnd == 0:
                for r in range(4):
                    e(f"v_mul_f32 v{s+r}, s{S_SCALE}, v{s+r}")
        e(f"v_max3_f32 v{V_M}, v{V_M}, v{s}, v{s+1}")
        e(f"v_max3_f32 v{V_M}, v{V_M}, v{s+2}, v{s+3}")

    def softmax(st):
        e = cx.e
        e.c("softmax over the 1024 keys of each query row")
        e("s_nop 7")
        score_post(15)
        st.sprinkle(ss)
        e(f"ds_write_b32 v{V_RW}, v{V_M}")
        e("s_waitcnt lgkmcnt(0)")
        e("s_barrier")
        for i in range(4):
            e(f"ds_read_b128 v[{V_RD+4*i}:{V_RD+4*i+3}], v{V_RR} offset:{16*i}")
        e("s_waitcnt lgkmcnt(0)")
        for i in range(8):
            e(f"v_max3_f32 v{V_M}, v{V_M}, v{V_RD+2*i}, v{V_RD+2*i+1}")
        e(f"v_mul_f32 v{V_M}, s{S_L2E}, v{V_M}")
        st.sprinkle(ss)
        l0, l1 = T + 2, T + 3
        for r in range(64):
            e(f"v_fma_f32 v{V_S+r}, v{V_S+r}, s{S_L2E}, -v{V_M}")
        st.sprinkle(ss)
        for r in range(64):
            e(f"v_exp_f32 v{V_S+r}, v{V_S+r}")
            if r == 31:
                st.sprinkle(ss)
        st.sprinkle(ss)
        e(f"v_add_f32 v{l0}, v{V_S}, v{V_S+1}")
        e(f"v_add_f32 v{l1}, v{V_S+2}, v{V_S+3}")
        for r in range(4, 64, 2):
            e(f"v_add_f32 v{l0}, v{l0}, v{V_S+r}")
            e(f"v_add_f32 v{l1}, v{l1}, v{V_S+r+1}")
        e(f"v_add_f32 v{l0}, v{l0}, v{l1}")
        e(f"ds_write_b32 v{V_RW}, v{l0} offset:{RSUM-RMAX}")
        e("s_waitcnt lgkmcnt(0)")
        e("s_barrier")
        for i in range(4):
            e(f"ds_read_b128 v[{V_RD+4*i}:{V_RD+4*i+3}], v{V_RR} offset:{RSUM-RMAX+16*i}")
        st.sprinkle(ss)
        e("s_waitcnt lgkmcnt(0)")
        for i in range(8):
            e(f"v_add_f32 v{V_RD+i}, v{V_RD+i}, v{V_RD+8+i}")
        for i in range(4):
            e(f"v_add_f32 v{V_RD+i}, v{V_RD+i}, v{V_RD+4+i}")
        e(f"v_add_f32 v{V_RD}, v{V_RD}, v{V_RD+1}")
        e(f"v_add_f32 v{V_RD+2}, v{V_RD+2}, v{V_RD+3}")
        e(f"v_add_f32 v{V_RD}, v{V_RD}, v{V_RD+2}")
        e(f"v_rcp_f32 v{l0}, v{V_RD}")
        e("s_nop 0")
        for r in range(64):
            e(f"v_mul_f32 v{V_S+r}, v{l0}, v{V_S+r}")
        st.sprinkle(ss)
        for r in range(32):
            e(f"v_cvt_pk_bf16_f32 v{V_P+r}, v{V_S+2*r}, v{V_S+2*r+1}")
        e(f"v_mov_b32 v{V_M}, 0xffffff00")
        e("s_nop 0")

    def D_(nt):
        return V_S + 4 * nt
    def out_mfma(nt, j, breg):
        d = D_(nt)
        a = (j * 10 + nt) * 4
        cc = "0" if j == 0 else f"v[{d}:{d+3}]"
        cx.e(f"v_mfma_f32_16x16x32_bf16 v[{d}:{d+3}], a[{a}:{a+3}], v[{breg}:{breg+3}], {cc}")

    def final_projection(js, bregs, pre=None):
        e = cx.e
        ready = {}
        for nt in range(10):
            m, c = nt >> 2, nt & 3
            d = D_(4 * m)
            ops = []
            if c > 0:
                ops = [f"v_mov_b32_dpp v{d+r}, v{D_(nt)+r} quad_perm:[0,1,2,3] row_mask:0xf bank_mask:{1 << c:#x}" for r in range(4)]
            if c == 3 or nt == 9:
                ops += [f"v_and_or_b32 v{d+r}, v{d+r}, v{V_M}, s{S_TG+r}" for r in range(4)]
                ops.append(f"buffer_store_dwordx4 v[{d}:{d+3}], v{V_ST if m < 2 else V_ST2}, s[{R_IN}:{R_IN+3}], s{S_TP+m} offen {f_st}")
            ready[nt] = ops
        pend, since = [], {}
        def tick():
            for k in since:
                since[k] += 1
        def promote():
            for k in sorted(ready):
                if since.get(k, -1) >= 8 and since.get(k & ~3, -1) >= 8:
                    pend.extend(ready.pop(k))
                else:
                    break
        per_gap = 1 if len(js) > 2 else 2
        if pre is not None:
            for nt in range(10):
                out_mfma(nt, js[0], bregs[js[0]])
                for _ in range(3):
                    if pre:
                        e(pre.pop(0))
            assert not pre
            js = js[1:]
            per_gap = 3
        for nt in range(10):
            for j in js:
                out_mfma(nt, j, bregs[j])
                tick()
                if j == js[-1]:
                    since[nt] = 0
                promote()
                for _ in range(per_gap):
                    if pend:
                        e(pend.pop(0)); tick()
        while pend or ready:
            promote()
            if pend:
                e(pend.pop(0)); tick()
            elif ready:
                k = min(ready)
                need = 8 - min(since[k], since[k & ~3])
                e(f"s_nop {need - 1}")
                for _ in range(need):
                    tick()

    def stage(st, m):
        e = cx.e
        e("s_mov_b32 exec_lo, 0x000f000f")
        e("s_mov_b32 exec_hi, 0x000f000f")
        e("s_nop 2")
        for q in range(4):
            a = V_ACC + 4 * (4 * m + q)
            e(f"ds_write_b128 v{V_EW}, v[{a}:{a+3}] offset:{1024*(4*m+q)}")
        e("s_mov_b64 exec, -1")
        st.sprinkle(1)
        e("s_waitcnt lgkmcnt(0)")
        e("s_barrier")
        if m == 2:
            tr("o.b1")
        for q in range(4):
            e(f"ds_read_b128 v[{V_RD+4*q}:{V_RD+4*q+3}], v{V_ER} offset:{1024*(4*m+q)}")
        ror = lambda r, n: f"v_add_f32_dpp v{V_RD+r}, v{V_RD+r}, v{V_RD+r} row_ror:{n} row_mask:0xf bank_mask:0xf"
        cvt = lambda r: f"v_cvt_pk_bf16_f32 v{V_QB+r}, v{V_RD+2*r}, v{V_RD+2*r+1}"
        pre = None
        if fast > 1 and m == 2:
            for q in range(2):
                e(f"s_waitcnt lgkmcnt({3-q})")
                for r in range(4 * q, 4 * q + 4):
                    e(ror(r, 8))
            for r in range(8):
                e(ror(r, 4))
            for r in range(4):
                e(cvt(r))
            e("s_waitcnt lgkmcnt(0)")
            e("s_nop 0")
            pre = [ror(r, 8) for r in range(8, 16)] + [ror(r, 4) for r in range(8, 16)] + [cvt(r) for r in range(4, 8)]
        else:
            for q in range(4):
                e(f"s_waitcnt lgkmcnt({3-q})")
                for r in range(4 * q, 4 * q + 4):
                    e(ror(r, 8))
            for r in range(16):
                e(ror(r, 4))
            for r in range(8):
                e(cvt(r))
            st.sprinkle(1)
            e("s_nop 0")
        bregs = {2 * m: V_QB, 2 * m + 1: V_QB + 4}
        if m < 2:
            for j in (2 * m, 2 * m + 1):
                for nt in range(10):
                    out_mfma(nt, j, bregs[j])
        else:
            tr("obr")
            final_projection([4, 5], bregs, pre)

    def consume(st, tl):
        e = cx.e
        kind, t = tl
        if tl in st.park:
            st.stage_slot(tl)
            for i in range(6):
                a = st.park[tl] + 4 * i
                e(f"ds_write_b128 v{V_UW}, a[{a}:{a+3}] offset:{st.slot[tl]*SLOT + 1024*i}")
        sl = st.slot[tl]
        done.add(tl)
        tr_begin()
        if kind == "K":
            for j in range(6):
                e(f"ds_read_b128 v[{V_RD+4*j}:{V_RD+4*j+3}], v{V_KA + (j & 1)} offset:{sl*SLOT + 128*(j >> 1)}")
            if t > 0:
                e("s_nop 1")
                score_post(t - 1)
            e("s_waitcnt lgkmcnt(0)")
            tr_end(f"K{t}")
            s = V_S + 4 * t
            for j in range(6):
                cc = "0" if j == 0 else f"v[{s}:{s+3}]"
                e(f"v_mfma_f32_16x16x32_bf16 v[{s}:{s+3}], v[{V_RD+4*j}:{V_RD+4*j+3}], v[{V_QB+4*j}:{V_QB+4*j+3}], {cc}")
            st.release(tl, nfl)
            if t == 15:
                softmax(st)
                tr("sm")
        elif kind == "V":
            tr_reads(sl)
            e("s_waitcnt lgkmcnt(0)")
            tr_end(f"V{t}")
            pv_mfma(V_P + 2 * t, t == 0)
            st.release(tl, nfl)
        elif kind == "C":
            m, t0 = t
            def rreg(u, q):
                if not k32:
                    return V_RD + 2 * (4 * u + q)
                return V_RD + 4 * q + 2 * u if u < 2 else V_RD + 16 + 2 * q
            order = [(u, q) for u in range(3) for q in range(4)]
            if k32:
                order = [(u, q) for q in range(4) for u in range(2)] + [(2, q) for q in range(4)]
            name = f"V{nplain + kv[16+nplain:].index(tl)}"
            last_tile = tl == seq[-1]
            def rd(u, q):
                r = rreg(u, q)
                e(f"ds_read_b64_tr_b16 v[{r}:{r+1}], v{V_CA+q} offset:{sl*SLOT + 2048*u}")
            def mf32(q):
                r, a, b = rreg(0, q), V_ACC + 4 * (4 * m + q), V_P + 2 * t0
                e(f"v_mfma_f32_16x16x32_bf16 v[{a}:{a+3}], v[{r}:{r+3}], v[{b}:{b+3}], v[{a}:{a+3}]")
            def mf16(q):
                r, a, b = rreg(2, q), V_ACC + 4 * (4 * m + q), V_P + 2 * (t0 + 2)
                e(f"v_mfma_f32_16x16x16_bf16 v[{a}:{a+3}], v[{r}:{r+1}], v[{b}:{b+1}], v[{a}:{a+3}]")
            if fast and last_tile:
                for u, q in order[:8]:
                    rd(u, q)
                e("s_waitcnt lgkmcnt(0)")
                for q in range(4):
                    mf32(q)
                e.wait_vm((tl, 5))
                tr_begin()
                for u, q in order[8:]:
                    rd(u, q)
                for q in range(4):
                    e(f"s_waitcnt lgkmcnt({0 if trace else 3 - q})")
                    if q == 0:
                        tr_end(name)
                    mf16(q)
            else:
                for u, q in order:
                    rd(u, q)
                e("s_waitcnt lgkmcnt(0)")
                tr_end(name)
                st.release(tl, nfl)
            if fast and last_tile:
                pass
            elif k32:
                for q in range(4):
                    mf32(q)
                e("s_nop 2")
                for q in range(4):
                    mf16(q)
            else:
                for u, q in order:
                    r = rreg(u, q)
                    a = V_ACC + 4 * (4 * m + q)
                    b = V_P + 2 * (t0 + u)
                    e(f"v_mfma_f32_16x16x16_bf16 v[{a}:{a+3}], v[{r}:{r+1}], v[{b}:{b+1}], v[{a}:{a+3}]")
            if t0 == 13:
                assert not any(x[0] == "O" and x[1] < 4 * m + 4 for x in seq[seq.index(tl):])
                stage(st, m)
        elif kind == "Q":
            tr_reads(sl)
            e("s_waitcnt lgkmcnt(0)")
            tr_end(f"Q{t}")
            st.busy.discard(sl)
            st.top_up(nflq if t < 8 else nflt)
            pv_mfma(V_XR + 2 * t, t == 0)
        else:
            j, half = t >> 1, t & 1
            assert all(a >= 40 * j + 40 or p in done for p, a in st.park.items())
            for nt in range(10):
                a = (j * 10 + nt) * 4 + 2 * half
                e(f"ds_read_b64_tr_b16 a[{a}:{a+1}], v{V_WA} offset:{sl*SLOT + 32*nt}")
            e("s_waitcnt lgkmcnt(0)")
            tr_end(f"O{t & ~1}")
            st.release(tl, nfl)
        done.add(tl)

    def group(gi):
        done.clear()
        st = Stream(*plans[gi])
        st.next = 6
        st.busy.add(st.slot[("Q", 0)])
        cx.e.vm = list(first_vm)
        st.top_up(nflq)
        late_setup()
        for p in range(10):
            st.wait_tile(("Q", p), nflq)
            consume(st, ("Q", p))
        reduce_partials(f"L_qred_{gi}", st)
        for j in range(6):
            cx.e(f"ds_read_b128 v[{V_QB+4*j}:{V_QB+4*j+3}], v{V_BR} offset:{64*j}")
        cx.e(f"v_mov_b32 v{V_M}, 0xff800000")
        st.sprinkle()
        cx.e("s_waitcnt lgkmcnt(0)")
        tr("qrdy")
        for pos in range(MERGE):
            tl = seq[pos]
            cx.e.c(f"consume {tl[0]}{tl[1]}")
            st.wait_tile(tl, nfl)
            consume(st, tl)
            if pos == 0:
                post_q_setup()
        return st

    done = set()
    head = cx.e
    for gi in range(1, len(groups)):
        head(f"s_cmp_eq_u32 s{S_G}, {gi}")
        head(f"s_cbranch_scc1 L_grp_{gi}")
    paths = []
    for gi in range(len(groups)):
        cx.e = E()
        paths.append((group(gi), cx.e))
    X = max(st.next for st, _ in paths)
    for st, em in paths:
        cx.e = em
        while st.next < X:
            st.gated(nfl)
        em.wait_vm("tagst")
    n = max(len(em.vm) for _, em in paths)
    for st, em in paths:
        assert st.busy == paths[0][0].busy and st.flat[X - n:] == paths[0][0].flat[X - n:]
    e = cx.e = head
    for gi, (st, em) in enumerate(paths):
        if gi:
            e(f"L_grp_{gi}:")
        e.lines += em.lines
        if gi < len(paths) - 1:
            e("s_branch L_merge")
    e("L_merge:")
    st = paths[0][0]
    st.park = {}
    e.vm = list(st.flat[X - n:X])

    hooks = {}
    def h_tagload():
        e.vmop(f"buffer_load_dword v{V_TK}, off, s[{R_DBG}:{R_DBG+3}], s{S_CO} sc1", "tagld")
        hooks[seq.index(st.next_tile())] = h_tagcheck
    def h_tagcheck():
        assert "tagld" not in e.vm
        e(f"s_mov_b32 s{S_SPIN}, {spin_max}")
        e("L_spin:")
        e(f"v_readfirstlane_b32 s{S_T0}, v{V_TK}")
        e(f"s_sub_u32 s{S_SPIN}, s{S_SPIN}, 1")
        e("s_cbranch_scc1 L_spin_done")
        e(f"s_cmp_lg_u32 s{S_T0}, 0")
        e("s_cbranch_scc1 L_spin_done")
        e(f"buffer_load_dword v{V_TK}, off, s[{R_DBG}:{R_DBG+3}], s{S_CO} sc1")
        e("s_waitcnt vmcnt(0)")
        e("s_branch L_spin")
        e("L_spin_done:")
        for r in range(4):
            e(f"s_bfe_u32 s{S_TG+r}, s{S_T0}, {0x80000 + 8*r:#x}")
    hooks[tag_pos if tag_pos else seq.index(("V", 4))] = h_tagload
    plain_issue = st.issue_next
    def issue_then_warm():
        plain_issue()
        if warm and st.next == len(st.flat) - (warm - 1):
            e.c("pull the inbox lines written so far into L2")
            for i in range(4):
                e.vmop(f"buffer_load_dwordx4 v[{V_S+40+4*i}:{V_S+43+4*i}], v{V_IA}, s[{R_RD}:{R_RD+3}], 0 offen offset:{1024*i} {f_poll}", "warm")
    st.issue_next = issue_then_warm
    for pos in range(MERGE, len(seq)):
        tl = seq[pos]
        if pos == len(seq) - tail_from:
            e.c("the rest of the kernel sits in one 4 KiB code page")
            e("s_branch L_tailpage")
            e(".p2align 12")
            e("L_tailpage:")
        k = pos - (len(seq) - hpos)
        if 0 <= k < len(helps):
            assert st.next == len(st.flat)
            e.c("touch the neighbour's last tiles: whichever workgroup comes second finds them in L2")
            for m, t0 in helps[k]:
                sl = [z for z in range(NSLOT) if z not in st.busy][0]
                st.busy.add(sl)
                for i in range(6):
                    if i & 1 == 0:
                        key_tile_offset(t0 + (i >> 1), 128 * m, S_PK)
                    e(f"s_add_u32 m0, s{S_RING}, {sl*SLOT + i*1024}")
                    e("s_nop 0")
                    e.vmop(f"buffer_load_dwordx4 v{V_CV + (i & 1)}, s[{R_PV}:{R_PV+3}], s{S_OFF} offen {f_last} lds", "help")
        e.c(f"consume {tl[0]}{tl[1]}")
        if fast and tl == seq[-1]:
            assert st.next == len(st.flat)
            e.wait_vm((tl, 3))
        else:
            st.wait_tile(tl, nfle if nfle and tl[0] == "C" else nfl)
        if pos in hooks:
            hooks.pop(pos)()
        consume(st, tl)
    assert st.next == len(st.flat) and not hooks, hooks

    if not ncol:
        e.c("output projection of this head")
        reduce_partials("L_ored", None)
        tr_begin()
        for j in range(6):
            e(f"ds_read2_b64 v[{V_QB+4*j}:{V_QB+4*j+3}], v{V_BO} offset0:{8*j} offset1:{8*j+4}")
        e("s_waitcnt lgkmcnt(0)")
        tr_end("obr")
        final_projection(list(range(6)), {j: V_QB + 4 * j for j in range(6)})
    tr("sent")
    if ackwait == 2:
        e("s_waitcnt vmcnt(0)")
        e("s_barrier")
    NL = 4 if half else 8
    e(f"s_cmp_ge_u32 s{S_CT}, {80 if half else 40}")
    e("s_cbranch_scc1 L_fin")
    e.c("reduce one 16-column tile over the 32 heads")
    e(f"s_mov_b32 s{S_SPIN}, {spin_max}")
    D = V_S
    A = V_RD
    if ackwait:
        e("s_waitcnt vmcnt(0)")
    e("L_poll:")
    for i in range(NL):
        e(f"buffer_load_dwordx4 v[{D+4*i}:{D+4*i+3}], v{V_IA + (i >> 2)}, s[{R_RD}:{R_RD+3}], 0 offen offset:{1024*(i & 3)} {f_poll}")
    for i in range(NL):
        e(f"s_waitcnt vmcnt({NL-1-i})")
        d = D + 4 * i
        for r in range(4):
            e(f"v_xor_b32 v{d+r}, s{S_TG+r}, v{d+r}")
        if i == 0:
            e(f"v_or3_b32 v{A+4}, v{d}, v{d+1}, v{d+2}")
            e(f"v_or_b32 v{A+4}, v{A+4}, v{d+3}")
        else:
            e(f"v_or3_b32 v{A+4}, v{A+4}, v{d}, v{d+1}")
            e(f"v_or3_b32 v{A+4}, v{A+4}, v{d+2}, v{d+3}")
            for r in range(4):
                e(f"v_add_f32 v{A+r}, v{A+r if i > 1 else D+r}, v{d+r}")
    e(f"v_and_b32 v{A+4}, 0xff, v{A+4}")
    e(f"v_cmp_ne_u32 vcc, 0, v{A+4}")
    e(f"s_sub_u32 s{S_SPIN}, s{S_SPIN}, 1")
    e("s_cbranch_scc1 L_ready")
    e("s_cbranch_vccnz L_poll")
    e("L_ready:")
    if trace == 3:
        e(f"v_writelane_b32 v{V_TR}, s{S_SPIN}, 60")
        tr("rdy")
    e(f"v_permlane32_swap_b32 v{A}, v{A+1}")
    e(f"v_permlane32_swap_b32 v{A+2}, v{A+3}")
    e("s_nop 0")
    e(f"v_add_f32 v{A}, v{A}, v{A+1}")
    e(f"v_add_f32 v{A+2}, v{A+2}, v{A+3}")
    e("s_nop 1")
    e(f"v_permlane16_swap_b32 v{A}, v{A+2}")
    e("s_nop 0")
    e(f"v_add_f32 v{A}, v{A}, v{A+2}")
    if half:
        e("s_nop 1")
        e(f"v_add_f32_dpp v{A}, v{A}, v{A} row_ror:8 row_mask:0xf bank_mask:0xf")
    e(f"v_cvt_pk_bf16_f32 v{A}, v{A}, v{A}")
    e(f"buffer_store_short v{A}, v{V_OA}, s[{R_OUT}:{R_OUT+3}], 0 offen {f_out}")
    e("L_fin:")
    if dbgtime:
        e("s_waitcnt vmcnt(0)")
        e("s_memrealtime s[92:93]")
        if dbgtime == "end":
            e("s_memrealtime s[90:91]")
        e("s_waitcnt lgkmcnt(0)")
        e(f"s_sub_u32 s94, s90, s{S_NC}")
        e("s_lshl_b32 s94, s94, 1")
        e("s_add_u32 s94, s94, s92")
        e("L_stretch:")
        e("s_memrealtime s[96:97]")
        e("s_waitcnt lgkmcnt(0)")
        e("s_sub_u32 s96, s96, s94")
        e("s_cmp_lt_i32 s96, 0")
        e("s_cbranch_scc1 L_stretch")
    if trace:
        e("s_waitcnt vmcnt(0)")
        e("s_memtime s[94:95]")
        tr("end")
        e("s_sub_u32 s94, s94, s96")
        e(f"v_writelane_b32 v{V_TR}, s94, 61")
        e(f"s_getreg_b32 s{S_T0}, hwreg(HW_REG_XCC_ID)")
        e(f"v_writelane_b32 v{V_TR}, s{S_T0}, 63")
        e(f"s_lshl_b32 s{S_T0}, s2, 2")
        e(f"s_add_u32 s{S_T0}, s{S_T0}, s{S_W}")
        e(f"s_lshl_b32 s{S_T0}, s{S_T0}, 8")
        e(f"s_add_u32 s{S_T0}, s{S_T0}, 0x2000000")
        srd(e, R_OUT, S_WS, S_T0, 256)
        e(f"v_lshlrev_b32 v{T+4}, 2, v{V_L}")
        e(f"buffer_store_dword v{V_TR}, v{T+4}, s[{R_OUT}:{R_OUT+3}], 0 offen")
        assert len(TRACE_NAMES) <= 60, len(TRACE_NAMES)
    e("L_end:")
    e("s_endpgm")

    return f"""; Fused q-projection + sliding-window attention + output projection for B=8, Sq=4, D=640, H=32, Dh=192, W=1024.
;
; @launch grid=(256,1,1) block=(256,1,1) lds={LDS_BYTES}
.amdgcn_target "amdgcn-amd-amdhsa--gfx950"
.text
.globl {KN}
.p2align 12
.p2align 8
.type {KN},@function
{e.text()}
.section .rodata,"a"
.p2align 6
.amdhsa_kernel {KN}
  .amdhsa_next_free_vgpr 496
  .amdhsa_next_free_sgpr 102
  .amdhsa_accum_offset 256
  .amdhsa_group_segment_fixed_size 0
  .amdhsa_kernarg_size 64
  .amdhsa_user_sgpr_count 2
  .amdhsa_user_sgpr_kernarg_segment_ptr 1
  .amdhsa_system_sgpr_workgroup_id_x 1
.end_amdhsa_kernel
"""

if __name__ == "__main__":
    kw = eval("dict(" + (sys.argv[1] if len(sys.argv) > 1 else "") + ")")
    sys.stdout.write(gen(**kw))
```

```python
import struct, sys

KN = "standalone__sliding_block_cached__sampling_kernel"
TRACE_NAMES = []

def f32(x):
    return struct.unpack("<I", struct.pack("<f", x))[0]

class E:
    def __init__(self):
        self.lines = []
        self.vm = []
    def __call__(self, s=""):
        self.lines.append("    " + s if s and not s.endswith(":") else s)
    def c(self, s):
        self.lines.append("    ; " + s)
    def vmop(self, s, tag):
        self(s)
        self.vm.append(tag)
    def wait_vm(self, tag):
        idx = max([i for i, t in enumerate(self.vm) if t == tag], default=-1)
        if idx < 0:
            return
        n = len(self.vm) - 1 - idx
        self(f"s_waitcnt vmcnt({min(n, 63)})")
        self.vm = self.vm[idx + 1:]
    def text(self):
        return "\n".join(self.lines) + "\n"

SLOT = 6144
NSLOT = 6
RING = SLOT * NSLOT
MISC = 4 * RING
PART = MISC
PROW = 784
PWAVE = 4 * PROW
BROW = 400
QBF = MISC + 4 * PWAVE
RMAX = QBF + 4 * BROW
RSUM = RMAX + 256
LDS_BYTES = RSUM + 256

INBOX_B = 40 * 8192

S_W = 3
S_X, S_K, S_V, S_WQ, S_WO, S_OUT, S_DBG, S_WS = 4, 6, 8, 10, 12, 14, 16, 18
R_K, R_V, R_WQ, R_WO, R_X, R_IN, R_OUT, R_DBG = 20, 24, 28, 32, 36, 40, 44, 48
R_RD = 28
S_B, S_H, S_RING, S_OFF, S_T0, S_T1 = 52, 53, 54, 55, 56, 57
S_KW = 58
S_QW = 59
S_TP = 60
S_TG = 64
S_SCALE, S_L2E = 70, 71
S_CT = 72
S_SPIN = 73
S_XL = 74
S_G = 75
S_NC = 76
S_CO = 78
S_PF = 79
S_PK = 79
R_PV = 36
S_TR = 100

V_L = 1
V_KV = 2
V_WQ = 8
V_WO = 14
V_KA = 19
V_VA = 21
V_WA = 25
V_PW = 26
V_PR = 27
V_BW = 28
V_BR = 29
V_BO = 30
V_PF = 30
V_RW = 31
V_RR = 32
V_M = 33
V_T = 34
V_ST = 39
V_RD = 40
V_ACC = 64
V_QB = 112
V_S = 136
V_P = 200
V_XR = 232
V_IA = 232
V_OA = 234
V_UW = 235
V_CV = 236
V_CA = 238
V_EW = 242
V_ER = 243
V_TK = 252
V_DO = 253
V_TR = 254
V_XO = 255
V_ST2 = 255

def srd(e, r, base, off, nbytes):
    if off is None:
        e(f"s_mov_b32 s{r}, s{base}")
        e(f"s_and_b32 s{r+1}, s{base+1}, 0xffff")
    else:
        e(f"s_add_u32 s{r}, s{base}, s{off}")
        e(f"s_addc_u32 s{r+1}, s{base+1}, 0")
        e(f"s_and_b32 s{r+1}, s{r+1}, 0xffff")
    e(f"s_mov_b32 s{r+2}, {nbytes}")
    e(f"s_mov_b32 s{r+3}, 0x20000")

def nloads(tile):
    if tile[0] == "P":
        return tile[1][1]
    return 5 if tile[0] == "O" else 6

def gen(groups=((0, 0, 10), (3, 0, 2), (7, 2, 1), (10, 2, 1)), gmap=(0, 1, 2, 3, 0, 1, 2, 3), rots=(0, 2, 3, 4, 5, 7, 8, 9),
        nfl=11, nflq=11, nflt=10, backlog=2, pbacklog=4, wo_at=(13, 14, 16, 17, 19, 20, 22, 23, 25, 26, 28, 29), f_kv="nt", f_wq="", f_wo="",
        krot=(56, 0, 16), kw=1, krt=0, ncol=6, trace=0, spin_max=100000, tail_from=2, qs1=3, qs2=3, tag_pos=None, ss=2, half=1, k32=1, f_st='sc1', f_poll='sc1', f_out='', warm=0, helps=(), f_last='', hx=1, hpos=2, deflast=(), nfle=None, touch=0, tshift=15, fast=1, ackwait=1, warm0=0, ob=(13, 22, 15, 26), pp=(8, 9, 11, 12), pn=(9, 10, 3, 8), dbgtime=None):
    del TRACE_NAMES[:]
    T = V_T
    G, SS = T, T + 1

    class Ctx:
        pass
    cx = Ctx()
    cx.e = E()

    def tr_begin():
        if trace:
            cx.e(f"s_memrealtime s[{S_TR}:{S_TR+1}]")
    def tr_end(name):
        if dbgtime == name:
            cx.e("s_memrealtime s[90:91]")
        if trace:
            if name not in TRACE_NAMES:
                TRACE_NAMES.append(name)
            cx.e(f"v_writelane_b32 v{V_TR}, s{S_TR}, {TRACE_NAMES.index(name)}")
    def tr(name):
        if dbgtime == name:
            cx.e("s_memrealtime s[90:91]")
        if trace and not (trace == 2 and name in ("o.b1", "obr", "sent")) and not (trace == 3 and name in ("o.b1", "obr")):
            tr_begin()
            cx.e("s_waitcnt lgkmcnt(0)")
            tr_end(name)

    def nibble(dst, table):
        packed = sum(r << (4 * i) for i, r in enumerate(table))
        cx.e(f"s_lshr_b32 s{dst}, {packed:#x}, s{S_T1}")
        cx.e(f"s_and_b32 s{dst}, s{dst}, 15")

    nplain = 16 - ncol
    kv = [("K", t) for t in range(16)] + [("V", t) for t in range(nplain)]
    kv += [("C", (m, t0)) for m in range(3) for t0 in range(nplain, 16, 3)]
    if wo_at is None:
        wo_at = list(range(7, 31, 2))
    assert len(wo_at) == 12
    seq = []
    wo_i = 0
    for n, tl in enumerate(kv):
        seq.append(tl)
        while wo_i < 12 and wo_at[wo_i] == n + 1:
            seq.append(("O", wo_i)); wo_i += 1
    assert wo_i == 12
    seqs = [seq] * len(groups)
    if ob:
        seqs = []
        for gi in range(len(groups)):
            sq, k = [], 0
            pieces = dict(ob[gi]) if isinstance(ob[gi], (tuple, list)) else {ob[gi]: 12}
            assert sum(pieces.values()) == 12
            for n, tl in enumerate(kv):
                sq.append(tl)
                if n + 1 == pp[gi]:
                    h1 = min(6, (pn[gi] + 1) // 2 if pn[gi] > 6 else pn[gi])
                    sq += [("P", (0, h1)), ("P", (h1, pn[gi] - h1))]
                if n + 1 in pieces:
                    sq += [("O", t) for t in range(k, k + pieces[n + 1])]
                    k += pieces[n + 1]
            seqs.append(sq)
        seq = seqs[0]

    def group_plan(gi, npre, npost, nq0):
        seq = seqs[gi]
        main_slots = {tl: n % NSLOT for n, tl in enumerate(seq)}
        nring = min(npre, 4)
        nq = NSLOT - nring
        nq0 = min(nq0, 10)
        assert npre == 0 or nq0 <= nq
        order = [("Q", p) for p in range(nq0)] + seq[:npre] + [("Q", p) for p in range(nq0, 10)] + seq[npre:]
        slots = dict(main_slots)
        slots.update({("Q", p): nring + (p - (10 - nq)) % nq for p in range(10)})
        parked = seq[nring:npre + npost] if npre > nring or npost else []
        assert all(t[0] == "K" for t in seq[:npre + npost])
        park = {tl: 240 - 24 * (i + 1) for i, tl in enumerate(parked)}
        return order, slots, park
    plans = [group_plan(gi, *g) for gi, g in enumerate(groups)]
    MERGE = max(6, max(g[0] + g[1] for g in groups) + 1)
    while any(sq[MERGE - 1:] != seq[MERGE - 1:] for sq in seqs):
        MERGE += 1

    e = cx.e
    e(f"{KN}:")
    e("s_cmp_ge_u32 s2, 256")
    e("s_cbranch_scc1 L_end")
    tr_begin()
    if trace:
        e("s_memtime s[96:97]")
    e(f"s_memrealtime s[{S_NC}:{S_NC+1}]")
    e("s_load_dwordx16 s[4:19], s[0:1], 0")
    e(f"v_lshrrev_b32 v{T}, 6, v0")
    e(f"v_and_b32 v{V_L}, 63, v0")
    e(f"v_readfirstlane_b32 s{S_W}, v{T}")
    if trace:
        e(f"v_mov_b32 v{V_TR}, 0")
    e.c("head = 4*(wg&7) + ((wg>>3)&3), batch = wg>>5")
    e(f"s_and_b32 s{S_H}, s2, 7")
    e(f"s_lshl_b32 s{S_H}, s{S_H}, 2")
    e(f"s_bfe_u32 s{S_T0}, s2, 0x20003")
    e(f"s_add_u32 s{S_H}, s{S_H}, s{S_T0}")
    e(f"s_lshr_b32 s{S_B}, s2, 5")
    e(f"s_mul_i32 s{S_RING}, s{S_W}, {RING}")
    e(f"s_mul_i32 s{S_QW}, s{S_W}, {160*12288}")
    e.c("first key tile of this wave, rotated per workgroup")
    e(f"s_mul_i32 s{S_KW}, s{S_B}, {krot[0]}")
    e(f"s_and_b32 s{S_T1}, s2, 7")
    e(f"s_mul_i32 s{S_T1}, s{S_T1}, {krot[1]}")
    e(f"s_mul_i32 s{S_T0}, s{S_T0}, {krot[2]}")
    e(f"s_add_u32 s{S_KW}, s{S_KW}, s{S_T1}")
    e(f"s_add_u32 s{S_KW}, s{S_KW}, s{S_T0}")
    e(f"s_mul_i32 s{S_T0}, s{S_W}, {kw}")
    e(f"s_add_u32 s{S_KW}, s{S_KW}, s{S_T0}")
    e.c("per-batch start order, first wq tile and its LDS slot")
    e(f"s_lshl_b32 s{S_T1}, s{S_B}, 2")
    nibble(S_G, gmap)
    nibble(S_TP, rots)
    nibble(S_SPIN, [plans[g][1][("Q", 0)] for g in gmap])
    e(f"s_mul_i32 s{S_SPIN}, s{S_SPIN}, {SLOT}")
    e(f"s_add_u32 s{S_SPIN}, s{S_SPIN}, s{S_RING}")
    for p in range(1, 10):
        e(f"s_add_u32 s{S_TP+p}, s{S_TP+p-1}, 1")
        e(f"s_cmp_eq_u32 s{S_TP+p}, 10")
        e(f"s_cselect_b32 s{S_TP+p}, 0, s{S_TP+p}")
    e.c("DMA source offsets (16-byte chunks XOR-swizzled inside each 128-byte line)")
    e(f"v_lshrrev_b32 v{T}, 3, v{V_L}")
    e(f"v_and_b32 v{T+1}, 7, v{V_L}")
    for i in range(6):
        e(f"v_add_u32 v{T+2}, {8*i}, v{T}")
        e(f"v_mul_u32_u24 v{T+3}, 43, v{T+2}")
        e(f"v_lshrrev_b32 v{T+3}, 7, v{T+3}")
        e(f"v_and_b32 v{T+4}, 6, v{T+3}")
        e(f"v_xor_b32 v{T+4}, v{T+4}, v{T+1}")
        e(f"v_lshlrev_b32 v{T+4}, 4, v{T+4}")
        e(f"v_lshl_add_u32 v{V_KV+i}, v{T+2}, 7, v{T+4}")
        e(f"v_mul_u32_u24 v{T+3}, {12288-384}, v{T+3}")
        e(f"v_add_u32 v{V_WQ+i}, v{V_KV+i}, v{T+3}")
    e(f"v_lshrrev_b32 v{G}, 4, v{V_L}")
    e(f"v_and_b32 v{SS}, 3, v{V_L}")
    e.c("x staging: 80 chunks of 16 bytes, LDS image [row][320 bytes]")
    e(f"v_mul_u32_u24 v{T+2}, 205, v{V_L}")
    e(f"v_lshrrev_b32 v{T+2}, 12, v{T+2}")
    e(f"v_mul_u32_u24 v{T+2}, {1280-320}, v{T+2}")
    e(f"v_lshl_add_u32 v{T+2}, v{V_L}, 4, v{T+2}")
    e(f"s_mul_i32 s{S_T0}, s{S_W}, 320")
    e(f"v_add_u32 v{V_XO}, s{S_T0}, v{T+2}")
    e(f"v_lshlrev_b32 v{T+2}, 4, v{V_L}")
    e(f"v_add_u32 v{T+2}, {3*1280 + 64}, v{T+2}")
    e(f"v_add_u32 v{V_TK}, s{S_T0}, v{T+2}")
    e(f"s_mul_i32 s{S_XL}, s{S_W}, {PWAVE}")
    e(f"s_add_u32 s{S_XL}, s{S_XL}, {PART}")
    e(f"s_mul_i32 s{S_OFF}, s{S_TP}, {16*12288}")
    e(f"s_add_u32 s{S_OFF}, s{S_OFF}, s{S_QW}")
    e("s_waitcnt lgkmcnt(0)")
    tr_end("start")
    e.c("first wq tile and the x operand")
    e(f"s_mul_i32 s{S_T0}, s{S_B}, 5120")
    srd(e, R_X, S_X, S_T0, 5120)
    e(f"s_mov_b32 m0, s{S_XL}")
    e("s_nop 0")
    e.vmop(f"buffer_load_dwordx4 v{V_XO}, s[{R_X}:{R_X+3}], 0 offen lds", ("x", 0))
    e(f"s_add_u32 m0, s{S_XL}, 1024")
    e("s_mov_b64 exec, 0xffff")
    e.vmop(f"buffer_load_dwordx4 v{V_TK}, s[{R_X}:{R_X+3}], 0 offen lds", ("x", 1))
    e("s_mov_b64 exec, -1")
    e(f"s_mul_i32 s{S_T0}, s{S_H}, 384")
    e(f"s_sub_u32 s{S_T1}, {640*12288}, s{S_T0}")
    srd(e, R_WQ, S_WQ, S_T0, f"s{S_T1}")
    for i in range(6):
        e(f"s_add_u32 m0, s{S_SPIN}, {i*1024}")
        e("s_nop 0")
        e.vmop(f"buffer_load_dwordx4 v{V_WQ+i}, s[{R_WQ}:{R_WQ+3}], s{S_OFF} offen {f_wq} lds", (("Q", 0), i))
    e(f"s_lshl_b32 s{S_T0}, s{S_B}, 5")
    e(f"s_add_u32 s{S_T0}, s{S_T0}, s{S_H}")
    e(f"s_mul_i32 s{S_T0}, s{S_T0}, 1572864")
    e(f"s_add_u32 s{S_T0}, s{S_T0}, {3072*384}")
    srd(e, R_K, S_K, S_T0, 393216)
    srd(e, R_V, S_V, S_T0, 393216)
    if krt:
        e(f"s_add_u32 s80, s{S_WS}, 0x3000000")
        e(f"s_addc_u32 s81, s{S_WS+1}, 0")
        e("s_load_dwordx4 s[84:87], s[80:81], 0")
        e("s_waitcnt lgkmcnt(0)")
        e(f"s_mul_i32 s{S_KW}, s{S_B}, s84")
        e(f"s_and_b32 s{S_T1}, s2, 7")
        e(f"s_mul_i32 s{S_T1}, s{S_T1}, s85")
        e(f"s_bfe_u32 s{S_T0}, s2, 0x20003")
        e(f"s_mul_i32 s{S_T0}, s{S_T0}, s86")
        e(f"s_add_u32 s{S_KW}, s{S_KW}, s{S_T1}")
        e(f"s_add_u32 s{S_KW}, s{S_KW}, s{S_T0}")
        e(f"s_mul_i32 s{S_T0}, s{S_W}, s87")
        e(f"s_add_u32 s{S_KW}, s{S_KW}, s{S_T0}")
        e("s_cmp_eq_u32 s87, 1")
        e("s_cselect_b32 s88, 4, 1")
    if warm0:
        e.c("first touch of the inbox lines this wave polls at the end")
        e(f"s_lshl_b32 s{S_CT}, s{S_W}, 5")
        e(f"s_add_u32 s{S_CT}, s{S_CT}, s{S_H}")
        e(f"s_mul_i32 s{S_T0}, s{S_B}, 80")
        e(f"s_add_u32 s{S_T0}, s{S_T0}, s{S_CT}")
        e(f"s_lshl_b32 s{S_T0}, s{S_T0}, 12")
        e(f"s_cmp_lt_u32 s{S_CT}, 80")
        e(f"s_cselect_b32 s{S_T1}, 4096, 0")
        srd(e, R_OUT, S_WS, S_T0, f"s{S_T1}")
        e(f"v_lshlrev_b32 v{V_P+1}, {7 if warm0 == 1 else 6}, v{V_L}")
        e.vmop(f"buffer_load_dword v{V_P}, v{V_P+1}, s[{R_OUT}:{R_OUT+3}], 0 offen sc1", "warm0")
    first_vm = list(e.vm)

    def key_tile_offset(t, extra=0, S_KW=S_KW):
        e = cx.e
        if krt:
            e(f"s_mul_i32 s{S_OFF}, s88, {t}")
            e(f"s_add_u32 s{S_OFF}, s{S_KW}, s{S_OFF}")
        else:
            e(f"s_add_u32 s{S_OFF}, s{S_KW}, {(4 if kw == 1 else 1)*t}")
        e(f"s_and_b32 s{S_OFF}, s{S_OFF}, 63")
        e(f"s_mul_i32 s{S_OFF}, s{S_OFF}, {SLOT}")
        if extra:
            e(f"s_add_u32 s{S_OFF}, s{S_OFF}, {extra}")

    def issue_one(tile, slot, park, i):
        e = cx.e
        kind, t = tile
        if kind in "KV":
            r, vo, fl = (R_K if kind == "K" else R_V), V_KV + i, f_kv
            if i == 0:
                key_tile_offset(t)
        elif kind == "C":
            r, vo, fl = R_V, V_CV + (i & 1), (f_last if any(t in h_ for h_ in helps) or t in deflast else f_kv)
            if i & 1 == 0:
                key_tile_offset(t[1] + (i >> 1), 128 * t[0])
        elif kind == "Q":
            r, vo, fl = R_WQ, V_WQ + i, f_wq
            if i == 0:
                e(f"s_mul_i32 s{S_OFF}, s{S_TP+t}, {16*12288}")
                e(f"s_add_u32 s{S_OFF}, s{S_OFF}, s{S_QW}")
        elif kind == "P":
            r, vo, fl = R_WO, V_PF, f_wo
            e(f"s_add_u32 s{S_OFF}, s{S_PF}, {1024*(t[0] + i)}")
        else:
            r, vo, fl = R_WO, V_WO + i, f_wo
            if i == 0:
                e(f"s_mov_b32 s{S_OFF}, {t*16*1280}")
        if park is not None:
            a = park + 4 * i
            e.vmop(f"buffer_load_dwordx4 a[{a}:{a+3}], v{vo}, s[{r}:{r+3}], s{S_OFF} offen {fl}", (tile, i))
        else:
            e(f"s_add_u32 m0, s{S_RING}, {slot*SLOT + i*1024}")
            e("s_nop 0")
            e.vmop(f"buffer_load_dwordx4 v{vo}, s[{r}:{r+3}], s{S_OFF} offen {fl} lds", (tile, i))

    class Stream:
        def __init__(self, order, slots, park):
            self.flat = [(tl, i) for tl in order for i in range(nloads(tl))]
            self.slot = dict(slots)
            self.park = park
            self.next = 0
            self.busy = set()
        def can_issue(self):
            if self.next >= len(self.flat):
                return False
            tl, i = self.flat[self.next]
            if i > 0 or tl in self.park:
                return True
            if tl[0] != "Q" and any(p not in done for p in self.park) and len(self.busy) >= NSLOT - 1 and tl not in kv[:4]:
                return False
            return self.slot[tl] not in self.busy
        def issue_next(self):
            tl, i = self.flat[self.next]
            if i == 0 and tl not in self.park:
                assert self.slot[tl] not in self.busy
                self.busy.add(self.slot[tl])
            issue_one(tl, self.slot[tl], self.park.get(tl), i)
            self.next += 1
        def stage_slot(self, tl):
            later = []
            for t2, i in self.flat[self.next:]:
                if i == 0 and t2 not in self.park and self.slot[t2] not in later:
                    later.append(self.slot[t2])
            free = [s for s in range(NSLOT) if s not in self.busy]
            free.sort(key=lambda s: -(later.index(s) if s in later else 99))
            self.slot[tl] = free[0]
            self.busy.add(free[0])
        def loads(self):
            return [t for t in cx.e.vm if not isinstance(t, str)]
        def gated(self, n):
            vm = self.loads()
            if len(vm) >= n:
                cx.e.wait_vm(vm[len(vm) - n])
            self.issue_next()
        def top_up(self, n):
            while len(self.loads()) < n and self.can_issue():
                self.issue_next()
        def wait_tile(self, tl, n):
            if nloads(tl) == 0:
                return
            last = (tl, nloads(tl) - 1)
            while self.flat.index(last) >= self.next:
                self.gated(n)
            while last in cx.e.vm:
                vm = self.loads()
                if self.can_issue() and (len(vm) < n or vm.index(last) >= len(vm) - n):
                    if len(vm) < n:
                        self.top_up(n)
                    else:
                        self.gated(n)
                else:
                    cx.e.wait_vm(last)
        def release(self, tl, n):
            if nloads(tl):
                self.busy.discard(self.slot[tl])
            if len(self.loads()) < n:
                self.top_up(n)
            else:
                for _ in range(pbacklog if tl in self.park else backlog):
                    if self.can_issue():
                        self.gated(n)
        def sprinkle(self, k=1):
            for _ in range(k):
                if self.can_issue():
                    self.issue_next()
        def next_tile(self):
            tl, i = self.flat[self.next]
            if i > 0:
                tl = self.flat[self.next + nloads(tl) - i][0]
            return tl

    def late_setup(gi):
        e = cx.e
        e.c("remaining address registers and descriptors")
        e(f"s_mov_b32 s{S_SCALE}, {f32(192 ** -0.5):#x}")
        e(f"s_mov_b32 s{S_L2E}, {f32(1.4426950408889634):#x}")
        e(f"s_mul_i32 s{S_T0}, s{S_H}, 245760")
        srd(e, R_WO, S_WO, S_T0, 245760)
        e(f"s_mul_i32 s{S_T0}, s{S_W}, 320")
        for i in range(5):
            e(f"v_add_u32 v{T+2}, {64*i}, v{V_L}")
            e(f"v_mul_u32_u24 v{T+3}, 205, v{T+2}")
            e(f"v_lshrrev_b32 v{T+3}, 12, v{T+3}")
            e(f"v_mul_u32_u24 v{T+3}, {1280-320}, v{T+3}")
            e(f"v_lshl_add_u32 v{T+3}, v{T+2}, 4, v{T+3}")
            e(f"v_add_u32 v{V_WO+i}, s{S_T0}, v{T+3}")
        e.c("K operand read addresses")
        e(f"v_and_b32 v{T+2}, 15, v{V_L}")
        e(f"v_and_b32 v{T+3}, 6, v{T+2}")
        e(f"v_xor_b32 v{T+3}, v{T+3}, v{G}")
        e(f"v_lshlrev_b32 v{T+3}, 4, v{T+3}")
        e(f"v_mul_u32_u24 v{T+2}, 384, v{T+2}")
        e(f"v_add3_u32 v{V_KA}, v{T+2}, v{T+3}, s{S_RING}")
        e(f"v_xor_b32 v{V_KA+1}, 64, v{V_KA}")
        e.c("transposing read addresses: row = lane>>2, column group = lane&3")
        e(f"v_lshrrev_b32 v{T+2}, 2, v{V_L}")
        e(f"v_and_b32 v{T+3}, 6, v{T+2}")
        e(f"v_lshlrev_b32 v{T+3}, 4, v{T+3}")
        e(f"v_lshl_add_u32 v{T+3}, v{SS}, 3, v{T+3}")
        e(f"v_mul_u32_u24 v{T+4}, 384, v{T+2}")
        e(f"v_add3_u32 v{V_VA}, v{T+4}, v{T+3}, s{S_RING}")
        for q in range(1, 4):
            e(f"v_xor_b32 v{V_VA+q}, {32*q}, v{V_VA}")
        e(f"v_mul_u32_u24 v{T+4}, 320, v{T+2}")
        e(f"v_lshl_add_u32 v{T+4}, v{SS}, 3, v{T+4}")
        e(f"v_add_u32 v{V_WA}, s{S_RING}, v{T+4}")
        e.c("cross-wave exchange addresses")
        e(f"v_mul_u32_u24 v{T+2}, {PROW}, v{SS}")
        e(f"v_lshl_add_u32 v{T+2}, v{G}, 4, v{T+2}")
        e(f"v_add_u32 v{V_PW}, s{S_XL}, v{T+2}")
        e(f"v_mul_u32_u24 v{T+3}, 1366, v0")
        e(f"v_lshrrev_b32 v{T+3}, 16, v{T+3}")
        e(f"v_lshlrev_b32 v{T+3}, 4, v{T+3}")
        e(f"v_lshl_add_u32 v{T+2}, v0, 4, v{T+3}")
        e(f"v_add_u32 v{V_PR}, {PART}, v{T+2}")
        e(f"v_lshl_add_u32 v{T+2}, v0, 3, v{T+3}")
        e(f"v_add_u32 v{V_BW}, {QBF}, v{T+2}")
        e(f"v_mul_u32_u24 v{T+2}, {BROW}, v{SS}")
        e(f"v_add_u32 v{T+2}, {QBF}, v{T+2}")
        e(f"v_lshl_add_u32 v{V_BR}, v{G}, 4, v{T+2}")
        if not ncol:
            e(f"v_lshl_add_u32 v{V_BO}, v{G}, 3, v{T+2}")
        e(f"v_lshlrev_b32 v{T+2}, 6, v{SS}")
        e(f"v_add_u32 v{V_RR}, {RMAX}, v{T+2}")
        e(f"s_lshl_b32 s{S_T0}, s{S_W}, 4")
        e(f"v_lshl_add_u32 v{T+2}, v{G}, 2, v{V_RR}")
        e(f"v_add_u32 v{V_RW}, s{S_T0}, v{T+2}")
        if touch:
            e(f"v_lshlrev_b32 v{T+2}, {tshift}, v0")
            for bit, r in enumerate((R_K, R_V, R_WO)):
                if touch >> bit & 1:
                    e.vmop(f"buffer_load_dword v{V_P+bit}, v{T+2}, s[{r}:{r+3}], 0 offen nt", "tch")
        if ob:
            e(f"v_lshlrev_b32 v{V_PF}, 4, v{V_L}")
            assert sum(pn) >= 30 and tuple(gmap[:4]) == tuple(gmap[4:]) and sorted(gmap[:4]) == [0, 1, 2, 3]
            e(f"s_lshr_b32 s{S_PF}, s{S_B}, 2")
            e(f"s_mul_i32 s{S_PF}, s{S_PF}, {4096*sum(pn)}")
            e(f"s_mul_i32 s{S_T0}, s{S_W}, {1024*pn[gi]}")
            e(f"s_add_u32 s{S_PF}, s{S_PF}, s{S_T0}")
            e(f"s_add_u32 s{S_PF}, s{S_PF}, {4096*sum(pn[:gi])}")
        e.c("x operand")
        e(f"v_mul_u32_u24 v{T+2}, 320, v{SS}")
        e(f"v_lshl_add_u32 v{T+2}, v{G}, 3, v{T+2}")
        e(f"v_add_u32 v{T+2}, s{S_XL}, v{T+2}")
        e.wait_vm(("x", 1))
        for p in range(10):
            e(f"v_lshl_add_u32 v{T+3}, s{S_TP+p}, 5, v{T+2}")
            e(f"ds_read_b64 v[{V_XR+2*p}:{V_XR+2*p+1}], v{T+3}")

    def post_q_setup():
        e = cx.e
        e.c("inbox slot of this head: [batch][tile][head][16 lanes x 16 bytes], lane quad c carries tile 4m+c")
        e(f"s_mul_i32 s{S_T0}, s{S_B}, {INBOX_B}")
        e(f"s_lshl_b32 s{S_T1}, s{S_H}, {7 if half else 8}")
        e(f"s_add_u32 s{S_T0}, s{S_T0}, s{S_T1}")
        e(f"s_sub_u32 s{S_T1}, {INBOX_B}, s{S_T1}")
        srd(e, R_IN, S_WS, S_T0, f"s{S_T1}")
        if half:
            e(f"v_and_b32 v{T+2}, 1, v{G}")
            e(f"v_lshl_add_u32 v{T+2}, v{T+2}, 2, v{SS}")
            e(f"v_lshlrev_b32 v{T+2}, 4, v{T+2}")
            e(f"v_lshrrev_b32 v{T+3}, 1, v{G}")
            e(f"v_lshl_add_u32 v{T+2}, v{T+3}, 12, v{T+2}")
        else:
            e(f"v_lshl_add_u32 v{T+2}, v{G}, 2, v{SS}")
            e(f"v_lshlrev_b32 v{T+2}, 4, v{T+2}")
        e(f"s_mul_i32 s{S_T0}, s{S_W}, {10*8192}")
        e(f"v_add_u32 v{V_ST}, s{S_T0}, v{T+2}")
        e(f"v_and_b32 v{T+2}, 12, v{V_L}")
        e(f"v_lshl_add_u32 v{V_ST}, v{T+2}, 11, v{V_ST}")
        e(f"v_and_b32 v{T+2}, 8, v{V_L}")
        e(f"v_lshl_add_u32 v{V_ST2}, v{T+2}, 24, v{V_ST}")
        for m in range(3):
            e(f"s_mov_b32 s{S_TP+m}, {4*8192*m}")
        e.c("head 0 of each batch publishes this launch's tag in d_debug (lane 0 of wave 3, other lanes out of range)")
        srd(e, R_DBG, S_DBG, None, 256)
        e(f"s_and_b32 s{S_T0}, s{S_B}, 1")
        e(f"s_lshl_b32 s{S_T0}, s{S_T0}, 7")
        e(f"s_lshl_b32 s{S_T1}, s{S_B}, 1")
        e(f"s_and_b32 s{S_T1}, s{S_T1}, 12")
        e(f"s_add_u32 s{S_CO}, s{S_T0}, s{S_T1}")
        e(f"v_xor_b32 v{T+2}, 192, v0")
        e(f"v_or_b32 v{T+2}, s{S_H}, v{T+2}")
        e(f"v_lshlrev_b32 v{V_DO}, 8, v{T+2}")
        e(f"s_mul_i32 s{S_T0}, s{S_NC}, 0x9e3779b1")
        e(f"s_or_b32 s{S_T0}, s{S_T0}, 1")
        e(f"v_mov_b32 v{V_TK}, s{S_T0}")
        e.vmop(f"buffer_store_dword v{V_TK}, v{V_DO}, s[{R_DBG}:{R_DBG+3}], s{S_CO} offen sc1", "tagst")
        e.c("unit this wave reduces at the end: 32*wave + head")
        e(f"s_lshl_b32 s{S_CT}, s{S_W}, 5")
        e(f"s_add_u32 s{S_CT}, s{S_CT}, s{S_H}")
        e(f"s_mul_i32 s{S_T0}, s{S_B}, {80 if half else 40}")
        e(f"s_add_u32 s{S_T0}, s{S_T0}, s{S_CT}")
        e(f"s_lshl_b32 s{S_T0}, s{S_T0}, {12 if half else 13}")
        e(f"s_cmp_lt_u32 s{S_CT}, {80 if half else 40}")
        e(f"s_cselect_b32 s{S_T1}, {4096 if half else 8192}, 0")
        srd(e, R_RD, S_WS, S_T0, f"s{S_T1}")
        e(f"s_mul_i32 s{S_T0}, s{S_B}, 5120")
        srd(e, R_OUT, S_OUT, S_T0, 5120)
        e(f"v_lshlrev_b32 v{V_IA}, 4, v{V_L}")
        e(f"v_add_u32 v{V_IA+1}, 4096, v{V_IA}")
        e(f"v_add_u32 v{V_UW}, s{S_RING}, v{V_IA}")
        e.c("output byte offset: row = lane&3, column 16*tile + 4*((lane>>2)&3) + {0,2,1,3}[lane>>4]")
        e(f"v_mul_u32_u24 v{V_OA}, 1280, v{SS}")
        e(f"v_and_b32 v{T+2}, {4 if half else 12}, v{V_L}")
        e(f"v_lshl_add_u32 v{V_OA}, v{T+2}, 1, v{V_OA}")
        if half:
            e(f"v_and_b32 v{T+2}, 8, v{V_L}")
            e(f"v_lshl_add_u32 v{V_OA}, v{T+2}, 20, v{V_OA}")
        e(f"v_bfe_u32 v{T+2}, v{V_L}, 4, 1")
        e(f"v_lshl_add_u32 v{V_OA}, v{T+2}, 2, v{V_OA}")
        e(f"v_lshrrev_b32 v{T+2}, 5, v{V_L}")
        e(f"v_lshl_add_u32 v{V_OA}, v{T+2}, 1, v{V_OA}")
        e(f"s_lshl_b32 s{S_T0}, s{S_CT}, {4 if half else 5}")
        e(f"v_add_u32 v{V_OA}, s{S_T0}, v{V_OA}")
        if helps:
            e.c("V window and tile order of the neighbouring head")
            e(f"s_xor_b32 s{S_T1}, s{S_H}, {hx}")
            e(f"s_and_b32 s{S_T0}, s{S_T1}, 3")
            e(f"s_and_b32 s{S_PK}, s{S_H}, 3")
            e(f"s_sub_u32 s{S_T0}, s{S_T0}, s{S_PK}")
            e(f"s_mul_i32 s{S_T0}, s{S_T0}, {krot[2]}")
            e(f"s_add_u32 s{S_PK}, s{S_KW}, s{S_T0}")
            e(f"s_lshl_b32 s{S_T0}, s{S_B}, 5")
            e(f"s_add_u32 s{S_T0}, s{S_T0}, s{S_T1}")
            e(f"s_mul_i32 s{S_T0}, s{S_T0}, 1572864")
            e(f"s_add_u32 s{S_T0}, s{S_T0}, {3072*384}")
            srd(e, R_PV, S_V, S_T0, 393216)
        if ncol:
            e.c("column tiles: 48 rows x 128 bytes")
            e(f"v_lshrrev_b32 v{T+2}, 3, v{V_L}")
            e(f"v_and_b32 v{T+3}, 6, v{T+2}")
            e(f"v_and_b32 v{T+4}, 7, v{V_L}")
            e(f"v_xor_b32 v{T+3}, v{T+3}, v{T+4}")
            e(f"v_lshlrev_b32 v{T+3}, 4, v{T+3}")
            e(f"v_mul_u32_u24 v{T+2}, 384, v{T+2}")
            e(f"v_add_u32 v{V_CV}, v{T+2}, v{T+3}")
            e(f"v_add_u32 v{V_CV+1}, {8*384}, v{V_CV}")
            e(f"v_lshrrev_b32 v{T+2}, 2, v{V_L}")
            e(f"v_and_b32 v{T+3}, 6, v{T+2}")
            e(f"v_lshlrev_b32 v{T+3}, 4, v{T+3}")
            e(f"v_lshl_add_u32 v{T+3}, v{SS}, 3, v{T+3}")
            e(f"v_lshlrev_b32 v{T+2}, 7, v{T+2}")
            e(f"v_add3_u32 v{V_CA}, v{T+2}, v{T+3}, s{S_RING}")
            for q in range(1, 4):
                e(f"v_xor_b32 v{V_CA+q}, {32*q}, v{V_CA}")
            e.c("o exchange: [d tile][g][wave][row] x 16 bytes")
            e(f"v_and_b32 v{T+2}, 15, v{V_L}")
            e(f"v_lshlrev_b32 v{T+2}, 4, v{T+2}")
            e(f"v_lshl_add_u32 v{T+2}, v{G}, 8, v{T+2}")
            e(f"v_add_u32 v{V_ER}, {PART}, v{T+2}")
            e(f"s_lshl_b32 s{S_T0}, s{S_W}, 6")
            e(f"v_add_u32 v{V_EW}, s{S_T0}, v{V_ER}")

    def tr_reads(slot):
        for dt in range(12):
            cx.e(f"ds_read_b64_tr_b16 v[{V_RD+2*dt}:{V_RD+2*dt+1}], v{V_VA + (dt & 3)} offset:{slot*SLOT + 128*(dt >> 2)}")

    def pv_mfma(breg, first):
        for dt in range(12):
            a = V_ACC + 4 * dt
            cc = "0" if first else f"v[{a}:{a+3}]"
            cx.e(f"v_mfma_f32_16x16x16_bf16 v[{a}:{a+3}], v[{V_RD+2*dt}:{V_RD+2*dt+1}], v[{breg}:{breg+1}], {cc}")

    def reduce_partials(label, st):
        e = cx.e
        e.c("sum the four waves' partial rows, round to bf16")
        e("s_mov_b32 exec_lo, 0x000f000f")
        e("s_mov_b32 exec_hi, 0x000f000f")
        for dt in range(12):
            a = V_ACC + 4 * dt
            e(f"ds_write_b128 v{V_PW}, v[{a}:{a+3}] offset:{64*dt}")
        e("s_mov_b64 exec, -1")
        if st:
            st.sprinkle(qs1)
        e("s_waitcnt lgkmcnt(0)")
        e("s_barrier")
        tr(label[2] + ".b1")
        e(f"s_cmp_eq_u32 s{S_W}, 3")
        e(f"s_cbranch_scc1 {label}")
        for w in range(4):
            e(f"ds_read_b128 v[{V_RD+4*w}:{V_RD+4*w+3}], v{V_PR} offset:{PWAVE*w}")
        e("s_waitcnt lgkmcnt(0)")
        for r in range(4):
            e(f"v_add_f32 v{V_RD+r}, v{V_RD+r}, v{V_RD+4+r}")
        for r in range(4):
            e(f"v_add_f32 v{V_RD+8+r}, v{V_RD+8+r}, v{V_RD+12+r}")
        for r in range(4):
            e(f"v_add_f32 v{V_RD+r}, v{V_RD+r}, v{V_RD+8+r}")
        e(f"v_cvt_pk_bf16_f32 v{V_RD+4}, v{V_RD}, v{V_RD+1}")
        e(f"v_cvt_pk_bf16_f32 v{V_RD+5}, v{V_RD+2}, v{V_RD+3}")
        e(f"ds_write_b64 v{V_BW}, v[{V_RD+4}:{V_RD+5}]")
        e("s_waitcnt lgkmcnt(0)")
        e(f"{label}:")
        if st:
            st.sprinkle(qs2)
        e("s_barrier")

    def score_post(t):
        e = cx.e
        s = V_S + 4 * t
        a, b = T + 2, T + 3
        for rnd in range(2):
            e(f"v_cvt_pk_bf16_f32 v{a}, v{s}, v{s+1}")
            e(f"v_cvt_pk_bf16_f32 v{b}, v{s+2}, v{s+3}")
            e(f"v_lshlrev_b32 v{s}, 16, v{a}")
            e(f"v_and_b32 v{s+1}, 0xffff0000, v{a}")
            e(f"v_lshlrev_b32 v{s+2}, 16, v{b}")
            e(f"v_and_b32 v{s+3}, 0xffff0000, v{b}")
            if rnd == 0:
                for r in range(4):
                    e(f"v_mul_f32 v{s+r}, s{S_SCALE}, v{s+r}")
        e(f"v_max3_f32 v{V_M}, v{V_M}, v{s}, v{s+1}")
        e(f"v_max3_f32 v{V_M}, v{V_M}, v{s+2}, v{s+3}")

    def softmax(st):
        e = cx.e
        e.c("softmax over the 1024 keys of each query row")
        e("s_nop 7")
        score_post(15)
        st.sprinkle(ss)
        e(f"ds_write_b32 v{V_RW}, v{V_M}")
        e("s_waitcnt lgkmcnt(0)")
        e("s_barrier")
        for i in range(4):
            e(f"ds_read_b128 v[{V_RD+4*i}:{V_RD+4*i+3}], v{V_RR} offset:{16*i}")
        e("s_waitcnt lgkmcnt(0)")
        for i in range(8):
            e(f"v_max3_f32 v{V_M}, v{V_M}, v{V_RD+2*i}, v{V_RD+2*i+1}")
        e(f"v_mul_f32 v{V_M}, s{S_L2E}, v{V_M}")
        st.sprinkle(ss)
        l0, l1 = T + 2, T + 3
        for r in range(64):
            e(f"v_fma_f32 v{V_S+r}, v{V_S+r}, s{S_L2E}, -v{V_M}")
        st.sprinkle(ss)
        for r in range(64):
            e(f"v_exp_f32 v{V_S+r}, v{V_S+r}")
            if r == 31:
                st.sprinkle(ss)
        st.sprinkle(ss)
        e(f"v_add_f32 v{l0}, v{V_S}, v{V_S+1}")
        e(f"v_add_f32 v{l1}, v{V_S+2}, v{V_S+3}")
        for r in range(4, 64, 2):
            e(f"v_add_f32 v{l0}, v{l0}, v{V_S+r}")
            e(f"v_add_f32 v{l1}, v{l1}, v{V_S+r+1}")
        e(f"v_add_f32 v{l0}, v{l0}, v{l1}")
        e(f"ds_write_b32 v{V_RW}, v{l0} offset:{RSUM-RMAX}")
        e("s_waitcnt lgkmcnt(0)")
        e("s_barrier")
        for i in range(4):
            e(f"ds_read_b128 v[{V_RD+4*i}:{V_RD+4*i+3}], v{V_RR} offset:{RSUM-RMAX+16*i}")
        st.sprinkle(ss)
        e("s_waitcnt lgkmcnt(0)")
        for i in range(8):
            e(f"v_add_f32 v{V_RD+i}, v{V_RD+i}, v{V_RD+8+i}")
        for i in range(4):
            e(f"v_add_f32 v{V_RD+i}, v{V_RD+i}, v{V_RD+4+i}")
        e(f"v_add_f32 v{V_RD}, v{V_RD}, v{V_RD+1}")
        e(f"v_add_f32 v{V_RD+2}, v{V_RD+2}, v{V_RD+3}")
        e(f"v_add_f32 v{V_RD}, v{V_RD}, v{V_RD+2}")
        e(f"v_rcp_f32 v{l0}, v{V_RD}")
        e("s_nop 0")
        for r in range(64):
            e(f"v_mul_f32 v{V_S+r}, v{l0}, v{V_S+r}")
        st.sprinkle(ss)
        for r in range(32):
            e(f"v_cvt_pk_bf16_f32 v{V_P+r}, v{V_S+2*r}, v{V_S+2*r+1}")
        e(f"v_mov_b32 v{V_M}, 0xffffff00")
        e("s_nop 0")

    def D_(nt):
        return V_S + 4 * nt
    def out_mfma(nt, j, breg):
        d = D_(nt)
        a = (j * 10 + nt) * 4
        cc = "0" if j == 0 else f"v[{d}:{d+3}]"
        cx.e(f"v_mfma_f32_16x16x32_bf16 v[{d}:{d+3}], a[{a}:{a+3}], v[{breg}:{breg+3}], {cc}")

    def final_projection(js, bregs, pre=None):
        e = cx.e
        ready = {}
        for nt in range(10):
            m, c = nt >> 2, nt & 3
            d = D_(4 * m)
            ops = []
            if c > 0:
                ops = [f"v_mov_b32_dpp v{d+r}, v{D_(nt)+r} quad_perm:[0,1,2,3] row_mask:0xf bank_mask:{1 << c:#x}" for r in range(4)]
            if c == 3 or nt == 9:
                ops += [f"v_and_or_b32 v{d+r}, v{d+r}, v{V_M}, s{S_TG+r}" for r in range(4)]
                ops.append(f"buffer_store_dwordx4 v[{d}:{d+3}], v{V_ST if m < 2 else V_ST2}, s[{R_IN}:{R_IN+3}], s{S_TP+m} offen {f_st}")
            ready[nt] = ops
        pend, since = [], {}
        def tick():
            for k in since:
                since[k] += 1
        def promote():
            for k in sorted(ready):
                if since.get(k, -1) >= 8 and since.get(k & ~3, -1) >= 8:
                    pend.extend(ready.pop(k))
                else:
                    break
        per_gap = 1 if len(js) > 2 else 2
        if pre is not None:
            for nt in range(10):
                out_mfma(nt, js[0], bregs[js[0]])
                for _ in range(3):
                    if pre:
                        e(pre.pop(0))
            assert not pre
            js = js[1:]
            per_gap = 3
        for nt in range(10):
            for j in js:
                out_mfma(nt, j, bregs[j])
                tick()
                if j == js[-1]:
                    since[nt] = 0
                promote()
                for _ in range(per_gap):
                    if pend:
                        e(pend.pop(0)); tick()
        while pend or ready:
            promote()
            if pend:
                e(pend.pop(0)); tick()
            elif ready:
                k = min(ready)
                need = 8 - min(since[k], since[k & ~3])
                e(f"s_nop {need - 1}")
                for _ in range(need):
                    tick()

    def stage(st, m):
        e = cx.e
        e("s_mov_b32 exec_lo, 0x000f000f")
        e("s_mov_b32 exec_hi, 0x000f000f")
        e("s_nop 2")
        for q in range(4):
            a = V_ACC + 4 * (4 * m + q)
            e(f"ds_write_b128 v{V_EW}, v[{a}:{a+3}] offset:{1024*(4*m+q)}")
        e("s_mov_b64 exec, -1")
        st.sprinkle(1)
        e("s_waitcnt lgkmcnt(0)")
        e("s_barrier")
        if m == 2:
            tr("o.b1")
        for q in range(4):
            e(f"ds_read_b128 v[{V_RD+4*q}:{V_RD+4*q+3}], v{V_ER} offset:{1024*(4*m+q)}")
        ror = lambda r, n: f"v_add_f32_dpp v{V_RD+r}, v{V_RD+r}, v{V_RD+r} row_ror:{n} row_mask:0xf bank_mask:0xf"
        cvt = lambda r: f"v_cvt_pk_bf16_f32 v{V_QB+r}, v{V_RD+2*r}, v{V_RD+2*r+1}"
        pre = None
        if fast > 1 and m == 2:
            for q in range(2):
                e(f"s_waitcnt lgkmcnt({3-q})")
                for r in range(4 * q, 4 * q + 4):
                    e(ror(r, 8))
            for r in range(8):
                e(ror(r, 4))
            for r in range(4):
                e(cvt(r))
            e("s_waitcnt lgkmcnt(0)")
            e("s_nop 0")
            pre = [ror(r, 8) for r in range(8, 16)] + [ror(r, 4) for r in range(8, 16)] + [cvt(r) for r in range(4, 8)]
        else:
            for q in range(4):
                e(f"s_waitcnt lgkmcnt({3-q})")
                for r in range(4 * q, 4 * q + 4):
                    e(ror(r, 8))
            for r in range(16):
                e(ror(r, 4))
            for r in range(8):
                e(cvt(r))
            st.sprinkle(1)
            e("s_nop 0")
        bregs = {2 * m: V_QB, 2 * m + 1: V_QB + 4}
        if m < 2:
            for j in (2 * m, 2 * m + 1):
                for nt in range(10):
                    out_mfma(nt, j, bregs[j])
        else:
            tr("obr")
            final_projection([4, 5], bregs, pre)

    def consume(st, tl):
        e = cx.e
        kind, t = tl
        if tl in st.park:
            st.stage_slot(tl)
            for i in range(6):
                a = st.park[tl] + 4 * i
                e(f"ds_write_b128 v{V_UW}, a[{a}:{a+3}] offset:{st.slot[tl]*SLOT + 1024*i}")
        sl = st.slot[tl]
        done.add(tl)
        if kind != "P":
            tr_begin()
        if kind == "K":
            for j in range(6):
                e(f"ds_read_b128 v[{V_RD+4*j}:{V_RD+4*j+3}], v{V_KA + (j & 1)} offset:{sl*SLOT + 128*(j >> 1)}")
            if t > 0:
                e("s_nop 1")
                score_post(t - 1)
            e("s_waitcnt lgkmcnt(0)")
            tr_end(f"K{t}")
            s = V_S + 4 * t
            for j in range(6):
                cc = "0" if j == 0 else f"v[{s}:{s+3}]"
                e(f"v_mfma_f32_16x16x32_bf16 v[{s}:{s+3}], v[{V_RD+4*j}:{V_RD+4*j+3}], v[{V_QB+4*j}:{V_QB+4*j+3}], {cc}")
            st.release(tl, nfl)
            if t == 15:
                softmax(st)
                tr("sm")
        elif kind == "V":
            tr_reads(sl)
            e("s_waitcnt lgkmcnt(0)")
            tr_end(f"V{t}")
            pv_mfma(V_P + 2 * t, t == 0)
            st.release(tl, nfl)
        elif kind == "C":
            m, t0 = t
            def rreg(u, q):
                if not k32:
                    return V_RD + 2 * (4 * u + q)
                return V_RD + 4 * q + 2 * u if u < 2 else V_RD + 16 + 2 * q
            order = [(u, q) for u in range(3) for q in range(4)]
            if k32:
                order = [(u, q) for q in range(4) for u in range(2)] + [(2, q) for q in range(4)]
            name = f"V{nplain + kv[16+nplain:].index(tl)}"
            last_tile = tl == seq[-1]
            def rd(u, q):
                r = rreg(u, q)
                e(f"ds_read_b64_tr_b16 v[{r}:{r+1}], v{V_CA+q} offset:{sl*SLOT + 2048*u}")
            def mf32(q):
                r, a, b = rreg(0, q), V_ACC + 4 * (4 * m + q), V_P + 2 * t0
                e(f"v_mfma_f32_16x16x32_bf16 v[{a}:{a+3}], v[{r}:{r+3}], v[{b}:{b+3}], v[{a}:{a+3}]")
            def mf16(q):
                r, a, b = rreg(2, q), V_ACC + 4 * (4 * m + q), V_P + 2 * (t0 + 2)
                e(f"v_mfma_f32_16x16x16_bf16 v[{a}:{a+3}], v[{r}:{r+1}], v[{b}:{b+1}], v[{a}:{a+3}]")
            if fast and last_tile:
                for u, q in order[:8]:
                    rd(u, q)
                e("s_waitcnt lgkmcnt(0)")
                for q in range(4):
                    mf32(q)
                e.wait_vm((tl, 5))
                tr_begin()
                for u, q in order[8:]:
                    rd(u, q)
                for q in range(4):
                    e(f"s_waitcnt lgkmcnt({0 if trace else 3 - q})")
                    if q == 0:
                        tr_end(name)
                    mf16(q)
            else:
                for u, q in order:
                    rd(u, q)
                e("s_waitcnt lgkmcnt(0)")
                tr_end(name)
                st.release(tl, nfl)
            if fast and last_tile:
                pass
            elif k32:
                for q in range(4):
                    mf32(q)
                e("s_nop 2")
                for q in range(4):
                    mf16(q)
            else:
                for u, q in order:
                    r = rreg(u, q)
                    a = V_ACC + 4 * (4 * m + q)
                    b = V_P + 2 * (t0 + u)
                    e(f"v_mfma_f32_16x16x16_bf16 v[{a}:{a+3}], v[{r}:{r+1}], v[{b}:{b+1}], v[{a}:{a+3}]")
            if t0 == 13:
                assert not any(x[0] == "O" and x[1] < 4 * m + 4 for x in seq[seq.index(tl):])
                stage(st, m)
        elif kind == "Q":
            tr_reads(sl)
            e("s_waitcnt lgkmcnt(0)")
            tr_end(f"Q{t}")
            st.busy.discard(sl)
            st.top_up(nflq if t < 8 else nflt)
            pv_mfma(V_XR + 2 * t, t == 0)
        elif kind == "P":
            st.release(tl, nfl)
        else:
            j, half = t >> 1, t & 1
            assert all(a >= 40 * j + 40 or p in done for p, a in st.park.items())
            for nt in range(10):
                a = (j * 10 + nt) * 4 + 2 * half
                e(f"ds_read_b64_tr_b16 a[{a}:{a+1}], v{V_WA} offset:{sl*SLOT + 32*nt}")
            e("s_waitcnt lgkmcnt(0)")
            tr_end(f"O{t}" if t in (0, 5, 6, 11) else "Ox")
            st.release(tl, nfl)
        done.add(tl)

    def group(gi):
        done.clear()
        st = Stream(*plans[gi])
        st.next = 6
        st.busy.add(st.slot[("Q", 0)])
        cx.e.vm = list(first_vm)
        st.top_up(nflq)
        late_setup(gi)
        for p in range(10):
            st.wait_tile(("Q", p), nflq)
            consume(st, ("Q", p))
        reduce_partials(f"L_qred_{gi}", st)
        for j in range(6):
            cx.e(f"ds_read_b128 v[{V_QB+4*j}:{V_QB+4*j+3}], v{V_BR} offset:{64*j}")
        cx.e(f"v_mov_b32 v{V_M}, 0xff800000")
        st.sprinkle()
        cx.e("s_waitcnt lgkmcnt(0)")
        tr("qrdy")
        for pos in range(MERGE):
            tl = seqs[gi][pos]
            cx.e.c(f"consume {tl[0]}{tl[1]}")
            st.wait_tile(tl, nfl)
            consume(st, tl)
            if pos == 0:
                post_q_setup()
        return st

    done = set()
    head = cx.e
    for gi in range(1, len(groups)):
        head(f"s_cmp_eq_u32 s{S_G}, {gi}")
        head(f"s_cbranch_scc1 L_grp_{gi}")
    paths = []
    for gi in range(len(groups)):
        cx.e = E()
        paths.append((group(gi), cx.e))
    left = min(len(st.flat) - st.next for st, _ in paths)
    for st, em in paths:
        cx.e = em
        while len(st.flat) - st.next > left:
            st.gated(nfl)
        em.wait_vm("tagst")
    n = max(len(em.vm) for _, em in paths)
    X = paths[0][0].next
    for st, em in paths:
        assert st.busy == paths[0][0].busy and st.flat[st.next - n:] == paths[0][0].flat[X - n:]
    e = cx.e = head
    for gi, (st, em) in enumerate(paths):
        if gi:
            e(f"L_grp_{gi}:")
        e.lines += em.lines
        if gi < len(paths) - 1:
            e("s_branch L_merge")
    e("L_merge:")
    st = paths[0][0]
    st.park = {}
    e.vm = list(st.flat[X - n:X])

    hooks = {}
    def h_tagload():
        e.vmop(f"buffer_load_dword v{V_TK}, off, s[{R_DBG}:{R_DBG+3}], s{S_CO} sc1", "tagld")
        hooks[seq.index(st.next_tile())] = h_tagcheck
    def h_tagcheck():
        assert "tagld" not in e.vm
        e(f"s_mov_b32 s{S_SPIN}, {spin_max}")
        e("L_spin:")
        e(f"v_readfirstlane_b32 s{S_T0}, v{V_TK}")
        e(f"s_sub_u32 s{S_SPIN}, s{S_SPIN}, 1")
        e("s_cbranch_scc1 L_spin_done")
        e(f"s_cmp_lg_u32 s{S_T0}, 0")
        e("s_cbranch_scc1 L_spin_done")
        e(f"buffer_load_dword v{V_TK}, off, s[{R_DBG}:{R_DBG+3}], s{S_CO} sc1")
        e("s_waitcnt vmcnt(0)")
        e("s_branch L_spin")
        e("L_spin_done:")
        for r in range(4):
            e(f"s_bfe_u32 s{S_TG+r}, s{S_T0}, {0x80000 + 8*r:#x}")
    hooks[max(MERGE, seq.index(("V", 4)))] = h_tagload
    plain_issue = st.issue_next
    def issue_then_warm():
        plain_issue()
        if warm and st.next == len(st.flat) - (warm - 1):
            e.c("pull the inbox lines written so far into L2")
            for i in range(4):
                e.vmop(f"buffer_load_dwordx4 v[{V_S+40+4*i}:{V_S+43+4*i}], v{V_IA}, s[{R_RD}:{R_RD+3}], 0 offen offset:{1024*i} {f_poll}", "warm")
    st.issue_next = issue_then_warm
    for pos in range(MERGE, len(seq)):
        tl = seq[pos]
        if pos == len(seq) - tail_from:
            e.c("the rest of the kernel sits in one 4 KiB code page")
            e("s_branch L_tailpage")
            e(".p2align 12")
            e("L_tailpage:")
        k = pos - (len(seq) - hpos)
        if 0 <= k < len(helps):
            assert st.next == len(st.flat)
            e.c("touch the neighbour's last tiles: whichever workgroup comes second finds them in L2")
            for m, t0 in helps[k]:
                sl = [z for z in range(NSLOT) if z not in st.busy][0]
                st.busy.add(sl)
                for i in range(6):
                    if i & 1 == 0:
                        key_tile_offset(t0 + (i >> 1), 128 * m, S_PK)
                    e(f"s_add_u32 m0, s{S_RING}, {sl*SLOT + i*1024}")
                    e("s_nop 0")
                    e.vmop(f"buffer_load_dwordx4 v{V_CV + (i & 1)}, s[{R_PV}:{R_PV+3}], s{S_OFF} offen {f_last} lds", "help")
        e.c(f"consume {tl[0]}{tl[1]}")
        if fast and tl == seq[-1]:
            assert st.next == len(st.flat)
            e.wait_vm((tl, 3))
        else:
            st.wait_tile(tl, nfle if nfle and tl[0] == "C" else nfl)
        if pos in hooks:
            hooks.pop(pos)()
        consume(st, tl)
    assert st.next == len(st.flat) and not hooks, hooks

    if not ncol:
        e.c("output projection of this head")
        reduce_partials("L_ored", None)
        tr_begin()
        for j in range(6):
            e(f"ds_read2_b64 v[{V_QB+4*j}:{V_QB+4*j+3}], v{V_BO} offset0:{8*j} offset1:{8*j+4}")
        e("s_waitcnt lgkmcnt(0)")
        tr_end("obr")
        final_projection(list(range(6)), {j: V_QB + 4 * j for j in range(6)})
    tr("sent")
    if ackwait == 2:
        e("s_waitcnt vmcnt(0)")
        e("s_barrier")
    NL = 4 if half else 8
    e(f"s_cmp_ge_u32 s{S_CT}, {80 if half else 40}")
    e("s_cbranch_scc1 L_fin")
    e.c("reduce one 16-column tile over the 32 heads")
    e(f"s_mov_b32 s{S_SPIN}, {spin_max}")
    D = V_S
    A = V_RD
    if ackwait:
        e("s_waitcnt vmcnt(0)")
    e("L_poll:")
    for i in range(NL):
        e(f"buffer_load_dwordx4 v[{D+4*i}:{D+4*i+3}], v{V_IA + (i >> 2)}, s[{R_RD}:{R_RD+3}], 0 offen offset:{1024*(i & 3)} {f_poll}")
    for i in range(NL):
        e(f"s_waitcnt vmcnt({NL-1-i})")
        d = D + 4 * i
        for r in range(4):
            e(f"v_xor_b32 v{d+r}, s{S_TG+r}, v{d+r}")
        if i == 0:
            e(f"v_or3_b32 v{A+4}, v{d}, v{d+1}, v{d+2}")
            e(f"v_or_b32 v{A+4}, v{A+4}, v{d+3}")
        else:
            e(f"v_or3_b32 v{A+4}, v{A+4}, v{d}, v{d+1}")
            e(f"v_or3_b32 v{A+4}, v{A+4}, v{d+2}, v{d+3}")
            for r in range(4):
                e(f"v_add_f32 v{A+r}, v{A+r if i > 1 else D+r}, v{d+r}")
    e(f"v_and_b32 v{A+4}, 0xff, v{A+4}")
    e(f"v_cmp_ne_u32 vcc, 0, v{A+4}")
    e(f"s_sub_u32 s{S_SPIN}, s{S_SPIN}, 1")
    e("s_cbranch_scc1 L_ready")
    e("s_cbranch_vccnz L_poll")
    e("L_ready:")
    if trace == 3:
        e(f"v_writelane_b32 v{V_TR}, s{S_SPIN}, 60")
        tr("rdy")
    e(f"v_permlane32_swap_b32 v{A}, v{A+1}")
    e(f"v_permlane32_swap_b32 v{A+2}, v{A+3}")
    e("s_nop 0")
    e(f"v_add_f32 v{A}, v{A}, v{A+1}")
    e(f"v_add_f32 v{A+2}, v{A+2}, v{A+3}")
    e("s_nop 1")
    e(f"v_permlane16_swap_b32 v{A}, v{A+2}")
    e("s_nop 0")
    e(f"v_add_f32 v{A}, v{A}, v{A+2}")
    if half:
        e("s_nop 1")
        e(f"v_add_f32_dpp v{A}, v{A}, v{A} row_ror:8 row_mask:0xf bank_mask:0xf")
    e(f"v_cvt_pk_bf16_f32 v{A}, v{A}, v{A}")
    e(f"buffer_store_short v{A}, v{V_OA}, s[{R_OUT}:{R_OUT+3}], 0 offen {f_out}")
    e("L_fin:")
    if dbgtime:
        e("s_waitcnt vmcnt(0)")
        e("s_memrealtime s[92:93]")
        if dbgtime == "end":
            e("s_memrealtime s[90:91]")
        e("s_waitcnt lgkmcnt(0)")
        e(f"s_sub_u32 s94, s90, s{S_NC}")
        e("s_lshl_b32 s94, s94, 1")
        e("s_add_u32 s94, s94, s92")
        e("L_stretch:")
        e("s_memrealtime s[96:97]")
        e("s_waitcnt lgkmcnt(0)")
        e("s_sub_u32 s96, s96, s94")
        e("s_cmp_lt_i32 s96, 0")
        e("s_cbranch_scc1 L_stretch")
    if trace:
        e("s_waitcnt vmcnt(0)")
        e("s_memtime s[94:95]")
        tr("end")
        e("s_sub_u32 s94, s94, s96")
        e(f"v_writelane_b32 v{V_TR}, s94, 61")
        e(f"s_getreg_b32 s{S_T0}, hwreg(HW_REG_XCC_ID)")
        e(f"v_writelane_b32 v{V_TR}, s{S_T0}, 63")
        e(f"s_lshl_b32 s{S_T0}, s2, 2")
        e(f"s_add_u32 s{S_T0}, s{S_T0}, s{S_W}")
        e(f"s_lshl_b32 s{S_T0}, s{S_T0}, 8")
        e(f"s_add_u32 s{S_T0}, s{S_T0}, 0x2000000")
        srd(e, R_OUT, S_WS, S_T0, 256)
        e(f"v_lshlrev_b32 v{T+4}, 2, v{V_L}")
        e(f"buffer_store_dword v{V_TR}, v{T+4}, s[{R_OUT}:{R_OUT+3}], 0 offen")
        assert len(TRACE_NAMES) <= 60, len(TRACE_NAMES)
    e("L_end:")
    e("s_endpgm")

    return f"""; Fused q-projection + sliding-window attention + output projection for B=8, Sq=4, D=640, H=32, Dh=192, W=1024.
;
; @launch grid=(256,1,1) block=(256,1,1) lds={LDS_BYTES}
.amdgcn_target "amdgcn-amd-amdhsa--gfx950"
.text
.globl {KN}
.p2align 12
.p2align 8
.type {KN},@function
{e.text()}
.section .rodata,"a"
.p2align 6
.amdhsa_kernel {KN}
  .amdhsa_next_free_vgpr 496
  .amdhsa_next_free_sgpr 102
  .amdhsa_accum_offset 256
  .amdhsa_group_segment_fixed_size 0
  .amdhsa_kernarg_size 64
  .amdhsa_user_sgpr_count 2
  .amdhsa_user_sgpr_kernarg_segment_ptr 1
  .amdhsa_system_sgpr_workgroup_id_x 1
.end_amdhsa_kernel
"""

if __name__ == "__main__":
    kw = eval("dict(" + (sys.argv[1] if len(sys.argv) > 1 else "") + ")")
    sys.stdout.write(gen(**kw))
```

```python
import struct, sys

KN = "standalone__sliding_block_cached__sampling_kernel"
TRACE_NAMES = []

def f32(x):
    return struct.unpack("<I", struct.pack("<f", x))[0]

class E:
    def __init__(self):
        self.lines = []
        self.vm = []
    def __call__(self, s=""):
        self.lines.append("    " + s if s and not s.endswith(":") else s)
    def c(self, s):
        self.lines.append("    ; " + s)
    def vmop(self, s, tag):
        self(s)
        self.vm.append(tag)
    def wait_vm(self, tag):
        idx = max([i for i, t in enumerate(self.vm) if t == tag], default=-1)
        if idx < 0:
            return
        n = len(self.vm) - 1 - idx
        self(f"s_waitcnt vmcnt({min(n, 63)})")
        self.vm = self.vm[idx + 1:]
    def text(self):
        return "\n".join(self.lines) + "\n"

SLOT = 6144
NSLOT = 6
RING = SLOT * NSLOT
MISC = 4 * RING
PART = MISC
PROW = 784
PWAVE = 4 * PROW
BROW = 400
QBF = MISC + 4 * PWAVE
RMAX = QBF + 4 * BROW
RSUM = RMAX + 256
LDS_BYTES = RSUM + 256

INBOX_B = 40 * 8192

S_W = 3
S_X, S_K, S_V, S_WQ, S_WO, S_OUT, S_DBG, S_WS = 4, 6, 8, 10, 12, 14, 16, 18
R_K, R_V, R_WQ, R_WO, R_X, R_IN, R_OUT, R_DBG = 20, 24, 28, 32, 36, 40, 44, 48
R_RD = 28
S_B, S_H, S_RING, S_OFF, S_T0, S_T1 = 52, 53, 54, 55, 56, 57
S_KW = 58
S_QW = 59
S_TP = 60
S_TG = 64
S_SCALE, S_L2E = 70, 71
S_CT = 72
S_SPIN = 73
S_XL = 74
S_G = 75
S_NC = 76
S_CO = 78
S_PF = 79
S_PK = 79
R_PV = 36
S_TR = 100

V_L = 1
V_KV = 2
V_WQ = 8
V_WO = 14
V_KA = 19
V_VA = 21
V_WA = 25
V_PW = 26
V_PR = 27
V_BW = 28
V_BR = 29
V_BO = 30
V_PF = 30
V_RW = 31
V_RR = 32
V_M = 33
V_T = 34
V_ST = 39
V_RD = 40
V_ACC = 64
V_QB = 112
V_S = 136
V_P = 200
V_XR = 232
V_IA = 232
V_OA = 234
V_UW = 235
V_CV = 236
V_CA = 238
V_EW = 242
V_ER = 243
V_TK = 252
V_DO = 253
V_TR = 254
V_XO = 255
V_ST2 = 255

def srd(e, r, base, off, nbytes):
    if off is None:
        e(f"s_mov_b32 s{r}, s{base}")
        e(f"s_and_b32 s{r+1}, s{base+1}, 0xffff")
    else:
        e(f"s_add_u32 s{r}, s{base}, s{off}")
        e(f"s_addc_u32 s{r+1}, s{base+1}, 0")
        e(f"s_and_b32 s{r+1}, s{r+1}, 0xffff")
    e(f"s_mov_b32 s{r+2}, {nbytes}")
    e(f"s_mov_b32 s{r+3}, 0x20000")

def nloads(tile):
    if tile[0] == "P":
        return tile[1][1]
    return 5 if tile[0] == "O" else 6

def gen(groups=((0, 0, 10), (3, 0, 2), (7, 2, 1), (10, 2, 1)), gmap=(0, 1, 2, 3, 0, 1, 2, 3), rots=(0, 2, 3, 4, 5, 7, 8, 9),
        nfl=11, nflq=11, nflt=10, backlog=2, pbacklog=4, wo_at=(13, 14, 16, 17, 19, 20, 22, 23, 25, 26, 28, 29), f_kv="nt", f_wq="", f_wo="",
        krot=(56, 0, 16), kw=1, krt=0, ncol=6, trace=0, spin_max=100000, tail_from=2, qs1=3, qs2=3, tag_pos=None, ss=2, half=1, k32=1, f_st='sc1', f_poll='sc1', f_out='', warm=0, helps=(), f_last='', hx=1, hpos=2, deflast=(), nfle=None, touch=0, tshift=15, fast=1, ackwait=1, warm0=0, ob=(13, 22, 15, 26), pp=(8, 9, 11, 12), pn=(9, 10, 3, 8), alignb=3, dbgtime=None):
    del TRACE_NAMES[:]
    T = V_T
    G, SS = T, T + 1

    class Ctx:
        pass
    cx = Ctx()
    cx.e = E()

    def tr_begin(force=False):
        if trace and (trace != 4 or force):
            cx.e(f"s_memrealtime s[{S_TR}:{S_TR+1}]")
    def tr_end(name):
        if dbgtime == name:
            cx.e("s_memrealtime s[90:91]")
        if trace and (trace != 4 or name in ("start", "V15", "end")):
            if name not in TRACE_NAMES:
                TRACE_NAMES.append(name)
            cx.e(f"v_writelane_b32 v{V_TR}, s{S_TR}, {TRACE_NAMES.index(name)}")
    def tr(name):
        if dbgtime == name:
            cx.e("s_memrealtime s[90:91]")
        if trace and not (trace == 2 and name in ("o.b1", "obr", "sent")) and not (trace == 3 and name in ("o.b1", "obr")) and (trace != 4 or name == "end"):
            tr_begin(True)
            cx.e("s_waitcnt lgkmcnt(0)")
            tr_end(name)

    def nibble(dst, table):
        packed = sum(r << (4 * i) for i, r in enumerate(table))
        cx.e(f"s_lshr_b32 s{dst}, {packed:#x}, s{S_T1}")
        cx.e(f"s_and_b32 s{dst}, s{dst}, 15")

    nplain = 16 - ncol
    kv = [("K", t) for t in range(16)] + [("V", t) for t in range(nplain)]
    kv += [("C", (m, t0)) for m in range(3) for t0 in range(nplain, 16, 3)]
    if wo_at is None:
        wo_at = list(range(7, 31, 2))
    assert len(wo_at) == 12
    seq = []
    wo_i = 0
    for n, tl in enumerate(kv):
        seq.append(tl)
        while wo_i < 12 and wo_at[wo_i] == n + 1:
            seq.append(("O", wo_i)); wo_i += 1
    assert wo_i == 12
    seqs = [seq] * len(groups)
    if ob:
        seqs = []
        for gi in range(len(groups)):
            sq, k = [], 0
            pieces = dict(ob[gi]) if isinstance(ob[gi], (tuple, list)) else {ob[gi]: 12}
            assert sum(pieces.values()) == 12
            for n, tl in enumerate(kv):
                sq.append(tl)
                if n + 1 == pp[gi]:
                    h1 = min(6, (pn[gi] + 1) // 2 if pn[gi] > 6 else pn[gi])
                    sq += [("P", (0, h1)), ("P", (h1, pn[gi] - h1))]
                if n + 1 in pieces:
                    sq += [("O", t) for t in range(k, k + pieces[n + 1])]
                    k += pieces[n + 1]
            seqs.append(sq)
        seq = seqs[0]

    def group_plan(gi, npre, npost, nq0):
        seq = seqs[gi]
        main_slots = {tl: n % NSLOT for n, tl in enumerate(seq)}
        nring = min(npre, 4)
        nq = NSLOT - nring
        nq0 = min(nq0, 10)
        assert npre == 0 or nq0 <= nq
        order = [("Q", p) for p in range(nq0)] + seq[:npre] + [("Q", p) for p in range(nq0, 10)] + seq[npre:]
        slots = dict(main_slots)
        slots.update({("Q", p): nring + (p - (10 - nq)) % nq for p in range(10)})
        parked = seq[nring:npre + npost] if npre > nring or npost else []
        assert all(t[0] == "K" for t in seq[:npre + npost])
        park = {tl: 240 - 24 * (i + 1) for i, tl in enumerate(parked)}
        return order, slots, park
    plans = [group_plan(gi, *g) for gi, g in enumerate(groups)]
    MERGE = max(6, max(g[0] + g[1] for g in groups) + 1)
    while any(sq[MERGE - 1:] != seq[MERGE - 1:] for sq in seqs):
        MERGE += 1

    e = cx.e
    e(f"{KN}:")
    e("s_cmp_ge_u32 s2, 256")
    e("s_cbranch_scc1 L_end")
    tr_begin(True)
    if trace:
        e("s_memtime s[96:97]")
    e(f"s_memrealtime s[{S_NC}:{S_NC+1}]")
    e("s_load_dwordx16 s[4:19], s[0:1], 0")
    e(f"v_lshrrev_b32 v{T}, 6, v0")
    e(f"v_and_b32 v{V_L}, 63, v0")
    e(f"v_readfirstlane_b32 s{S_W}, v{T}")
    if trace:
        e(f"v_mov_b32 v{V_TR}, 0")
    e.c("head = 4*(wg&7) + ((wg>>3)&3), batch = wg>>5")
    e(f"s_and_b32 s{S_H}, s2, 7")
    e(f"s_lshl_b32 s{S_H}, s{S_H}, 2")
    e(f"s_bfe_u32 s{S_T0}, s2, 0x20003")
    e(f"s_add_u32 s{S_H}, s{S_H}, s{S_T0}")
    e(f"s_lshr_b32 s{S_B}, s2, 5")
    e(f"s_mul_i32 s{S_RING}, s{S_W}, {RING}")
    e(f"s_mul_i32 s{S_QW}, s{S_W}, {160*12288}")
    e.c("first key tile of this wave, rotated per workgroup")
    e(f"s_mul_i32 s{S_KW}, s{S_B}, {krot[0]}")
    e(f"s_and_b32 s{S_T1}, s2, 7")
    e(f"s_mul_i32 s{S_T1}, s{S_T1}, {krot[1]}")
    e(f"s_mul_i32 s{S_T0}, s{S_T0}, {krot[2]}")
    e(f"s_add_u32 s{S_KW}, s{S_KW}, s{S_T1}")
    e(f"s_add_u32 s{S_KW}, s{S_KW}, s{S_T0}")
    e(f"s_mul_i32 s{S_T0}, s{S_W}, {kw}")
    e(f"s_add_u32 s{S_KW}, s{S_KW}, s{S_T0}")
    e.c("per-batch start order, first wq tile and its LDS slot")
    e(f"s_lshl_b32 s{S_T1}, s{S_B}, 2")
    nibble(S_G, gmap)
    nibble(S_TP, rots)
    nibble(S_SPIN, [plans[g][1][("Q", 0)] for g in gmap])
    e(f"s_mul_i32 s{S_SPIN}, s{S_SPIN}, {SLOT}")
    e(f"s_add_u32 s{S_SPIN}, s{S_SPIN}, s{S_RING}")
    for p in range(1, 10):
        e(f"s_add_u32 s{S_TP+p}, s{S_TP+p-1}, 1")
        e(f"s_cmp_eq_u32 s{S_TP+p}, 10")
        e(f"s_cselect_b32 s{S_TP+p}, 0, s{S_TP+p}")
    e.c("DMA source offsets (16-byte chunks XOR-swizzled inside each 128-byte line)")
    e(f"v_lshrrev_b32 v{T}, 3, v{V_L}")
    e(f"v_and_b32 v{T+1}, 7, v{V_L}")
    for i in range(6):
        e(f"v_add_u32 v{T+2}, {8*i}, v{T}")
        e(f"v_mul_u32_u24 v{T+3}, 43, v{T+2}")
        e(f"v_lshrrev_b32 v{T+3}, 7, v{T+3}")
        e(f"v_and_b32 v{T+4}, 6, v{T+3}")
        e(f"v_xor_b32 v{T+4}, v{T+4}, v{T+1}")
        e(f"v_lshlrev_b32 v{T+4}, 4, v{T+4}")
        e(f"v_lshl_add_u32 v{V_KV+i}, v{T+2}, 7, v{T+4}")
        e(f"v_mul_u32_u24 v{T+3}, {12288-384}, v{T+3}")
        e(f"v_add_u32 v{V_WQ+i}, v{V_KV+i}, v{T+3}")
    e(f"v_lshrrev_b32 v{G}, 4, v{V_L}")
    e(f"v_and_b32 v{SS}, 3, v{V_L}")
    e.c("x staging: 80 chunks of 16 bytes, LDS image [row][320 bytes]")
    e(f"v_mul_u32_u24 v{T+2}, 205, v{V_L}")
    e(f"v_lshrrev_b32 v{T+2}, 12, v{T+2}")
    e(f"v_mul_u32_u24 v{T+2}, {1280-320}, v{T+2}")
    e(f"v_lshl_add_u32 v{T+2}, v{V_L}, 4, v{T+2}")
    e(f"s_mul_i32 s{S_T0}, s{S_W}, 320")
    e(f"v_add_u32 v{V_XO}, s{S_T0}, v{T+2}")
    e(f"v_lshlrev_b32 v{T+2}, 4, v{V_L}")
    e(f"v_add_u32 v{T+2}, {3*1280 + 64}, v{T+2}")
    e(f"v_add_u32 v{V_TK}, s{S_T0}, v{T+2}")
    e(f"s_mul_i32 s{S_XL}, s{S_W}, {PWAVE}")
    e(f"s_add_u32 s{S_XL}, s{S_XL}, {PART}")
    e(f"s_mul_i32 s{S_OFF}, s{S_TP}, {16*12288}")
    e(f"s_add_u32 s{S_OFF}, s{S_OFF}, s{S_QW}")
    e("s_waitcnt lgkmcnt(0)")
    tr_end("start")
    e.c("first wq tile and the x operand")
    e(f"s_mul_i32 s{S_T0}, s{S_B}, 5120")
    srd(e, R_X, S_X, S_T0, 5120)
    e(f"s_mov_b32 m0, s{S_XL}")
    e("s_nop 0")
    e.vmop(f"buffer_load_dwordx4 v{V_XO}, s[{R_X}:{R_X+3}], 0 offen lds", ("x", 0))
    e(f"s_add_u32 m0, s{S_XL}, 1024")
    e("s_mov_b64 exec, 0xffff")
    e.vmop(f"buffer_load_dwordx4 v{V_TK}, s[{R_X}:{R_X+3}], 0 offen lds", ("x", 1))
    e("s_mov_b64 exec, -1")
    e(f"s_mul_i32 s{S_T0}, s{S_H}, 384")
    e(f"s_sub_u32 s{S_T1}, {640*12288}, s{S_T0}")
    srd(e, R_WQ, S_WQ, S_T0, f"s{S_T1}")
    for i in range(6):
        e(f"s_add_u32 m0, s{S_SPIN}, {i*1024}")
        e("s_nop 0")
        e.vmop(f"buffer_load_dwordx4 v{V_WQ+i}, s[{R_WQ}:{R_WQ+3}], s{S_OFF} offen {f_wq} lds", (("Q", 0), i))
    e(f"s_lshl_b32 s{S_T0}, s{S_B}, 5")
    e(f"s_add_u32 s{S_T0}, s{S_T0}, s{S_H}")
    e(f"s_mul_i32 s{S_T0}, s{S_T0}, 1572864")
    e(f"s_add_u32 s{S_T0}, s{S_T0}, {3072*384}")
    srd(e, R_K, S_K, S_T0, 393216)
    srd(e, R_V, S_V, S_T0, 393216)
    if krt:
        e(f"s_add_u32 s80, s{S_WS}, 0x3000000")
        e(f"s_addc_u32 s81, s{S_WS+1}, 0")
        e("s_load_dwordx4 s[84:87], s[80:81], 0")
        e("s_waitcnt lgkmcnt(0)")
        e(f"s_mul_i32 s{S_KW}, s{S_B}, s84")
        e(f"s_and_b32 s{S_T1}, s2, 7")
        e(f"s_mul_i32 s{S_T1}, s{S_T1}, s85")
        e(f"s_bfe_u32 s{S_T0}, s2, 0x20003")
        e(f"s_mul_i32 s{S_T0}, s{S_T0}, s86")
        e(f"s_add_u32 s{S_KW}, s{S_KW}, s{S_T1}")
        e(f"s_add_u32 s{S_KW}, s{S_KW}, s{S_T0}")
        e(f"s_mul_i32 s{S_T0}, s{S_W}, s87")
        e(f"s_add_u32 s{S_KW}, s{S_KW}, s{S_T0}")
        e("s_cmp_eq_u32 s87, 1")
        e("s_cselect_b32 s88, 4, 1")
    if warm0:
        e.c("first touch of the inbox lines this wave polls at the end")
        e(f"s_lshl_b32 s{S_CT}, s{S_W}, 5")
        e(f"s_add_u32 s{S_CT}, s{S_CT}, s{S_H}")
        e(f"s_mul_i32 s{S_T0}, s{S_B}, 80")
        e(f"s_add_u32 s{S_T0}, s{S_T0}, s{S_CT}")
        e(f"s_lshl_b32 s{S_T0}, s{S_T0}, 12")
        e(f"s_cmp_lt_u32 s{S_CT}, 80")
        e(f"s_cselect_b32 s{S_T1}, 4096, 0")
        srd(e, R_OUT, S_WS, S_T0, f"s{S_T1}")
        e(f"v_lshlrev_b32 v{V_P+1}, {7 if warm0 == 1 else 6}, v{V_L}")
        e.vmop(f"buffer_load_dword v{V_P}, v{V_P+1}, s[{R_OUT}:{R_OUT+3}], 0 offen sc1", "warm0")
    first_vm = list(e.vm)

    def key_tile_offset(t, extra=0, S_KW=S_KW):
        e = cx.e
        if krt:
            e(f"s_mul_i32 s{S_OFF}, s88, {t}")
            e(f"s_add_u32 s{S_OFF}, s{S_KW}, s{S_OFF}")
        else:
            e(f"s_add_u32 s{S_OFF}, s{S_KW}, {(4 if kw == 1 else 1)*t}")
        e(f"s_and_b32 s{S_OFF}, s{S_OFF}, 63")
        e(f"s_mul_i32 s{S_OFF}, s{S_OFF}, {SLOT}")
        if extra:
            e(f"s_add_u32 s{S_OFF}, s{S_OFF}, {extra}")

    def issue_one(tile, slot, park, i):
        e = cx.e
        kind, t = tile
        if kind in "KV":
            r, vo, fl = (R_K if kind == "K" else R_V), V_KV + i, f_kv
            if i == 0:
                key_tile_offset(t)
        elif kind == "C":
            r, vo, fl = R_V, V_CV + (i & 1), (f_last if any(t in h_ for h_ in helps) or t in deflast else f_kv)
            if i & 1 == 0:
                key_tile_offset(t[1] + (i >> 1), 128 * t[0])
        elif kind == "Q":
            r, vo, fl = R_WQ, V_WQ + i, f_wq
            if i == 0:
                e(f"s_mul_i32 s{S_OFF}, s{S_TP+t}, {16*12288}")
                e(f"s_add_u32 s{S_OFF}, s{S_OFF}, s{S_QW}")
        elif kind == "P":
            r, vo, fl = R_WO, V_PF, f_wo
            e(f"s_add_u32 s{S_OFF}, s{S_PF}, {1024*(t[0] + i)}")
        else:
            r, vo, fl = R_WO, V_WO + i, f_wo
            if i == 0:
                e(f"s_mov_b32 s{S_OFF}, {t*16*1280}")
        if park is not None:
            a = park + 4 * i
            e.vmop(f"buffer_load_dwordx4 a[{a}:{a+3}], v{vo}, s[{r}:{r+3}], s{S_OFF} offen {fl}", (tile, i))
        else:
            e(f"s_add_u32 m0, s{S_RING}, {slot*SLOT + i*1024}")
            e("s_nop 0")
            e.vmop(f"buffer_load_dwordx4 v{vo}, s[{r}:{r+3}], s{S_OFF} offen {fl} lds", (tile, i))

    al = [0]
    class Stream:
        def __init__(self, order, slots, park):
            self.flat = [(tl, i) for tl in order for i in range(nloads(tl))]
            self.slot = dict(slots)
            self.park = park
            self.next = 0
            self.busy = set()
        def can_issue(self):
            if self.next >= len(self.flat):
                return False
            tl, i = self.flat[self.next]
            if i > 0 or tl in self.park:
                return True
            if tl[0] != "Q" and any(p not in done for p in self.park) and len(self.busy) >= NSLOT - 1 and tl not in kv[:4]:
                return False
            return self.slot[tl] not in self.busy
        def issue_next(self):
            tl, i = self.flat[self.next]
            if i == 0 and tl[0] in "KV" and self.next + 6 < len(self.flat):
                nx = self.flat[self.next + 6][0]
                if (nx[0] == "Q" and alignb & 1) or (nx == ("O", 0) and ob and alignb & 2):
                    al[0] += 1
                    cx.e(f"s_branch L_page_{al[0]}")
                    cx.e(".p2align 12")
                    cx.e(f"L_page_{al[0]}:")
            if i == 0 and tl not in self.park:
                assert self.slot[tl] not in self.busy
                self.busy.add(self.slot[tl])
            issue_one(tl, self.slot[tl], self.park.get(tl), i)
            self.next += 1
        def stage_slot(self, tl):
            later = []
            for t2, i in self.flat[self.next:]:
                if i == 0 and t2 not in self.park and self.slot[t2] not in later:
                    later.append(self.slot[t2])
            free = [s for s in range(NSLOT) if s not in self.busy]
            free.sort(key=lambda s: -(later.index(s) if s in later else 99))
            self.slot[tl] = free[0]
            self.busy.add(free[0])
        def loads(self):
            return [t for t in cx.e.vm if not isinstance(t, str)]
        def gated(self, n):
            vm = self.loads()
            if len(vm) >= n:
                cx.e.wait_vm(vm[len(vm) - n])
            self.issue_next()
        def top_up(self, n):
            while len(self.loads()) < n and self.can_issue():
                self.issue_next()
        def wait_tile(self, tl, n):
            if nloads(tl) == 0:
                return
            last = (tl, nloads(tl) - 1)
            while self.flat.index(last) >= self.next:
                self.gated(n)
            while last in cx.e.vm:
                vm = self.loads()
                if self.can_issue() and (len(vm) < n or vm.index(last) >= len(vm) - n):
                    if len(vm) < n:
                        self.top_up(n)
                    else:
                        self.gated(n)
                else:
                    cx.e.wait_vm(last)
        def release(self, tl, n):
            if nloads(tl):
                self.busy.discard(self.slot[tl])
            if len(self.loads()) < n:
                self.top_up(n)
            else:
                for _ in range(pbacklog if tl in self.park else backlog):
                    if self.can_issue():
                        self.gated(n)
        def sprinkle(self, k=1):
            for _ in range(k):
                if self.can_issue():
                    self.issue_next()
        def next_tile(self):
            tl, i = self.flat[self.next]
            if i > 0:
                tl = self.flat[self.next + nloads(tl) - i][0]
            return tl

    def late_setup(gi):
        e = cx.e
        e.c("remaining address registers and descriptors")
        e(f"s_mov_b32 s{S_SCALE}, {f32(192 ** -0.5):#x}")
        e(f"s_mov_b32 s{S_L2E}, {f32(1.4426950408889634):#x}")
        e(f"s_mul_i32 s{S_T0}, s{S_H}, 245760")
        srd(e, R_WO, S_WO, S_T0, 245760)
        e(f"s_mul_i32 s{S_T0}, s{S_W}, 320")
        for i in range(5):
            e(f"v_add_u32 v{T+2}, {64*i}, v{V_L}")
            e(f"v_mul_u32_u24 v{T+3}, 205, v{T+2}")
            e(f"v_lshrrev_b32 v{T+3}, 12, v{T+3}")
            e(f"v_mul_u32_u24 v{T+3}, {1280-320}, v{T+3}")
            e(f"v_lshl_add_u32 v{T+3}, v{T+2}, 4, v{T+3}")
            e(f"v_add_u32 v{V_WO+i}, s{S_T0}, v{T+3}")
        e.c("K operand read addresses")
        e(f"v_and_b32 v{T+2}, 15, v{V_L}")
        e(f"v_and_b32 v{T+3}, 6, v{T+2}")
        e(f"v_xor_b32 v{T+3}, v{T+3}, v{G}")
        e(f"v_lshlrev_b32 v{T+3}, 4, v{T+3}")
        e(f"v_mul_u32_u24 v{T+2}, 384, v{T+2}")
        e(f"v_add3_u32 v{V_KA}, v{T+2}, v{T+3}, s{S_RING}")
        e(f"v_xor_b32 v{V_KA+1}, 64, v{V_KA}")
        e.c("transposing read addresses: row = lane>>2, column group = lane&3")
        e(f"v_lshrrev_b32 v{T+2}, 2, v{V_L}")
        e(f"v_and_b32 v{T+3}, 6, v{T+2}")
        e(f"v_lshlrev_b32 v{T+3}, 4, v{T+3}")
        e(f"v_lshl_add_u32 v{T+3}, v{SS}, 3, v{T+3}")
        e(f"v_mul_u32_u24 v{T+4}, 384, v{T+2}")
        e(f"v_add3_u32 v{V_VA}, v{T+4}, v{T+3}, s{S_RING}")
        for q in range(1, 4):
            e(f"v_xor_b32 v{V_VA+q}, {32*q}, v{V_VA}")
        e(f"v_mul_u32_u24 v{T+4}, 320, v{T+2}")
        e(f"v_lshl_add_u32 v{T+4}, v{SS}, 3, v{T+4}")
        e(f"v_add_u32 v{V_WA}, s{S_RING}, v{T+4}")
        e.c("cross-wave exchange addresses")
        e(f"v_mul_u32_u24 v{T+2}, {PROW}, v{SS}")
        e(f"v_lshl_add_u32 v{T+2}, v{G}, 4, v{T+2}")
        e(f"v_add_u32 v{V_PW}, s{S_XL}, v{T+2}")
        e(f"v_mul_u32_u24 v{T+3}, 1366, v0")
        e(f"v_lshrrev_b32 v{T+3}, 16, v{T+3}")
        e(f"v_lshlrev_b32 v{T+3}, 4, v{T+3}")
        e(f"v_lshl_add_u32 v{T+2}, v0, 4, v{T+3}")
        e(f"v_add_u32 v{V_PR}, {PART}, v{T+2}")
        e(f"v_lshl_add_u32 v{T+2}, v0, 3, v{T+3}")
        e(f"v_add_u32 v{V_BW}, {QBF}, v{T+2}")
        e(f"v_mul_u32_u24 v{T+2}, {BROW}, v{SS}")
        e(f"v_add_u32 v{T+2}, {QBF}, v{T+2}")
        e(f"v_lshl_add_u32 v{V_BR}, v{G}, 4, v{T+2}")
        if not ncol:
            e(f"v_lshl_add_u32 v{V_BO}, v{G}, 3, v{T+2}")
        e(f"v_lshlrev_b32 v{T+2}, 6, v{SS}")
        e(f"v_add_u32 v{V_RR}, {RMAX}, v{T+2}")
        e(f"s_lshl_b32 s{S_T0}, s{S_W}, 4")
        e(f"v_lshl_add_u32 v{T+2}, v{G}, 2, v{V_RR}")
        e(f"v_add_u32 v{V_RW}, s{S_T0}, v{T+2}")
        if touch:
            e(f"v_lshlrev_b32 v{T+2}, {tshift}, v0")
            for bit, r in enumerate((R_K, R_V, R_WO)):
                if touch >> bit & 1:
                    e.vmop(f"buffer_load_dword v{V_P+bit}, v{T+2}, s[{r}:{r+3}], 0 offen nt", "tch")
        if ob:
            e(f"v_lshlrev_b32 v{V_PF}, 4, v{V_L}")
            assert sum(pn) >= 30 and tuple(gmap[:4]) == tuple(gmap[4:]) and sorted(gmap[:4]) == [0, 1, 2, 3]
            e(f"s_lshr_b32 s{S_PF}, s{S_B}, 2")
            e(f"s_mul_i32 s{S_PF}, s{S_PF}, {4096*sum(pn)}")
            e(f"s_mul_i32 s{S_T0}, s{S_W}, {1024*pn[gi]}")
            e(f"s_add_u32 s{S_PF}, s{S_PF}, s{S_T0}")
            e(f"s_add_u32 s{S_PF}, s{S_PF}, {4096*sum(pn[:gi])}")
        e.c("x operand")
        e(f"v_mul_u32_u24 v{T+2}, 320, v{SS}")
        e(f"v_lshl_add_u32 v{T+2}, v{G}, 3, v{T+2}")
        e(f"v_add_u32 v{T+2}, s{S_XL}, v{T+2}")
        e.wait_vm(("x", 1))
        for p in range(10):
            e(f"v_lshl_add_u32 v{T+3}, s{S_TP+p}, 5, v{T+2}")
            e(f"ds_read_b64 v[{V_XR+2*p}:{V_XR+2*p+1}], v{T+3}")

    def post_q_setup():
        e = cx.e
        e.c("inbox slot of this head: [batch][tile][head][16 lanes x 16 bytes], lane quad c carries tile 4m+c")
        e(f"s_mul_i32 s{S_T0}, s{S_B}, {INBOX_B}")
        e(f"s_lshl_b32 s{S_T1}, s{S_H}, {7 if half else 8}")
        e(f"s_add_u32 s{S_T0}, s{S_T0}, s{S_T1}")
        e(f"s_sub_u32 s{S_T1}, {INBOX_B}, s{S_T1}")
        srd(e, R_IN, S_WS, S_T0, f"s{S_T1}")
        if half:
            e(f"v_and_b32 v{T+2}, 1, v{G}")
            e(f"v_lshl_add_u32 v{T+2}, v{T+2}, 2, v{SS}")
            e(f"v_lshlrev_b32 v{T+2}, 4, v{T+2}")
            e(f"v_lshrrev_b32 v{T+3}, 1, v{G}")
            e(f"v_lshl_add_u32 v{T+2}, v{T+3}, 12, v{T+2}")
        else:
            e(f"v_lshl_add_u32 v{T+2}, v{G}, 2, v{SS}")
            e(f"v_lshlrev_b32 v{T+2}, 4, v{T+2}")
        e(f"s_mul_i32 s{S_T0}, s{S_W}, {10*8192}")
        e(f"v_add_u32 v{V_ST}, s{S_T0}, v{T+2}")
        e(f"v_and_b32 v{T+2}, 12, v{V_L}")
        e(f"v_lshl_add_u32 v{V_ST}, v{T+2}, 11, v{V_ST}")
        e(f"v_and_b32 v{T+2}, 8, v{V_L}")
        e(f"v_lshl_add_u32 v{V_ST2}, v{T+2}, 24, v{V_ST}")
        for m in range(3):
            e(f"s_mov_b32 s{S_TP+m}, {4*8192*m}")
        e.c("head 0 of each batch publishes this launch's tag in d_debug (lane 0 of wave 3, other lanes out of range)")
        srd(e, R_DBG, S_DBG, None, 256)
        e(f"s_and_b32 s{S_T0}, s{S_B}, 1")
        e(f"s_lshl_b32 s{S_T0}, s{S_T0}, 7")
        e(f"s_lshl_b32 s{S_T1}, s{S_B}, 1")
        e(f"s_and_b32 s{S_T1}, s{S_T1}, 12")
        e(f"s_add_u32 s{S_CO}, s{S_T0}, s{S_T1}")
        e(f"v_xor_b32 v{T+2}, 192, v0")
        e(f"v_or_b32 v{T+2}, s{S_H}, v{T+2}")
        e(f"v_lshlrev_b32 v{V_DO}, 8, v{T+2}")
        e(f"s_mul_i32 s{S_T0}, s{S_NC}, 0x9e3779b1")
        e(f"s_or_b32 s{S_T0}, s{S_T0}, 1")
        e(f"v_mov_b32 v{V_TK}, s{S_T0}")
        e.vmop(f"buffer_store_dword v{V_TK}, v{V_DO}, s[{R_DBG}:{R_DBG+3}], s{S_CO} offen sc1", "tagst")
        e.c("unit this wave reduces at the end: 32*wave + head")
        e(f"s_lshl_b32 s{S_CT}, s{S_W}, 5")
        e(f"s_add_u32 s{S_CT}, s{S_CT}, s{S_H}")
        e(f"s_mul_i32 s{S_T0}, s{S_B}, {80 if half else 40}")
        e(f"s_add_u32 s{S_T0}, s{S_T0}, s{S_CT}")
        e(f"s_lshl_b32 s{S_T0}, s{S_T0}, {12 if half else 13}")
        e(f"s_cmp_lt_u32 s{S_CT}, {80 if half else 40}")
        e(f"s_cselect_b32 s{S_T1}, {4096 if half else 8192}, 0")
        srd(e, R_RD, S_WS, S_T0, f"s{S_T1}")
        e(f"s_mul_i32 s{S_T0}, s{S_B}, 5120")
        srd(e, R_OUT, S_OUT, S_T0, 5120)
        e(f"v_lshlrev_b32 v{V_IA}, 4, v{V_L}")
        e(f"v_add_u32 v{V_IA+1}, 4096, v{V_IA}")
        e(f"v_add_u32 v{V_UW}, s{S_RING}, v{V_IA}")
        e.c("output byte offset: row = lane&3, column 16*tile + 4*((lane>>2)&3) + {0,2,1,3}[lane>>4]")
        e(f"v_mul_u32_u24 v{V_OA}, 1280, v{SS}")
        e(f"v_and_b32 v{T+2}, {4 if half else 12}, v{V_L}")
        e(f"v_lshl_add_u32 v{V_OA}, v{T+2}, 1, v{V_OA}")
        if half:
            e(f"v_and_b32 v{T+2}, 8, v{V_L}")
            e(f"v_lshl_add_u32 v{V_OA}, v{T+2}, 20, v{V_OA}")
        e(f"v_bfe_u32 v{T+2}, v{V_L}, 4, 1")
        e(f"v_lshl_add_u32 v{V_OA}, v{T+2}, 2, v{V_OA}")
        e(f"v_lshrrev_b32 v{T+2}, 5, v{V_L}")
        e(f"v_lshl_add_u32 v{V_OA}, v{T+2}, 1, v{V_OA}")
        e(f"s_lshl_b32 s{S_T0}, s{S_CT}, {4 if half else 5}")
        e(f"v_add_u32 v{V_OA}, s{S_T0}, v{V_OA}")
        if helps:
            e.c("V window and tile order of the neighbouring head")
            e(f"s_xor_b32 s{S_T1}, s{S_H}, {hx}")
            e(f"s_and_b32 s{S_T0}, s{S_T1}, 3")
            e(f"s_and_b32 s{S_PK}, s{S_H}, 3")
            e(f"s_sub_u32 s{S_T0}, s{S_T0}, s{S_PK}")
            e(f"s_mul_i32 s{S_T0}, s{S_T0}, {krot[2]}")
            e(f"s_add_u32 s{S_PK}, s{S_KW}, s{S_T0}")
            e(f"s_lshl_b32 s{S_T0}, s{S_B}, 5")
            e(f"s_add_u32 s{S_T0}, s{S_T0}, s{S_T1}")
            e(f"s_mul_i32 s{S_T0}, s{S_T0}, 1572864")
            e(f"s_add_u32 s{S_T0}, s{S_T0}, {3072*384}")
            srd(e, R_PV, S_V, S_T0, 393216)
        if ncol:
            e.c("column tiles: 48 rows x 128 bytes")
            e(f"v_lshrrev_b32 v{T+2}, 3, v{V_L}")
            e(f"v_and_b32 v{T+3}, 6, v{T+2}")
            e(f"v_and_b32 v{T+4}, 7, v{V_L}")
            e(f"v_xor_b32 v{T+3}, v{T+3}, v{T+4}")
            e(f"v_lshlrev_b32 v{T+3}, 4, v{T+3}")
            e(f"v_mul_u32_u24 v{T+2}, 384, v{T+2}")
            e(f"v_add_u32 v{V_CV}, v{T+2}, v{T+3}")
            e(f"v_add_u32 v{V_CV+1}, {8*384}, v{V_CV}")
            e(f"v_lshrrev_b32 v{T+2}, 2, v{V_L}")
            e(f"v_and_b32 v{T+3}, 6, v{T+2}")
            e(f"v_lshlrev_b32 v{T+3}, 4, v{T+3}")
            e(f"v_lshl_add_u32 v{T+3}, v{SS}, 3, v{T+3}")
            e(f"v_lshlrev_b32 v{T+2}, 7, v{T+2}")
            e(f"v_add3_u32 v{V_CA}, v{T+2}, v{T+3}, s{S_RING}")
            for q in range(1, 4):
                e(f"v_xor_b32 v{V_CA+q}, {32*q}, v{V_CA}")
            e.c("o exchange: [d tile][g][wave][row] x 16 bytes")
            e(f"v_and_b32 v{T+2}, 15, v{V_L}")
            e(f"v_lshlrev_b32 v{T+2}, 4, v{T+2}")
            e(f"v_lshl_add_u32 v{T+2}, v{G}, 8, v{T+2}")
            e(f"v_add_u32 v{V_ER}, {PART}, v{T+2}")
            e(f"s_lshl_b32 s{S_T0}, s{S_W}, 6")
            e(f"v_add_u32 v{V_EW}, s{S_T0}, v{V_ER}")

    def tr_reads(slot):
        for dt in range(12):
            cx.e(f"ds_read_b64_tr_b16 v[{V_RD+2*dt}:{V_RD+2*dt+1}], v{V_VA + (dt & 3)} offset:{slot*SLOT + 128*(dt >> 2)}")

    def pv_mfma(breg, first):
        for dt in range(12):
            a = V_ACC + 4 * dt
            cc = "0" if first else f"v[{a}:{a+3}]"
            cx.e(f"v_mfma_f32_16x16x16_bf16 v[{a}:{a+3}], v[{V_RD+2*dt}:{V_RD+2*dt+1}], v[{breg}:{breg+1}], {cc}")

    def reduce_partials(label, st):
        e = cx.e
        e.c("sum the four waves' partial rows, round to bf16")
        e("s_mov_b32 exec_lo, 0x000f000f")
        e("s_mov_b32 exec_hi, 0x000f000f")
        for dt in range(12):
            a = V_ACC + 4 * dt
            e(f"ds_write_b128 v{V_PW}, v[{a}:{a+3}] offset:{64*dt}")
        e("s_mov_b64 exec, -1")
        if st:
            st.sprinkle(qs1)
        e("s_waitcnt lgkmcnt(0)")
        e("s_barrier")
        tr(label[2] + ".b1")
        e(f"s_cmp_eq_u32 s{S_W}, 3")
        e(f"s_cbranch_scc1 {label}")
        for w in range(4):
            e(f"ds_read_b128 v[{V_RD+4*w}:{V_RD+4*w+3}], v{V_PR} offset:{PWAVE*w}")
        e("s_waitcnt lgkmcnt(0)")
        for r in range(4):
            e(f"v_add_f32 v{V_RD+r}, v{V_RD+r}, v{V_RD+4+r}")
        for r in range(4):
            e(f"v_add_f32 v{V_RD+8+r}, v{V_RD+8+r}, v{V_RD+12+r}")
        for r in range(4):
            e(f"v_add_f32 v{V_RD+r}, v{V_RD+r}, v{V_RD+8+r}")
        e(f"v_cvt_pk_bf16_f32 v{V_RD+4}, v{V_RD}, v{V_RD+1}")
        e(f"v_cvt_pk_bf16_f32 v{V_RD+5}, v{V_RD+2}, v{V_RD+3}")
        e(f"ds_write_b64 v{V_BW}, v[{V_RD+4}:{V_RD+5}]")
        e("s_waitcnt lgkmcnt(0)")
        e(f"{label}:")
        if st:
            st.sprinkle(qs2)
        e("s_barrier")

    def score_post(t):
        e = cx.e
        s = V_S + 4 * t
        a, b = T + 2, T + 3
        for rnd in range(2):
            e(f"v_cvt_pk_bf16_f32 v{a}, v{s}, v{s+1}")
            e(f"v_cvt_pk_bf16_f32 v{b}, v{s+2}, v{s+3}")
            e(f"v_lshlrev_b32 v{s}, 16, v{a}")
            e(f"v_and_b32 v{s+1}, 0xffff0000, v{a}")
            e(f"v_lshlrev_b32 v{s+2}, 16, v{b}")
            e(f"v_and_b32 v{s+3}, 0xffff0000, v{b}")
            if rnd == 0:
                for r in range(4):
                    e(f"v_mul_f32 v{s+r}, s{S_SCALE}, v{s+r}")
        e(f"v_max3_f32 v{V_M}, v{V_M}, v{s}, v{s+1}")
        e(f"v_max3_f32 v{V_M}, v{V_M}, v{s+2}, v{s+3}")

    def softmax(st):
        e = cx.e
        e.c("softmax over the 1024 keys of each query row")
        e("s_nop 7")
        score_post(15)
        st.sprinkle(ss)
        e(f"ds_write_b32 v{V_RW}, v{V_M}")
        e("s_waitcnt lgkmcnt(0)")
        e("s_barrier")
        for i in range(4):
            e(f"ds_read_b128 v[{V_RD+4*i}:{V_RD+4*i+3}], v{V_RR} offset:{16*i}")
        e("s_waitcnt lgkmcnt(0)")
        for i in range(8):
            e(f"v_max3_f32 v{V_M}, v{V_M}, v{V_RD+2*i}, v{V_RD+2*i+1}")
        e(f"v_mul_f32 v{V_M}, s{S_L2E}, v{V_M}")
        st.sprinkle(ss)
        l0, l1 = T + 2, T + 3
        for r in range(64):
            e(f"v_fma_f32 v{V_S+r}, v{V_S+r}, s{S_L2E}, -v{V_M}")
        st.sprinkle(ss)
        for r in range(64):
            e(f"v_exp_f32 v{V_S+r}, v{V_S+r}")
            if r == 31:
                st.sprinkle(ss)
        st.sprinkle(ss)
        e(f"v_add_f32 v{l0}, v{V_S}, v{V_S+1}")
        e(f"v_add_f32 v{l1}, v{V_S+2}, v{V_S+3}")
        for r in range(4, 64, 2):
            e(f"v_add_f32 v{l0}, v{l0}, v{V_S+r}")
            e(f"v_add_f32 v{l1}, v{l1}, v{V_S+r+1}")
        e(f"v_add_f32 v{l0}, v{l0}, v{l1}")
        e(f"ds_write_b32 v{V_RW}, v{l0} offset:{RSUM-RMAX}")
        e("s_waitcnt lgkmcnt(0)")
        e("s_barrier")
        for i in range(4):
            e(f"ds_read_b128 v[{V_RD+4*i}:{V_RD+4*i+3}], v{V_RR} offset:{RSUM-RMAX+16*i}")
        st.sprinkle(ss)
        e("s_waitcnt lgkmcnt(0)")
        for i in range(8):
            e(f"v_add_f32 v{V_RD+i}, v{V_RD+i}, v{V_RD+8+i}")
        for i in range(4):
            e(f"v_add_f32 v{V_RD+i}, v{V_RD+i}, v{V_RD+4+i}")
        e(f"v_add_f32 v{V_RD}, v{V_RD}, v{V_RD+1}")
        e(f"v_add_f32 v{V_RD+2}, v{V_RD+2}, v{V_RD+3}")
        e(f"v_add_f32 v{V_RD}, v{V_RD}, v{V_RD+2}")
        e(f"v_rcp_f32 v{l0}, v{V_RD}")
        e("s_nop 0")
        for r in range(64):
            e(f"v_mul_f32 v{V_S+r}, v{l0}, v{V_S+r}")
        st.sprinkle(ss)
        for r in range(32):
            e(f"v_cvt_pk_bf16_f32 v{V_P+r}, v{V_S+2*r}, v{V_S+2*r+1}")
        e(f"v_mov_b32 v{V_M}, 0xffffff00")
        e("s_nop 0")

    def D_(nt):
        return V_S + 4 * nt
    def out_mfma(nt, j, breg):
        d = D_(nt)
        a = (j * 10 + nt) * 4
        cc = "0" if j == 0 else f"v[{d}:{d+3}]"
        cx.e(f"v_mfma_f32_16x16x32_bf16 v[{d}:{d+3}], a[{a}:{a+3}], v[{breg}:{breg+3}], {cc}")

    def final_projection(js, bregs, pre=None):
        e = cx.e
        ready = {}
        for nt in range(10):
            m, c = nt >> 2, nt & 3
            d = D_(4 * m)
            ops = []
            if c > 0:
                ops = [f"v_mov_b32_dpp v{d+r}, v{D_(nt)+r} quad_perm:[0,1,2,3] row_mask:0xf bank_mask:{1 << c:#x}" for r in range(4)]
            if c == 3 or nt == 9:
                ops += [f"v_and_or_b32 v{d+r}, v{d+r}, v{V_M}, s{S_TG+r}" for r in range(4)]
                ops.append(f"buffer_store_dwordx4 v[{d}:{d+3}], v{V_ST if m < 2 else V_ST2}, s[{R_IN}:{R_IN+3}], s{S_TP+m} offen {f_st}")
            ready[nt] = ops
        pend, since = [], {}
        def tick():
            for k in since:
                since[k] += 1
        def promote():
            for k in sorted(ready):
                if since.get(k, -1) >= 8 and since.get(k & ~3, -1) >= 8:
                    pend.extend(ready.pop(k))
                else:
                    break
        per_gap = 1 if len(js) > 2 else 2
        if pre is not None:
            for nt in range(10):
                out_mfma(nt, js[0], bregs[js[0]])
                for _ in range(3):
                    if pre:
                        e(pre.pop(0))
            assert not pre
            js = js[1:]
            per_gap = 3
        for nt in range(10):
            for j in js:
                out_mfma(nt, j, bregs[j])
                tick()
                if j == js[-1]:
                    since[nt] = 0
                promote()
                for _ in range(per_gap):
                    if pend:
                        e(pend.pop(0)); tick()
        while pend or ready:
            promote()
            if pend:
                e(pend.pop(0)); tick()
            elif ready:
                k = min(ready)
                need = 8 - min(since[k], since[k & ~3])
                e(f"s_nop {need - 1}")
                for _ in range(need):
                    tick()

    def stage(st, m):
        e = cx.e
        e("s_mov_b32 exec_lo, 0x000f000f")
        e("s_mov_b32 exec_hi, 0x000f000f")
        e("s_nop 2")
        for q in range(4):
            a = V_ACC + 4 * (4 * m + q)
            e(f"ds_write_b128 v{V_EW}, v[{a}:{a+3}] offset:{1024*(4*m+q)}")
        e("s_mov_b64 exec, -1")
        st.sprinkle(1)
        e("s_waitcnt lgkmcnt(0)")
        e("s_barrier")
        if m == 2:
            tr("o.b1")
        for q in range(4):
            e(f"ds_read_b128 v[{V_RD+4*q}:{V_RD+4*q+3}], v{V_ER} offset:{1024*(4*m+q)}")
        ror = lambda r, n: f"v_add_f32_dpp v{V_RD+r}, v{V_RD+r}, v{V_RD+r} row_ror:{n} row_mask:0xf bank_mask:0xf"
        cvt = lambda r: f"v_cvt_pk_bf16_f32 v{V_QB+r}, v{V_RD+2*r}, v{V_RD+2*r+1}"
        pre = None
        if fast > 1 and m == 2:
            for q in range(2):
                e(f"s_waitcnt lgkmcnt({3-q})")
                for r in range(4 * q, 4 * q + 4):
                    e(ror(r, 8))
            for r in range(8):
                e(ror(r, 4))
            for r in range(4):
                e(cvt(r))
            e("s_waitcnt lgkmcnt(0)")
            e("s_nop 0")
            pre = [ror(r, 8) for r in range(8, 16)] + [ror(r, 4) for r in range(8, 16)] + [cvt(r) for r in range(4, 8)]
        else:
            for q in range(4):
                e(f"s_waitcnt lgkmcnt({3-q})")
                for r in range(4 * q, 4 * q + 4):
                    e(ror(r, 8))
            for r in range(16):
                e(ror(r, 4))
            for r in range(8):
                e(cvt(r))
            st.sprinkle(1)
            e("s_nop 0")
        bregs = {2 * m: V_QB, 2 * m + 1: V_QB + 4}
        if m < 2:
            for j in (2 * m, 2 * m + 1):
                for nt in range(10):
                    out_mfma(nt, j, bregs[j])
        else:
            tr("obr")
            final_projection([4, 5], bregs, pre)

    def consume(st, tl):
        e = cx.e
        kind, t = tl
        if tl in st.park:
            st.stage_slot(tl)
            for i in range(6):
                a = st.park[tl] + 4 * i
                e(f"ds_write_b128 v{V_UW}, a[{a}:{a+3}] offset:{st.slot[tl]*SLOT + 1024*i}")
        sl = st.slot[tl]
        done.add(tl)
        if kind != "P":
            tr_begin()
        if kind == "K":
            for j in range(6):
                e(f"ds_read_b128 v[{V_RD+4*j}:{V_RD+4*j+3}], v{V_KA + (j & 1)} offset:{sl*SLOT + 128*(j >> 1)}")
            if t > 0:
                e("s_nop 1")
                score_post(t - 1)
            e("s_waitcnt lgkmcnt(0)")
            tr_end(f"K{t}")
            s = V_S + 4 * t
            for j in range(6):
                cc = "0" if j == 0 else f"v[{s}:{s+3}]"
                e(f"v_mfma_f32_16x16x32_bf16 v[{s}:{s+3}], v[{V_RD+4*j}:{V_RD+4*j+3}], v[{V_QB+4*j}:{V_QB+4*j+3}], {cc}")
            st.release(tl, nfl)
            if t == 15:
                softmax(st)
                tr("sm")
        elif kind == "V":
            tr_reads(sl)
            e("s_waitcnt lgkmcnt(0)")
            tr_end(f"V{t}")
            pv_mfma(V_P + 2 * t, t == 0)
            st.release(tl, nfl)
        elif kind == "C":
            m, t0 = t
            def rreg(u, q):
                if not k32:
                    return V_RD + 2 * (4 * u + q)
                return V_RD + 4 * q + 2 * u if u < 2 else V_RD + 16 + 2 * q
            order = [(u, q) for u in range(3) for q in range(4)]
            if k32:
                order = [(u, q) for q in range(4) for u in range(2)] + [(2, q) for q in range(4)]
            name = f"V{nplain + kv[16+nplain:].index(tl)}"
            last_tile = tl == seq[-1]
            def rd(u, q):
                r = rreg(u, q)
                e(f"ds_read_b64_tr_b16 v[{r}:{r+1}], v{V_CA+q} offset:{sl*SLOT + 2048*u}")
            def mf32(q):
                r, a, b = rreg(0, q), V_ACC + 4 * (4 * m + q), V_P + 2 * t0
                e(f"v_mfma_f32_16x16x32_bf16 v[{a}:{a+3}], v[{r}:{r+3}], v[{b}:{b+3}], v[{a}:{a+3}]")
            def mf16(q):
                r, a, b = rreg(2, q), V_ACC + 4 * (4 * m + q), V_P + 2 * (t0 + 2)
                e(f"v_mfma_f32_16x16x16_bf16 v[{a}:{a+3}], v[{r}:{r+1}], v[{b}:{b+1}], v[{a}:{a+3}]")
            if fast and last_tile:
                for u, q in order[:8]:
                    rd(u, q)
                e("s_waitcnt lgkmcnt(0)")
                for q in range(4):
                    mf32(q)
                e.wait_vm((tl, 5))
                tr_begin(True)
                for u, q in order[8:]:
                    rd(u, q)
                for q in range(4):
                    e(f"s_waitcnt lgkmcnt({0 if trace else 3 - q})")
                    if q == 0:
                        tr_end(name)
                    mf16(q)
            else:
                for u, q in order:
                    rd(u, q)
                e("s_waitcnt lgkmcnt(0)")
                tr_end(name)
                st.release(tl, nfl)
            if fast and last_tile:
                pass
            elif k32:
                for q in range(4):
                    mf32(q)
                e("s_nop 2")
                for q in range(4):
                    mf16(q)
            else:
                for u, q in order:
                    r = rreg(u, q)
                    a = V_ACC + 4 * (4 * m + q)
                    b = V_P + 2 * (t0 + u)
                    e(f"v_mfma_f32_16x16x16_bf16 v[{a}:{a+3}], v[{r}:{r+1}], v[{b}:{b+1}], v[{a}:{a+3}]")
            if t0 == 13:
                assert not any(x[0] == "O" and x[1] < 4 * m + 4 for x in seq[seq.index(tl):])
                stage(st, m)
        elif kind == "Q":
            tr_reads(sl)
            e("s_waitcnt lgkmcnt(0)")
            tr_end(f"Q{t}")
            st.busy.discard(sl)
            st.top_up(nflq if t < 8 else nflt)
            pv_mfma(V_XR + 2 * t, t == 0)
        elif kind == "P":
            st.release(tl, nfl)
        else:
            j, half = t >> 1, t & 1
            assert all(a >= 40 * j + 40 or p in done for p, a in st.park.items())
            for nt in range(10):
                a = (j * 10 + nt) * 4 + 2 * half
                e(f"ds_read_b64_tr_b16 a[{a}:{a+1}], v{V_WA} offset:{sl*SLOT + 32*nt}")
            e("s_waitcnt lgkmcnt(0)")
            tr_end(f"O{t}" if t in (0, 5, 6, 11) else "Ox")
            st.release(tl, nfl)
        done.add(tl)

    def group(gi):
        done.clear()
        st = Stream(*plans[gi])
        st.next = 6
        st.busy.add(st.slot[("Q", 0)])
        cx.e.vm = list(first_vm)
        st.top_up(nflq)
        late_setup(gi)
        for p in range(10):
            st.wait_tile(("Q", p), nflq)
            consume(st, ("Q", p))
        reduce_partials(f"L_qred_{gi}", st)
        for j in range(6):
            cx.e(f"ds_read_b128 v[{V_QB+4*j}:{V_QB+4*j+3}], v{V_BR} offset:{64*j}")
        cx.e(f"v_mov_b32 v{V_M}, 0xff800000")
        st.sprinkle()
        cx.e("s_waitcnt lgkmcnt(0)")
        tr("qrdy")
        for pos in range(MERGE):
            tl = seqs[gi][pos]
            cx.e.c(f"consume {tl[0]}{tl[1]}")
            st.wait_tile(tl, nfl)
            consume(st, tl)
            if pos == 0:
                post_q_setup()
        return st

    done = set()
    head = cx.e
    for gi in range(1, len(groups)):
        head(f"s_cmp_eq_u32 s{S_G}, {gi}")
        head(f"s_cbranch_scc1 L_grp_{gi}")
    paths = []
    for gi in range(len(groups)):
        cx.e = E()
        paths.append((group(gi), cx.e))
    left = min(len(st.flat) - st.next for st, _ in paths)
    for st, em in paths:
        cx.e = em
        while len(st.flat) - st.next > left:
            st.gated(nfl)
        em.wait_vm("tagst")
    n = max(len(em.vm) for _, em in paths)
    X = paths[0][0].next
    for st, em in paths:
        assert st.busy == paths[0][0].busy and st.flat[st.next - n:] == paths[0][0].flat[X - n:]
    e = cx.e = head
    for gi, (st, em) in enumerate(paths):
        if gi:
            e(f"L_grp_{gi}:")
        e.lines += em.lines
        if gi < len(paths) - 1:
            e("s_branch L_merge")
    e("L_merge:")
    st = paths[0][0]
    st.park = {}
    e.vm = list(st.flat[X - n:X])

    hooks = {}
    def h_tagload():
        e.vmop(f"buffer_load_dword v{V_TK}, off, s[{R_DBG}:{R_DBG+3}], s{S_CO} sc1", "tagld")
        hooks[seq.index(st.next_tile())] = h_tagcheck
    def h_tagcheck():
        assert "tagld" not in e.vm
        e(f"s_mov_b32 s{S_SPIN}, {spin_max}")
        e("L_spin:")
        e(f"v_readfirstlane_b32 s{S_T0}, v{V_TK}")
        e(f"s_sub_u32 s{S_SPIN}, s{S_SPIN}, 1")
        e("s_cbranch_scc1 L_spin_done")
        e(f"s_cmp_lg_u32 s{S_T0}, 0")
        e("s_cbranch_scc1 L_spin_done")
        e(f"buffer_load_dword v{V_TK}, off, s[{R_DBG}:{R_DBG+3}], s{S_CO} sc1")
        e("s_waitcnt vmcnt(0)")
        e("s_branch L_spin")
        e("L_spin_done:")
        for r in range(4):
            e(f"s_bfe_u32 s{S_TG+r}, s{S_T0}, {0x80000 + 8*r:#x}")
    hooks[max(MERGE, seq.index(("V", 4)))] = h_tagload
    plain_issue = st.issue_next
    def issue_then_warm():
        plain_issue()
        if warm and st.next == len(st.flat) - (warm - 1):
            e.c("pull the inbox lines written so far into L2")
            for i in range(4):
                e.vmop(f"buffer_load_dwordx4 v[{V_S+40+4*i}:{V_S+43+4*i}], v{V_IA}, s[{R_RD}:{R_RD+3}], 0 offen offset:{1024*i} {f_poll}", "warm")
    st.issue_next = issue_then_warm
    for pos in range(MERGE, len(seq)):
        tl = seq[pos]
        if pos == len(seq) - tail_from:
            e.c("the rest of the kernel sits in one 4 KiB code page")
            e("s_branch L_tailpage")
            e(".p2align 12")
            e("L_tailpage:")
        k = pos - (len(seq) - hpos)
        if 0 <= k < len(helps):
            assert st.next == len(st.flat)
            e.c("touch the neighbour's last tiles: whichever workgroup comes second finds them in L2")
            for m, t0 in helps[k]:
                sl = [z for z in range(NSLOT) if z not in st.busy][0]
                st.busy.add(sl)
                for i in range(6):
                    if i & 1 == 0:
                        key_tile_offset(t0 + (i >> 1), 128 * m, S_PK)
                    e(f"s_add_u32 m0, s{S_RING}, {sl*SLOT + i*1024}")
                    e("s_nop 0")
                    e.vmop(f"buffer_load_dwordx4 v{V_CV + (i & 1)}, s[{R_PV}:{R_PV+3}], s{S_OFF} offen {f_last} lds", "help")
        e.c(f"consume {tl[0]}{tl[1]}")
        if fast and tl == seq[-1]:
            assert st.next == len(st.flat)
            e.wait_vm((tl, 3))
        else:
            st.wait_tile(tl, nfle if nfle and tl[0] == "C" else nfl)
        if pos in hooks:
            hooks.pop(pos)()
        consume(st, tl)
    assert st.next == len(st.flat) and not hooks, hooks

    if not ncol:
        e.c("output projection of this head")
        reduce_partials("L_ored", None)
        tr_begin()
        for j in range(6):
            e(f"ds_read2_b64 v[{V_QB+4*j}:{V_QB+4*j+3}], v{V_BO} offset0:{8*j} offset1:{8*j+4}")
        e("s_waitcnt lgkmcnt(0)")
        tr_end("obr")
        final_projection(list(range(6)), {j: V_QB + 4 * j for j in range(6)})
    tr("sent")
    if ackwait == 2:
        e("s_waitcnt vmcnt(0)")
        e("s_barrier")
    NL = 4 if half else 8
    e(f"s_cmp_ge_u32 s{S_CT}, {80 if half else 40}")
    e("s_cbranch_scc1 L_fin")
    e.c("reduce one 16-column tile over the 32 heads")
    e(f"s_mov_b32 s{S_SPIN}, {spin_max}")
    D = V_S
    A = V_RD
    if ackwait:
        e("s_waitcnt vmcnt(0)")
    e("L_poll:")
    for i in range(NL):
        e(f"buffer_load_dwordx4 v[{D+4*i}:{D+4*i+3}], v{V_IA + (i >> 2)}, s[{R_RD}:{R_RD+3}], 0 offen offset:{1024*(i & 3)} {f_poll}")
    for i in range(NL):
        e(f"s_waitcnt vmcnt({NL-1-i})")
        d = D + 4 * i
        for r in range(4):
            e(f"v_xor_b32 v{d+r}, s{S_TG+r}, v{d+r}")
        if i == 0:
            e(f"v_or3_b32 v{A+4}, v{d}, v{d+1}, v{d+2}")
            e(f"v_or_b32 v{A+4}, v{A+4}, v{d+3}")
        else:
            e(f"v_or3_b32 v{A+4}, v{A+4}, v{d}, v{d+1}")
            e(f"v_or3_b32 v{A+4}, v{A+4}, v{d+2}, v{d+3}")
            for r in range(4):
                e(f"v_add_f32 v{A+r}, v{A+r if i > 1 else D+r}, v{d+r}")
    e(f"v_and_b32 v{A+4}, 0xff, v{A+4}")
    e(f"v_cmp_ne_u32 vcc, 0, v{A+4}")
    e(f"s_sub_u32 s{S_SPIN}, s{S_SPIN}, 1")
    e("s_cbranch_scc1 L_ready")
    e("s_cbranch_vccnz L_poll")
    e("L_ready:")
    if trace == 3:
        e(f"v_writelane_b32 v{V_TR}, s{S_SPIN}, 60")
        tr("rdy")
    e(f"v_permlane32_swap_b32 v{A}, v{A+1}")
    e(f"v_permlane32_swap_b32 v{A+2}, v{A+3}")
    e("s_nop 0")
    e(f"v_add_f32 v{A}, v{A}, v{A+1}")
    e(f"v_add_f32 v{A+2}, v{A+2}, v{A+3}")
    e("s_nop 1")
    e(f"v_permlane16_swap_b32 v{A}, v{A+2}")
    e("s_nop 0")
    e(f"v_add_f32 v{A}, v{A}, v{A+2}")
    if half:
        e("s_nop 1")
        e(f"v_add_f32_dpp v{A}, v{A}, v{A} row_ror:8 row_mask:0xf bank_mask:0xf")
    e(f"v_cvt_pk_bf16_f32 v{A}, v{A}, v{A}")
    e(f"buffer_store_short v{A}, v{V_OA}, s[{R_OUT}:{R_OUT+3}], 0 offen {f_out}")
    e("L_fin:")
    if dbgtime:
        e("s_waitcnt vmcnt(0)")
        e("s_memrealtime s[92:93]")
        if dbgtime == "end":
            e("s_memrealtime s[90:91]")
        e("s_waitcnt lgkmcnt(0)")
        e(f"s_sub_u32 s94, s90, s{S_NC}")
        e("s_lshl_b32 s94, s94, 1")
        e("s_add_u32 s94, s94, s92")
        e("L_stretch:")
        e("s_memrealtime s[96:97]")
        e("s_waitcnt lgkmcnt(0)")
        e("s_sub_u32 s96, s96, s94")
        e("s_cmp_lt_i32 s96, 0")
        e("s_cbranch_scc1 L_stretch")
    if trace:
        e("s_waitcnt vmcnt(0)")
        e("s_memtime s[94:95]")
        tr("end")
        e("s_sub_u32 s94, s94, s96")
        e(f"v_writelane_b32 v{V_TR}, s94, 61")
        e(f"s_getreg_b32 s{S_T0}, hwreg(HW_REG_XCC_ID)")
        e(f"v_writelane_b32 v{V_TR}, s{S_T0}, 63")
        e(f"s_lshl_b32 s{S_T0}, s2, 2")
        e(f"s_add_u32 s{S_T0}, s{S_T0}, s{S_W}")
        e(f"s_lshl_b32 s{S_T0}, s{S_T0}, 8")
        e(f"s_add_u32 s{S_T0}, s{S_T0}, 0x2000000")
        srd(e, R_OUT, S_WS, S_T0, 256)
        e(f"v_lshlrev_b32 v{T+4}, 2, v{V_L}")
        e(f"buffer_store_dword v{V_TR}, v{T+4}, s[{R_OUT}:{R_OUT+3}], 0 offen")
        assert len(TRACE_NAMES) <= 60, len(TRACE_NAMES)
    e("L_end:")
    e("s_endpgm")

    return f"""; Fused q-projection + sliding-window attention + output projection for B=8, Sq=4, D=640, H=32, Dh=192, W=1024.
;
;     Four start orders (by batch) stagger this L2-bound phase in time; K tiles fetched earlier wait in LDS or AGPRs.
;  3. o = p @ V; the wo slice of the head is transposed into AGPRs in one burst per start order. The last 96 keys of each wave are read by
; @launch grid=(256,1,1) block=(256,1,1) lds={LDS_BYTES}
.amdgcn_target "amdgcn-amd-amdhsa--gfx950"
.text
.globl {KN}
.p2align 12
.p2align 8
.type {KN},@function
{e.text()}
.section .rodata,"a"
.p2align 6
.amdhsa_kernel {KN}
  .amdhsa_next_free_vgpr 496
  .amdhsa_next_free_sgpr 102
  .amdhsa_accum_offset 256
  .amdhsa_group_segment_fixed_size 0
  .amdhsa_kernarg_size 64
  .amdhsa_user_sgpr_count 2
  .amdhsa_user_sgpr_kernarg_segment_ptr 1
  .amdhsa_system_sgpr_workgroup_id_x 1
.end_amdhsa_kernel
"""

if __name__ == "__main__":
    kw = eval("dict(" + (sys.argv[1] if len(sys.argv) > 1 else "") + ")")
    sys.stdout.write(gen(**kw))
```

```python
import struct, sys

KN = "standalone__sliding_block_cached__sampling_kernel"
TRACE_NAMES = []

def f32(x):
    return struct.unpack("<I", struct.pack("<f", x))[0]

class E:
    def __init__(self):
        self.lines = []
        self.vm = []
    def __call__(self, s=""):
        self.lines.append("    " + s if s and not s.endswith(":") else s)
    def c(self, s):
        self.lines.append("    ; " + s)
    def vmop(self, s, tag):
        self(s)
        self.vm.append(tag)
    def wait_vm(self, tag):
        idx = max([i for i, t in enumerate(self.vm) if t == tag], default=-1)
        if idx < 0:
            return
        n = len(self.vm) - 1 - idx
        self(f"s_waitcnt vmcnt({min(n, 63)})")
        self.vm = self.vm[idx + 1:]
    def text(self):
        return "\n".join(self.lines) + "\n"

SLOT = 6144
NSLOT = 6
RING = SLOT * NSLOT
MISC = 4 * RING
PART = MISC
PROW = 784
PWAVE = 4 * PROW
BROW = 400
QBF = MISC + 4 * PWAVE
RMAX = QBF + 4 * BROW
RSUM = RMAX + 256
LDS_BYTES = RSUM + 256

INBOX_B = 40 * 8192

S_W = 3
S_X, S_K, S_V, S_WQ, S_WO, S_OUT, S_DBG, S_WS = 4, 6, 8, 10, 12, 14, 16, 18
R_K, R_V, R_WQ, R_WO, R_X, R_IN, R_OUT, R_DBG = 20, 24, 28, 32, 36, 40, 44, 48
R_RD = 28
S_B, S_H, S_RING, S_OFF, S_T0, S_T1 = 52, 53, 54, 55, 56, 57
S_KW = 58
S_QW = 59
S_TP = 60
S_TG = 64
S_SCALE, S_L2E = 70, 71
S_CT = 72
S_SPIN = 73
S_XL = 74
S_G = 75
S_NC = 76
S_CO = 78
S_PF = 79
S_PK = 79
R_PV = 36
S_TR = 100

V_L = 1
V_KV = 2
V_WQ = 8
V_WO = 14
V_KA = 19
V_VA = 21
V_WA = 25
V_PW = 26
V_PR = 27
V_BW = 28
V_BR = 29
V_BO = 30
V_PF = 30
V_RW = 31
V_RR = 32
V_M = 33
V_T = 34
V_ST = 39
V_RD = 40
V_ACC = 64
V_QB = 112
V_S = 136
V_P = 200
V_XR = 232
V_IA = 232
V_OA = 234
V_UW = 235
V_CV = 236
V_CA = 238
V_EW = 242
V_ER = 243
V_TK = 252
V_DO = 253
V_TR = 254
V_XO = 255
V_ST2 = 255

def srd(e, r, base, off, nbytes):
    if off is None:
        e(f"s_mov_b32 s{r}, s{base}")
        e(f"s_and_b32 s{r+1}, s{base+1}, 0xffff")
    else:
        e(f"s_add_u32 s{r}, s{base}, s{off}")
        e(f"s_addc_u32 s{r+1}, s{base+1}, 0")
        e(f"s_and_b32 s{r+1}, s{r+1}, 0xffff")
    e(f"s_mov_b32 s{r+2}, {nbytes}")
    e(f"s_mov_b32 s{r+3}, 0x20000")

def nloads(tile):
    if tile[0] == "P":
        return tile[1][1]
    return 5 if tile[0] == "O" else 6

def gen(groups=((0, 0, 10), (3, 0, 2), (7, 2, 1), (10, 2, 1)), gmap=(0, 1, 2, 3, 0, 1, 2, 3), rots=(0, 2, 3, 4, 5, 7, 8, 9),
        nfl=11, nflq=12, nflt=10, nflo=11, backlog=2, pbacklog=3, wo_at=(13, 14, 16, 17, 19, 20, 22, 23, 25, 26, 28, 29), f_kv="nt", f_wq="", f_wo="",
        krot=(56, 0, 16), kw=1, krt=0, ncol=6, trace=0, spin_max=100000, tail_from=2, qs1=3, qs2=3, tag_pos=None, ss=2, half=1, k32=1, f_st='sc1', f_poll='sc1', f_out='', warm=0, helps=(), f_last='', hx=1, hpos=2, deflast=(), nfle=None, touch=0, tshift=15, fast=1, ackwait=1, warm0=0, ob=(12, 22, 15, 26), pp=(8, 9, 11, 12), pn=(9, 10, 3, 8), alignb=3, denorm=1, dbgtime=None):
    del TRACE_NAMES[:]
    T = V_T
    G, SS = T, T + 1

    class Ctx:
        pass
    cx = Ctx()
    cx.e = E()

    def tr_begin(force=False):
        if trace and (trace != 4 or force):
            cx.e(f"s_memrealtime s[{S_TR}:{S_TR+1}]")
    def tr_end(name):
        if dbgtime == name:
            cx.e("s_memrealtime s[90:91]")
        if trace and (trace != 4 or name in ("start", "V15", "end")):
            if name not in TRACE_NAMES:
                TRACE_NAMES.append(name)
            cx.e(f"v_writelane_b32 v{V_TR}, s{S_TR}, {TRACE_NAMES.index(name)}")
    def tr(name):
        if dbgtime == name:
            cx.e("s_memrealtime s[90:91]")
        if trace and not (trace == 2 and name in ("o.b1", "obr", "sent")) and not (trace == 3 and name in ("o.b1", "obr")) and (trace != 4 or name == "end"):
            tr_begin(True)
            cx.e("s_waitcnt lgkmcnt(0)")
            tr_end(name)

    def nibble(dst, table):
        packed = sum(r << (4 * i) for i, r in enumerate(table))
        cx.e(f"s_lshr_b32 s{dst}, {packed:#x}, s{S_T1}")
        cx.e(f"s_and_b32 s{dst}, s{dst}, 15")

    nplain = 16 - ncol
    kv = [("K", t) for t in range(16)] + [("V", t) for t in range(nplain)]
    kv += [("C", (m, t0)) for m in range(3) for t0 in range(nplain, 16, 3)]
    if wo_at is None:
        wo_at = list(range(7, 31, 2))
    assert len(wo_at) == 12
    seq = []
    wo_i = 0
    for n, tl in enumerate(kv):
        seq.append(tl)
        while wo_i < 12 and wo_at[wo_i] == n + 1:
            seq.append(("O", wo_i)); wo_i += 1
    assert wo_i == 12
    seqs = [seq] * len(groups)
    if ob:
        seqs = []
        for gi in range(len(groups)):
            sq, k = [], 0
            pieces = dict(ob[gi]) if isinstance(ob[gi], (tuple, list)) else {ob[gi]: 12}
            assert sum(pieces.values()) == 12
            for n, tl in enumerate(kv):
                sq.append(tl)
                if n + 1 == pp[gi]:
                    h1 = min(6, (pn[gi] + 1) // 2 if pn[gi] > 6 else pn[gi])
                    sq += [("P", (0, h1)), ("P", (h1, pn[gi] - h1))]
                if n + 1 in pieces:
                    sq += [("O", t) for t in range(k, k + pieces[n + 1])]
                    k += pieces[n + 1]
            seqs.append(sq)
        seq = seqs[0]

    def group_plan(gi, npre, npost, nq0):
        seq = seqs[gi]
        main_slots = {tl: n % NSLOT for n, tl in enumerate(seq)}
        nring = min(npre, 4)
        nq = NSLOT - nring
        nq0 = min(nq0, 10)
        assert npre == 0 or nq0 <= nq
        order = [("Q", p) for p in range(nq0)] + seq[:npre] + [("Q", p) for p in range(nq0, 10)] + seq[npre:]
        slots = dict(main_slots)
        slots.update({("Q", p): nring + (p - (10 - nq)) % nq for p in range(10)})
        parked = seq[nring:npre + npost] if npre > nring or npost else []
        assert all(t[0] == "K" for t in seq[:npre + npost])
        park = {tl: 240 - 24 * (i + 1) for i, tl in enumerate(parked)}
        return order, slots, park
    plans = [group_plan(gi, *g) for gi, g in enumerate(groups)]
    MERGE = max(6, max(g[0] + g[1] for g in groups) + 1)
    while any(sq[MERGE - 1:] != seq[MERGE - 1:] for sq in seqs):
        MERGE += 1

    e = cx.e
    e(f"{KN}:")
    e("s_cmp_ge_u32 s2, 256")
    e("s_cbranch_scc1 L_end")
    tr_begin(True)
    if trace:
        e("s_memtime s[96:97]")
    e(f"s_memrealtime s[{S_NC}:{S_NC+1}]")
    e("s_load_dwordx16 s[4:19], s[0:1], 0")
    e(f"v_lshrrev_b32 v{T}, 6, v0")
    e(f"v_and_b32 v{V_L}, 63, v0")
    e(f"v_readfirstlane_b32 s{S_W}, v{T}")
    if trace:
        e(f"v_mov_b32 v{V_TR}, 0")
    e.c("head = 4*(wg&7) + ((wg>>3)&3), batch = wg>>5")
    e(f"s_and_b32 s{S_H}, s2, 7")
    e(f"s_lshl_b32 s{S_H}, s{S_H}, 2")
    e(f"s_bfe_u32 s{S_T0}, s2, 0x20003")
    e(f"s_add_u32 s{S_H}, s{S_H}, s{S_T0}")
    e(f"s_lshr_b32 s{S_B}, s2, 5")
    e(f"s_mul_i32 s{S_RING}, s{S_W}, {RING}")
    e(f"s_mul_i32 s{S_QW}, s{S_W}, {160*12288}")
    e.c("first key tile of this wave, rotated per workgroup")
    e(f"s_mul_i32 s{S_KW}, s{S_B}, {krot[0]}")
    e(f"s_and_b32 s{S_T1}, s2, 7")
    e(f"s_mul_i32 s{S_T1}, s{S_T1}, {krot[1]}")
    e(f"s_mul_i32 s{S_T0}, s{S_T0}, {krot[2]}")
    e(f"s_add_u32 s{S_KW}, s{S_KW}, s{S_T1}")
    e(f"s_add_u32 s{S_KW}, s{S_KW}, s{S_T0}")
    e(f"s_mul_i32 s{S_T0}, s{S_W}, {kw}")
    e(f"s_add_u32 s{S_KW}, s{S_KW}, s{S_T0}")
    e.c("per-batch start order, first wq tile and its LDS slot")
    e(f"s_lshl_b32 s{S_T1}, s{S_B}, 2")
    nibble(S_G, gmap)
    nibble(S_TP, rots)
    nibble(S_SPIN, [plans[g][1][("Q", 0)] for g in gmap])
    e(f"s_mul_i32 s{S_SPIN}, s{S_SPIN}, {SLOT}")
    e(f"s_add_u32 s{S_SPIN}, s{S_SPIN}, s{S_RING}")
    for p in range(1, 10):
        e(f"s_add_u32 s{S_TP+p}, s{S_TP+p-1}, 1")
        e(f"s_cmp_eq_u32 s{S_TP+p}, 10")
        e(f"s_cselect_b32 s{S_TP+p}, 0, s{S_TP+p}")
    e.c("DMA source offsets (16-byte chunks XOR-swizzled inside each 128-byte line)")
    e(f"v_lshrrev_b32 v{T}, 3, v{V_L}")
    e(f"v_and_b32 v{T+1}, 7, v{V_L}")
    for i in range(6):
        e(f"v_add_u32 v{T+2}, {8*i}, v{T}")
        e(f"v_mul_u32_u24 v{T+3}, 43, v{T+2}")
        e(f"v_lshrrev_b32 v{T+3}, 7, v{T+3}")
        e(f"v_and_b32 v{T+4}, 6, v{T+3}")
        e(f"v_xor_b32 v{T+4}, v{T+4}, v{T+1}")
        e(f"v_lshlrev_b32 v{T+4}, 4, v{T+4}")
        e(f"v_lshl_add_u32 v{V_KV+i}, v{T+2}, 7, v{T+4}")
        e(f"v_mul_u32_u24 v{T+3}, {12288-384}, v{T+3}")
        e(f"v_add_u32 v{V_WQ+i}, v{V_KV+i}, v{T+3}")
    e(f"v_lshrrev_b32 v{G}, 4, v{V_L}")
    e(f"v_and_b32 v{SS}, 3, v{V_L}")
    e.c("x staging: 80 chunks of 16 bytes, LDS image [row][320 bytes]")
    e(f"v_mul_u32_u24 v{T+2}, 205, v{V_L}")
    e(f"v_lshrrev_b32 v{T+2}, 12, v{T+2}")
    e(f"v_mul_u32_u24 v{T+2}, {1280-320}, v{T+2}")
    e(f"v_lshl_add_u32 v{T+2}, v{V_L}, 4, v{T+2}")
    e(f"s_mul_i32 s{S_T0}, s{S_W}, 320")
    e(f"v_add_u32 v{V_XO}, s{S_T0}, v{T+2}")
    e(f"v_lshlrev_b32 v{T+2}, 4, v{V_L}")
    e(f"v_add_u32 v{T+2}, {3*1280 + 64}, v{T+2}")
    e(f"v_add_u32 v{V_TK}, s{S_T0}, v{T+2}")
    e(f"s_mul_i32 s{S_XL}, s{S_W}, {PWAVE}")
    e(f"s_add_u32 s{S_XL}, s{S_XL}, {PART}")
    e(f"s_mul_i32 s{S_OFF}, s{S_TP}, {16*12288}")
    e(f"s_add_u32 s{S_OFF}, s{S_OFF}, s{S_QW}")
    e("s_waitcnt lgkmcnt(0)")
    tr_end("start")
    e.c("first wq tile and the x operand")
    e(f"s_mul_i32 s{S_T0}, s{S_B}, 5120")
    srd(e, R_X, S_X, S_T0, 5120)
    e(f"s_mov_b32 m0, s{S_XL}")
    e("s_nop 0")
    e.vmop(f"buffer_load_dwordx4 v{V_XO}, s[{R_X}:{R_X+3}], 0 offen lds", ("x", 0))
    e(f"s_add_u32 m0, s{S_XL}, 1024")
    e("s_mov_b64 exec, 0xffff")
    e.vmop(f"buffer_load_dwordx4 v{V_TK}, s[{R_X}:{R_X+3}], 0 offen lds", ("x", 1))
    e("s_mov_b64 exec, -1")
    e(f"s_mul_i32 s{S_T0}, s{S_H}, 384")
    e(f"s_sub_u32 s{S_T1}, {640*12288}, s{S_T0}")
    srd(e, R_WQ, S_WQ, S_T0, f"s{S_T1}")
    for i in range(6):
        e(f"s_add_u32 m0, s{S_SPIN}, {i*1024}")
        e("s_nop 0")
        e.vmop(f"buffer_load_dwordx4 v{V_WQ+i}, s[{R_WQ}:{R_WQ+3}], s{S_OFF} offen {f_wq} lds", (("Q", 0), i))
    e(f"s_lshl_b32 s{S_T0}, s{S_B}, 5")
    e(f"s_add_u32 s{S_T0}, s{S_T0}, s{S_H}")
    e(f"s_mul_i32 s{S_T0}, s{S_T0}, 1572864")
    e(f"s_add_u32 s{S_T0}, s{S_T0}, {3072*384}")
    srd(e, R_K, S_K, S_T0, 393216)
    srd(e, R_V, S_V, S_T0, 393216)
    if krt:
        e(f"s_add_u32 s80, s{S_WS}, 0x3000000")
        e(f"s_addc_u32 s81, s{S_WS+1}, 0")
        e("s_load_dwordx4 s[84:87], s[80:81], 0")
        e("s_waitcnt lgkmcnt(0)")
        e(f"s_mul_i32 s{S_KW}, s{S_B}, s84")
        e(f"s_and_b32 s{S_T1}, s2, 7")
        e(f"s_mul_i32 s{S_T1}, s{S_T1}, s85")
        e(f"s_bfe_u32 s{S_T0}, s2, 0x20003")
        e(f"s_mul_i32 s{S_T0}, s{S_T0}, s86")
        e(f"s_add_u32 s{S_KW}, s{S_KW}, s{S_T1}")
        e(f"s_add_u32 s{S_KW}, s{S_KW}, s{S_T0}")
        e(f"s_mul_i32 s{S_T0}, s{S_W}, s87")
        e(f"s_add_u32 s{S_KW}, s{S_KW}, s{S_T0}")
        e("s_cmp_eq_u32 s87, 1")
        e("s_cselect_b32 s88, 4, 1")
    if warm0:
        e.c("first touch of the inbox lines this wave polls at the end")
        e(f"s_lshl_b32 s{S_CT}, s{S_W}, 5")
        e(f"s_add_u32 s{S_CT}, s{S_CT}, s{S_H}")
        e(f"s_mul_i32 s{S_T0}, s{S_B}, 80")
        e(f"s_add_u32 s{S_T0}, s{S_T0}, s{S_CT}")
        e(f"s_lshl_b32 s{S_T0}, s{S_T0}, 12")
        e(f"s_cmp_lt_u32 s{S_CT}, 80")
        e(f"s_cselect_b32 s{S_T1}, 4096, 0")
        srd(e, R_OUT, S_WS, S_T0, f"s{S_T1}")
        e(f"v_lshlrev_b32 v{V_P+1}, {7 if warm0 == 1 else 6}, v{V_L}")
        e.vmop(f"buffer_load_dword v{V_P}, v{V_P+1}, s[{R_OUT}:{R_OUT+3}], 0 offen sc1", "warm0")
    first_vm = list(e.vm)

    def key_tile_offset(t, extra=0, S_KW=S_KW):
        e = cx.e
        if krt:
            e(f"s_mul_i32 s{S_OFF}, s88, {t}")
            e(f"s_add_u32 s{S_OFF}, s{S_KW}, s{S_OFF}")
        else:
            e(f"s_add_u32 s{S_OFF}, s{S_KW}, {(4 if kw == 1 else 1)*t}")
        e(f"s_and_b32 s{S_OFF}, s{S_OFF}, 63")
        e(f"s_mul_i32 s{S_OFF}, s{S_OFF}, {SLOT}")
        if extra:
            e(f"s_add_u32 s{S_OFF}, s{S_OFF}, {extra}")

    def issue_one(tile, slot, park, i):
        e = cx.e
        kind, t = tile
        if kind in "KV":
            r, vo, fl = (R_K if kind == "K" else R_V), V_KV + i, f_kv
            if i == 0:
                key_tile_offset(t)
        elif kind == "C":
            r, vo, fl = R_V, V_CV + (i & 1), (f_last if any(t in h_ for h_ in helps) or t in deflast else f_kv)
            if i & 1 == 0:
                key_tile_offset(t[1] + (i >> 1), 128 * t[0])
        elif kind == "Q":
            r, vo, fl = R_WQ, V_WQ + i, f_wq
            if i == 0:
                e(f"s_mul_i32 s{S_OFF}, s{S_TP+t}, {16*12288}")
                e(f"s_add_u32 s{S_OFF}, s{S_OFF}, s{S_QW}")
        elif kind == "P":
            r, vo, fl = R_WO, V_PF, f_wo
            e(f"s_add_u32 s{S_OFF}, s{S_PF}, {1024*(t[0] + i)}")
        else:
            r, vo, fl = R_WO, V_WO + i, f_wo
            if i == 0:
                e(f"s_mov_b32 s{S_OFF}, {t*16*1280}")
        if park is not None:
            a = park + 4 * i
            e.vmop(f"buffer_load_dwordx4 a[{a}:{a+3}], v{vo}, s[{r}:{r+3}], s{S_OFF} offen {fl}", (tile, i))
        else:
            e(f"s_add_u32 m0, s{S_RING}, {slot*SLOT + i*1024}")
            e("s_nop 0")
            e.vmop(f"buffer_load_dwordx4 v{vo}, s[{r}:{r+3}], s{S_OFF} offen {fl} lds", (tile, i))

    al = [0]
    class Stream:
        def __init__(self, order, slots, park):
            self.flat = [(tl, i) for tl in order for i in range(nloads(tl))]
            self.slot = dict(slots)
            self.park = park
            self.next = 0
            self.busy = set()
        def can_issue(self):
            if self.next >= len(self.flat):
                return False
            tl, i = self.flat[self.next]
            if i > 0 or tl in self.park:
                return True
            if tl[0] != "Q" and any(p not in done for p in self.park) and len(self.busy) >= NSLOT - 1 and tl not in kv[:4]:
                return False
            return self.slot[tl] not in self.busy
        def issue_next(self):
            tl, i = self.flat[self.next]
            if i == 0 and tl[0] in "KV" and self.next + 6 < len(self.flat):
                nx = self.flat[self.next + 6][0]
                if (nx[0] == "Q" and alignb & 1) or (nx == ("O", 0) and ob and alignb & 2):
                    al[0] += 1
                    cx.e(f"s_branch L_page_{al[0]}")
                    cx.e(".p2align 12")
                    cx.e(f"L_page_{al[0]}:")
            if i == 0 and tl not in self.park:
                assert self.slot[tl] not in self.busy
                self.busy.add(self.slot[tl])
            issue_one(tl, self.slot[tl], self.park.get(tl), i)
            self.next += 1
        def stage_slot(self, tl):
            later = []
            for t2, i in self.flat[self.next:]:
                if i == 0 and t2 not in self.park and self.slot[t2] not in later:
                    later.append(self.slot[t2])
            free = [s for s in range(NSLOT) if s not in self.busy]
            free.sort(key=lambda s: -(later.index(s) if s in later else 99))
            self.slot[tl] = free[0]
            self.busy.add(free[0])
        def loads(self):
            return [t for t in cx.e.vm if not isinstance(t, str)]
        def gated(self, n):
            vm = self.loads()
            if len(vm) >= n:
                cx.e.wait_vm(vm[len(vm) - n])
            self.issue_next()
        def top_up(self, n):
            while len(self.loads()) < n and self.can_issue():
                self.issue_next()
        def wait_tile(self, tl, n):
            if nloads(tl) == 0:
                return
            last = (tl, nloads(tl) - 1)
            while self.flat.index(last) >= self.next:
                self.gated(n)
            while last in cx.e.vm:
                vm = self.loads()
                if self.can_issue() and (len(vm) < n or vm.index(last) >= len(vm) - n):
                    if len(vm) < n:
                        self.top_up(n)
                    else:
                        self.gated(n)
                else:
                    cx.e.wait_vm(last)
        def release(self, tl, n):
            if nloads(tl):
                self.busy.discard(self.slot[tl])
            if len(self.loads()) < n:
                self.top_up(n)
            else:
                for _ in range(pbacklog if tl in self.park else backlog):
                    if self.can_issue():
                        self.gated(n)
        def sprinkle(self, k=1):
            for _ in range(k):
                if self.can_issue():
                    self.issue_next()
        def next_tile(self):
            tl, i = self.flat[self.next]
            if i > 0:
                tl = self.flat[self.next + nloads(tl) - i][0]
            return tl

    def late_setup(gi):
        e = cx.e
        e.c("remaining address registers and descriptors")
        e(f"s_mov_b32 s{S_SCALE}, {f32(192 ** -0.5):#x}")
        e(f"s_mov_b32 s{S_L2E}, {f32(1.4426950408889634):#x}")
        e(f"s_mul_i32 s{S_T0}, s{S_H}, 245760")
        srd(e, R_WO, S_WO, S_T0, 245760)
        e(f"s_mul_i32 s{S_T0}, s{S_W}, 320")
        for i in range(5):
            e(f"v_add_u32 v{T+2}, {64*i}, v{V_L}")
            e(f"v_mul_u32_u24 v{T+3}, 205, v{T+2}")
            e(f"v_lshrrev_b32 v{T+3}, 12, v{T+3}")
            e(f"v_mul_u32_u24 v{T+3}, {1280-320}, v{T+3}")
            e(f"v_lshl_add_u32 v{T+3}, v{T+2}, 4, v{T+3}")
            e(f"v_add_u32 v{V_WO+i}, s{S_T0}, v{T+3}")
        e.c("K operand read addresses")
        e(f"v_and_b32 v{T+2}, 15, v{V_L}")
        e(f"v_and_b32 v{T+3}, 6, v{T+2}")
        e(f"v_xor_b32 v{T+3}, v{T+3}, v{G}")
        e(f"v_lshlrev_b32 v{T+3}, 4, v{T+3}")
        e(f"v_mul_u32_u24 v{T+2}, 384, v{T+2}")
        e(f"v_add3_u32 v{V_KA}, v{T+2}, v{T+3}, s{S_RING}")
        e(f"v_xor_b32 v{V_KA+1}, 64, v{V_KA}")
        e.c("transposing read addresses: row = lane>>2, column group = lane&3")
        e(f"v_lshrrev_b32 v{T+2}, 2, v{V_L}")
        e(f"v_and_b32 v{T+3}, 6, v{T+2}")
        e(f"v_lshlrev_b32 v{T+3}, 4, v{T+3}")
        e(f"v_lshl_add_u32 v{T+3}, v{SS}, 3, v{T+3}")
        e(f"v_mul_u32_u24 v{T+4}, 384, v{T+2}")
        e(f"v_add3_u32 v{V_VA}, v{T+4}, v{T+3}, s{S_RING}")
        for q in range(1, 4):
            e(f"v_xor_b32 v{V_VA+q}, {32*q}, v{V_VA}")
        e(f"v_mul_u32_u24 v{T+4}, 320, v{T+2}")
        e(f"v_lshl_add_u32 v{T+4}, v{SS}, 3, v{T+4}")
        e(f"v_add_u32 v{V_WA}, s{S_RING}, v{T+4}")
        e.c("cross-wave exchange addresses")
        e(f"v_mul_u32_u24 v{T+2}, {PROW}, v{SS}")
        e(f"v_lshl_add_u32 v{T+2}, v{G}, 4, v{T+2}")
        e(f"v_add_u32 v{V_PW}, s{S_XL}, v{T+2}")
        e(f"v_mul_u32_u24 v{T+3}, 1366, v0")
        e(f"v_lshrrev_b32 v{T+3}, 16, v{T+3}")
        e(f"v_lshlrev_b32 v{T+3}, 4, v{T+3}")
        e(f"v_lshl_add_u32 v{T+2}, v0, 4, v{T+3}")
        e(f"v_add_u32 v{V_PR}, {PART}, v{T+2}")
        e(f"v_lshl_add_u32 v{T+2}, v0, 3, v{T+3}")
        e(f"v_add_u32 v{V_BW}, {QBF}, v{T+2}")
        e(f"v_mul_u32_u24 v{T+2}, {BROW}, v{SS}")
        e(f"v_add_u32 v{T+2}, {QBF}, v{T+2}")
        e(f"v_lshl_add_u32 v{V_BR}, v{G}, 4, v{T+2}")
        if not ncol:
            e(f"v_lshl_add_u32 v{V_BO}, v{G}, 3, v{T+2}")
        e(f"v_lshlrev_b32 v{T+2}, 6, v{SS}")
        e(f"v_add_u32 v{V_RR}, {RMAX}, v{T+2}")
        e(f"s_lshl_b32 s{S_T0}, s{S_W}, 4")
        e(f"v_lshl_add_u32 v{T+2}, v{G}, 2, v{V_RR}")
        e(f"v_add_u32 v{V_RW}, s{S_T0}, v{T+2}")
        if touch:
            e(f"v_lshlrev_b32 v{T+2}, {tshift}, v0")
            for bit, r in enumerate((R_K, R_V, R_WO)):
                if touch >> bit & 1:
                    e.vmop(f"buffer_load_dword v{V_P+bit}, v{T+2}, s[{r}:{r+3}], 0 offen nt", "tch")
        if ob:
            e(f"v_lshlrev_b32 v{V_PF}, 4, v{V_L}")
            assert sum(pn) >= 30 and tuple(gmap[:4]) == tuple(gmap[4:]) and sorted(gmap[:4]) == [0, 1, 2, 3]
            e(f"s_lshr_b32 s{S_PF}, s{S_B}, 2")
            e(f"s_mul_i32 s{S_PF}, s{S_PF}, {4096*sum(pn)}")
            e(f"s_mul_i32 s{S_T0}, s{S_W}, {1024*pn[gi]}")
            e(f"s_add_u32 s{S_PF}, s{S_PF}, s{S_T0}")
            e(f"s_add_u32 s{S_PF}, s{S_PF}, {4096*sum(pn[:gi])}")
        e.c("x operand")
        e(f"v_mul_u32_u24 v{T+2}, 320, v{SS}")
        e(f"v_lshl_add_u32 v{T+2}, v{G}, 3, v{T+2}")
        e(f"v_add_u32 v{T+2}, s{S_XL}, v{T+2}")
        e.wait_vm(("x", 1))
        for p in range(10):
            e(f"v_lshl_add_u32 v{T+3}, s{S_TP+p}, 5, v{T+2}")
            e(f"ds_read_b64 v[{V_XR+2*p}:{V_XR+2*p+1}], v{T+3}")

    def post_q_setup():
        e = cx.e
        e.c("inbox slot of this head: [batch][tile][head][16 lanes x 16 bytes], lane quad c carries tile 4m+c")
        e(f"s_mul_i32 s{S_T0}, s{S_B}, {INBOX_B}")
        e(f"s_lshl_b32 s{S_T1}, s{S_H}, {7 if half else 8}")
        e(f"s_add_u32 s{S_T0}, s{S_T0}, s{S_T1}")
        e(f"s_sub_u32 s{S_T1}, {INBOX_B}, s{S_T1}")
        srd(e, R_IN, S_WS, S_T0, f"s{S_T1}")
        if half:
            e(f"v_and_b32 v{T+2}, 1, v{G}")
            e(f"v_lshl_add_u32 v{T+2}, v{T+2}, 2, v{SS}")
            e(f"v_lshlrev_b32 v{T+2}, 4, v{T+2}")
            e(f"v_lshrrev_b32 v{T+3}, 1, v{G}")
            e(f"v_lshl_add_u32 v{T+2}, v{T+3}, 12, v{T+2}")
        else:
            e(f"v_lshl_add_u32 v{T+2}, v{G}, 2, v{SS}")
            e(f"v_lshlrev_b32 v{T+2}, 4, v{T+2}")
        e(f"s_mul_i32 s{S_T0}, s{S_W}, {10*8192}")
        e(f"v_add_u32 v{V_ST}, s{S_T0}, v{T+2}")
        e(f"v_and_b32 v{T+2}, 12, v{V_L}")
        e(f"v_lshl_add_u32 v{V_ST}, v{T+2}, 11, v{V_ST}")
        e(f"v_and_b32 v{T+2}, 8, v{V_L}")
        e(f"v_lshl_add_u32 v{V_ST2}, v{T+2}, 24, v{V_ST}")
        for m in range(3):
            e(f"s_mov_b32 s{S_TP+m}, {4*8192*m}")
        e.c("head 0 of each batch publishes this launch's tag in d_debug (lane 0 of wave 3, other lanes out of range)")
        srd(e, R_DBG, S_DBG, None, 256)
        e(f"s_and_b32 s{S_T0}, s{S_B}, 1")
        e(f"s_lshl_b32 s{S_T0}, s{S_T0}, 7")
        e(f"s_lshl_b32 s{S_T1}, s{S_B}, 1")
        e(f"s_and_b32 s{S_T1}, s{S_T1}, 12")
        e(f"s_add_u32 s{S_CO}, s{S_T0}, s{S_T1}")
        e(f"v_xor_b32 v{T+2}, 192, v0")
        e(f"v_or_b32 v{T+2}, s{S_H}, v{T+2}")
        e(f"v_lshlrev_b32 v{V_DO}, 8, v{T+2}")
        e(f"s_mul_i32 s{S_T0}, s{S_NC}, 0x9e3779b1")
        e(f"s_or_b32 s{S_T0}, s{S_T0}, 1")
        e(f"v_mov_b32 v{V_TK}, s{S_T0}")
        e.vmop(f"buffer_store_dword v{V_TK}, v{V_DO}, s[{R_DBG}:{R_DBG+3}], s{S_CO} offen sc1", "tagst")
        e.c("unit this wave reduces at the end: 32*wave + head")
        e(f"s_lshl_b32 s{S_CT}, s{S_W}, 5")
        e(f"s_add_u32 s{S_CT}, s{S_CT}, s{S_H}")
        e(f"s_mul_i32 s{S_T0}, s{S_B}, {80 if half else 40}")
        e(f"s_add_u32 s{S_T0}, s{S_T0}, s{S_CT}")
        e(f"s_lshl_b32 s{S_T0}, s{S_T0}, {12 if half else 13}")
        e(f"s_cmp_lt_u32 s{S_CT}, {80 if half else 40}")
        e(f"s_cselect_b32 s{S_T1}, {4096 if half else 8192}, 0")
        srd(e, R_RD, S_WS, S_T0, f"s{S_T1}")
        e(f"s_mul_i32 s{S_T0}, s{S_B}, 5120")
        srd(e, R_OUT, S_OUT, S_T0, 5120)
        e(f"v_lshlrev_b32 v{V_IA}, 4, v{V_L}")
        e(f"v_add_u32 v{V_IA+1}, 4096, v{V_IA}")
        e(f"v_add_u32 v{V_UW}, s{S_RING}, v{V_IA}")
        e.c("output byte offset: row = lane&3, column 16*tile + 4*((lane>>2)&3) + {0,2,1,3}[lane>>4]")
        e(f"v_mul_u32_u24 v{V_OA}, 1280, v{SS}")
        e(f"v_and_b32 v{T+2}, {4 if half else 12}, v{V_L}")
        e(f"v_lshl_add_u32 v{V_OA}, v{T+2}, 1, v{V_OA}")
        if half:
            e(f"v_and_b32 v{T+2}, 8, v{V_L}")
            e(f"v_lshl_add_u32 v{V_OA}, v{T+2}, 20, v{V_OA}")
        e(f"v_bfe_u32 v{T+2}, v{V_L}, 4, 1")
        e(f"v_lshl_add_u32 v{V_OA}, v{T+2}, 2, v{V_OA}")
        e(f"v_lshrrev_b32 v{T+2}, 5, v{V_L}")
        e(f"v_lshl_add_u32 v{V_OA}, v{T+2}, 1, v{V_OA}")
        e(f"s_lshl_b32 s{S_T0}, s{S_CT}, {4 if half else 5}")
        e(f"v_add_u32 v{V_OA}, s{S_T0}, v{V_OA}")
        if helps:
            e.c("V window and tile order of the neighbouring head")
            e(f"s_xor_b32 s{S_T1}, s{S_H}, {hx}")
            e(f"s_and_b32 s{S_T0}, s{S_T1}, 3")
            e(f"s_and_b32 s{S_PK}, s{S_H}, 3")
            e(f"s_sub_u32 s{S_T0}, s{S_T0}, s{S_PK}")
            e(f"s_mul_i32 s{S_T0}, s{S_T0}, {krot[2]}")
            e(f"s_add_u32 s{S_PK}, s{S_KW}, s{S_T0}")
            e(f"s_lshl_b32 s{S_T0}, s{S_B}, 5")
            e(f"s_add_u32 s{S_T0}, s{S_T0}, s{S_T1}")
            e(f"s_mul_i32 s{S_T0}, s{S_T0}, 1572864")
            e(f"s_add_u32 s{S_T0}, s{S_T0}, {3072*384}")
            srd(e, R_PV, S_V, S_T0, 393216)
        if ncol:
            e.c("column tiles: 48 rows x 128 bytes")
            e(f"v_lshrrev_b32 v{T+2}, 3, v{V_L}")
            e(f"v_and_b32 v{T+3}, 6, v{T+2}")
            e(f"v_and_b32 v{T+4}, 7, v{V_L}")
            e(f"v_xor_b32 v{T+3}, v{T+3}, v{T+4}")
            e(f"v_lshlrev_b32 v{T+3}, 4, v{T+3}")
            e(f"v_mul_u32_u24 v{T+2}, 384, v{T+2}")
            e(f"v_add_u32 v{V_CV}, v{T+2}, v{T+3}")
            e(f"v_add_u32 v{V_CV+1}, {8*384}, v{V_CV}")
            e(f"v_lshrrev_b32 v{T+2}, 2, v{V_L}")
            e(f"v_and_b32 v{T+3}, 6, v{T+2}")
            e(f"v_lshlrev_b32 v{T+3}, 4, v{T+3}")
            e(f"v_lshl_add_u32 v{T+3}, v{SS}, 3, v{T+3}")
            e(f"v_lshlrev_b32 v{T+2}, 7, v{T+2}")
            e(f"v_add3_u32 v{V_CA}, v{T+2}, v{T+3}, s{S_RING}")
            for q in range(1, 4):
                e(f"v_xor_b32 v{V_CA+q}, {32*q}, v{V_CA}")
            e.c("o exchange: [d tile][g][wave][row] x 16 bytes")
            e(f"v_and_b32 v{T+2}, 15, v{V_L}")
            e(f"v_lshlrev_b32 v{T+2}, 4, v{T+2}")
            e(f"v_lshl_add_u32 v{T+2}, v{G}, 8, v{T+2}")
            e(f"v_add_u32 v{V_ER}, {PART}, v{T+2}")
            e(f"s_lshl_b32 s{S_T0}, s{S_W}, 6")
            e(f"v_add_u32 v{V_EW}, s{S_T0}, v{V_ER}")

    def tr_reads(slot):
        for dt in range(12):
            cx.e(f"ds_read_b64_tr_b16 v[{V_RD+2*dt}:{V_RD+2*dt+1}], v{V_VA + (dt & 3)} offset:{slot*SLOT + 128*(dt >> 2)}")

    def pv_mfma(breg, first):
        for dt in range(12):
            a = V_ACC + 4 * dt
            cc = "0" if first else f"v[{a}:{a+3}]"
            cx.e(f"v_mfma_f32_16x16x16_bf16 v[{a}:{a+3}], v[{V_RD+2*dt}:{V_RD+2*dt+1}], v[{breg}:{breg+1}], {cc}")

    def reduce_partials(label, st):
        e = cx.e
        e.c("sum the four waves' partial rows, round to bf16")
        e("s_mov_b32 exec_lo, 0x000f000f")
        e("s_mov_b32 exec_hi, 0x000f000f")
        for dt in range(12):
            a = V_ACC + 4 * dt
            e(f"ds_write_b128 v{V_PW}, v[{a}:{a+3}] offset:{64*dt}")
        e("s_mov_b64 exec, -1")
        if st:
            st.sprinkle(qs1)
        e("s_waitcnt lgkmcnt(0)")
        e("s_barrier")
        tr(label[2] + ".b1")
        e(f"s_cmp_eq_u32 s{S_W}, 3")
        e(f"s_cbranch_scc1 {label}")
        for w in range(4):
            e(f"ds_read_b128 v[{V_RD+4*w}:{V_RD+4*w+3}], v{V_PR} offset:{PWAVE*w}")
        e("s_waitcnt lgkmcnt(0)")
        for r in range(4):
            e(f"v_add_f32 v{V_RD+r}, v{V_RD+r}, v{V_RD+4+r}")
        for r in range(4):
            e(f"v_add_f32 v{V_RD+8+r}, v{V_RD+8+r}, v{V_RD+12+r}")
        for r in range(4):
            e(f"v_add_f32 v{V_RD+r}, v{V_RD+r}, v{V_RD+8+r}")
        e(f"v_cvt_pk_bf16_f32 v{V_RD+4}, v{V_RD}, v{V_RD+1}")
        e(f"v_cvt_pk_bf16_f32 v{V_RD+5}, v{V_RD+2}, v{V_RD+3}")
        e(f"ds_write_b64 v{V_BW}, v[{V_RD+4}:{V_RD+5}]")
        e("s_waitcnt lgkmcnt(0)")
        e(f"{label}:")
        if st:
            st.sprinkle(qs2)
        e("s_barrier")

    def score_post(t):
        e = cx.e
        s = V_S + 4 * t
        a, b = T + 2, T + 3
        for rnd in range(2):
            e(f"v_cvt_pk_bf16_f32 v{a}, v{s}, v{s+1}")
            e(f"v_cvt_pk_bf16_f32 v{b}, v{s+2}, v{s+3}")
            e(f"v_lshlrev_b32 v{s}, 16, v{a}")
            e(f"v_and_b32 v{s+1}, 0xffff0000, v{a}")
            e(f"v_lshlrev_b32 v{s+2}, 16, v{b}")
            e(f"v_and_b32 v{s+3}, 0xffff0000, v{b}")
            if rnd == 0:
                for r in range(4):
                    e(f"v_mul_f32 v{s+r}, s{S_SCALE}, v{s+r}")
        e(f"v_max3_f32 v{V_M}, v{V_M}, v{s}, v{s+1}")
        e(f"v_max3_f32 v{V_M}, v{V_M}, v{s+2}, v{s+3}")

    def softmax(st):
        e = cx.e
        e.c("softmax over the 1024 keys of each query row")
        e("s_nop 7")
        score_post(15)
        st.sprinkle(ss)
        e(f"ds_write_b32 v{V_RW}, v{V_M}")
        e("s_waitcnt lgkmcnt(0)")
        e("s_barrier")
        for i in range(4):
            e(f"ds_read_b128 v[{V_RD+4*i}:{V_RD+4*i+3}], v{V_RR} offset:{16*i}")
        e("s_waitcnt lgkmcnt(0)")
        for i in range(8):
            e(f"v_max3_f32 v{V_M}, v{V_M}, v{V_RD+2*i}, v{V_RD+2*i+1}")
        e(f"v_mul_f32 v{V_M}, s{S_L2E}, v{V_M}")
        st.sprinkle(ss)
        l0, l1 = T + 2, T + 3
        for r in range(64):
            e(f"v_fma_f32 v{V_S+r}, v{V_S+r}, s{S_L2E}, -v{V_M}")
        st.sprinkle(ss)
        for r in range(64):
            e(f"v_exp_f32 v{V_S+r}, v{V_S+r}")
            if r == 31:
                st.sprinkle(ss)
        st.sprinkle(ss)
        e(f"v_add_f32 v{l0}, v{V_S}, v{V_S+1}")
        e(f"v_add_f32 v{l1}, v{V_S+2}, v{V_S+3}")
        for r in range(4, 64, 2):
            e(f"v_add_f32 v{l0}, v{l0}, v{V_S+r}")
            e(f"v_add_f32 v{l1}, v{l1}, v{V_S+r+1}")
        e(f"v_add_f32 v{l0}, v{l0}, v{l1}")
        e(f"ds_write_b32 v{V_RW}, v{l0} offset:{RSUM-RMAX}")
        e("s_waitcnt lgkmcnt(0)")
        e("s_barrier")
        for i in range(4):
            e(f"ds_read_b128 v[{V_RD+4*i}:{V_RD+4*i+3}], v{V_RR} offset:{RSUM-RMAX+16*i}")
        st.sprinkle(ss)
        e("s_waitcnt lgkmcnt(0)")
        for i in range(8):
            e(f"v_add_f32 v{V_RD+i}, v{V_RD+i}, v{V_RD+8+i}")
        for i in range(4):
            e(f"v_add_f32 v{V_RD+i}, v{V_RD+i}, v{V_RD+4+i}")
        e(f"v_add_f32 v{V_RD}, v{V_RD}, v{V_RD+1}")
        e(f"v_add_f32 v{V_RD+2}, v{V_RD+2}, v{V_RD+3}")
        e(f"v_add_f32 v{V_RD}, v{V_RD}, v{V_RD+2}")
        e(f"v_rcp_f32 v{l0}, v{V_RD}")
        e("s_nop 0")
        for r in range(64):
            e(f"v_mul_f32 v{V_S+r}, v{l0}, v{V_S+r}")
        st.sprinkle(ss)
        for r in range(32):
            e(f"v_cvt_pk_bf16_f32 v{V_P+r}, v{V_S+2*r}, v{V_S+2*r+1}")
        e(f"v_mov_b32 v{V_M}, 0xffffff00")
        e("s_nop 0")

    def D_(nt):
        return V_S + 4 * nt
    def out_mfma(nt, j, breg):
        d = D_(nt)
        a = (j * 10 + nt) * 4
        cc = "0" if j == 0 else f"v[{d}:{d+3}]"
        cx.e(f"v_mfma_f32_16x16x32_bf16 v[{d}:{d+3}], a[{a}:{a+3}], v[{breg}:{breg+3}], {cc}")

    def final_projection(js, bregs, pre=None):
        e = cx.e
        ready = {}
        for nt in range(10):
            m, c = nt >> 2, nt & 3
            d = D_(4 * m)
            ops = []
            if c > 0:
                ops = [f"v_mov_b32_dpp v{d+r}, v{D_(nt)+r} quad_perm:[0,1,2,3] row_mask:0xf bank_mask:{1 << c:#x}" for r in range(4)]
            if c == 3 or nt == 9:
                ops += [f"v_and_or_b32 v{d+r}, v{d+r}, v{V_M}, s{S_TG+r}" for r in range(4)]
                ops.append(f"buffer_store_dwordx4 v[{d}:{d+3}], v{V_ST if m < 2 else V_ST2}, s[{R_IN}:{R_IN+3}], s{S_TP+m} offen {f_st}")
            ready[nt] = ops
        pend, since = [], {}
        def tick():
            for k in since:
                since[k] += 1
        def promote():
            for k in sorted(ready):
                if since.get(k, -1) >= 8 and since.get(k & ~3, -1) >= 8:
                    pend.extend(ready.pop(k))
                else:
                    break
        per_gap = 1 if len(js) > 2 else 2
        if pre is not None:
            for nt in range(10):
                out_mfma(nt, js[0], bregs[js[0]])
                for _ in range(3):
                    if pre:
                        e(pre.pop(0))
            assert not pre
            js = js[1:]
            per_gap = 3
        for nt in range(10):
            for j in js:
                out_mfma(nt, j, bregs[j])
                tick()
                if j == js[-1]:
                    since[nt] = 0
                promote()
                for _ in range(per_gap):
                    if pend:
                        e(pend.pop(0)); tick()
        while pend or ready:
            promote()
            if pend:
                e(pend.pop(0)); tick()
            elif ready:
                k = min(ready)
                need = 8 - min(since[k], since[k & ~3])
                e(f"s_nop {need - 1}")
                for _ in range(need):
                    tick()

    def stage(st, m):
        e = cx.e
        e("s_mov_b32 exec_lo, 0x000f000f")
        e("s_mov_b32 exec_hi, 0x000f000f")
        e("s_nop 2")
        for q in range(4):
            a = V_ACC + 4 * (4 * m + q)
            e(f"ds_write_b128 v{V_EW}, v[{a}:{a+3}] offset:{1024*(4*m+q)}")
        e("s_mov_b64 exec, -1")
        st.sprinkle(1)
        e("s_waitcnt lgkmcnt(0)")
        e("s_barrier")
        if m == 2:
            tr("o.b1")
        for q in range(4):
            e(f"ds_read_b128 v[{V_RD+4*q}:{V_RD+4*q+3}], v{V_ER} offset:{1024*(4*m+q)}")
        ror = lambda r, n: f"v_add_f32_dpp v{V_RD+r}, v{V_RD+r}, v{V_RD+r} row_ror:{n} row_mask:0xf bank_mask:0xf"
        cvt = lambda r: f"v_cvt_pk_bf16_f32 v{V_QB+r}, v{V_RD+2*r}, v{V_RD+2*r+1}"
        pre = None
        if fast > 1 and m == 2:
            for q in range(2):
                e(f"s_waitcnt lgkmcnt({3-q})")
                for r in range(4 * q, 4 * q + 4):
                    e(ror(r, 8))
            for r in range(8):
                e(ror(r, 4))
            for r in range(4):
                e(cvt(r))
            e("s_waitcnt lgkmcnt(0)")
            e("s_nop 0")
            pre = [ror(r, 8) for r in range(8, 16)] + [ror(r, 4) for r in range(8, 16)] + [cvt(r) for r in range(4, 8)]
        else:
            for q in range(4):
                e(f"s_waitcnt lgkmcnt({3-q})")
                for r in range(4 * q, 4 * q + 4):
                    e(ror(r, 8))
            for r in range(16):
                e(ror(r, 4))
            for r in range(8):
                e(cvt(r))
            st.sprinkle(1)
            e("s_nop 0")
        bregs = {2 * m: V_QB, 2 * m + 1: V_QB + 4}
        if m < 2:
            for j in (2 * m, 2 * m + 1):
                for nt in range(10):
                    out_mfma(nt, j, bregs[j])
        else:
            tr("obr")
            final_projection([4, 5], bregs, pre)

    def consume(st, tl):
        e = cx.e
        kind, t = tl
        if tl in st.park:
            st.stage_slot(tl)
            for i in range(6):
                a = st.park[tl] + 4 * i
                e(f"ds_write_b128 v{V_UW}, a[{a}:{a+3}] offset:{st.slot[tl]*SLOT + 1024*i}")
        sl = st.slot[tl]
        done.add(tl)
        if kind != "P":
            tr_begin()
        if kind == "K":
            for j in range(6):
                e(f"ds_read_b128 v[{V_RD+4*j}:{V_RD+4*j+3}], v{V_KA + (j & 1)} offset:{sl*SLOT + 128*(j >> 1)}")
            if t > 0:
                e("s_nop 1")
                score_post(t - 1)
            e("s_waitcnt lgkmcnt(0)")
            tr_end(f"K{t}")
            s = V_S + 4 * t
            for j in range(6):
                cc = "0" if j == 0 else f"v[{s}:{s+3}]"
                e(f"v_mfma_f32_16x16x32_bf16 v[{s}:{s+3}], v[{V_RD+4*j}:{V_RD+4*j+3}], v[{V_QB+4*j}:{V_QB+4*j+3}], {cc}")
            st.release(tl, nfl)
            if t == 15:
                softmax(st)
                tr("sm")
        elif kind == "V":
            tr_reads(sl)
            e("s_waitcnt lgkmcnt(0)")
            tr_end(f"V{t}")
            pv_mfma(V_P + 2 * t, t == 0)
            st.release(tl, nfl)
        elif kind == "C":
            m, t0 = t
            def rreg(u, q):
                if not k32:
                    return V_RD + 2 * (4 * u + q)
                return V_RD + 4 * q + 2 * u if u < 2 else V_RD + 16 + 2 * q
            order = [(u, q) for u in range(3) for q in range(4)]
            if k32:
                order = [(u, q) for q in range(4) for u in range(2)] + [(2, q) for q in range(4)]
            name = f"V{nplain + kv[16+nplain:].index(tl)}"
            last_tile = tl == seq[-1]
            def rd(u, q):
                r = rreg(u, q)
                e(f"ds_read_b64_tr_b16 v[{r}:{r+1}], v{V_CA+q} offset:{sl*SLOT + 2048*u}")
            def mf32(q):
                r, a, b = rreg(0, q), V_ACC + 4 * (4 * m + q), V_P + 2 * t0
                e(f"v_mfma_f32_16x16x32_bf16 v[{a}:{a+3}], v[{r}:{r+3}], v[{b}:{b+3}], v[{a}:{a+3}]")
            def mf16(q):
                r, a, b = rreg(2, q), V_ACC + 4 * (4 * m + q), V_P + 2 * (t0 + 2)
                e(f"v_mfma_f32_16x16x16_bf16 v[{a}:{a+3}], v[{r}:{r+1}], v[{b}:{b+1}], v[{a}:{a+3}]")
            if fast and last_tile:
                for u, q in order[:8]:
                    rd(u, q)
                e("s_waitcnt lgkmcnt(0)")
                for q in range(4):
                    mf32(q)
                e.wait_vm((tl, 5))
                tr_begin(True)
                for u, q in order[8:]:
                    rd(u, q)
                for q in range(4):
                    e(f"s_waitcnt lgkmcnt({0 if trace else 3 - q})")
                    if q == 0:
                        tr_end(name)
                    mf16(q)
            else:
                for u, q in order:
                    rd(u, q)
                e("s_waitcnt lgkmcnt(0)")
                tr_end(name)
                st.release(tl, nfl)
            if fast and last_tile:
                pass
            elif k32:
                for q in range(4):
                    mf32(q)
                e("s_nop 2")
                for q in range(4):
                    mf16(q)
            else:
                for u, q in order:
                    r = rreg(u, q)
                    a = V_ACC + 4 * (4 * m + q)
                    b = V_P + 2 * (t0 + u)
                    e(f"v_mfma_f32_16x16x16_bf16 v[{a}:{a+3}], v[{r}:{r+1}], v[{b}:{b+1}], v[{a}:{a+3}]")
            if t0 == 13:
                assert not any(x[0] == "O" and x[1] < 4 * m + 4 for x in seq[seq.index(tl):])
                stage(st, m)
        elif kind == "Q":
            tr_reads(sl)
            e("s_waitcnt lgkmcnt(0)")
            tr_end(f"Q{t}")
            st.busy.discard(sl)
            st.top_up(nflq if t < 8 else nflt)
            pv_mfma(V_XR + 2 * t, t == 0)
        elif kind == "P":
            st.release(tl, nfl)
        else:
            j, half = t >> 1, t & 1
            assert all(a >= 40 * j + 40 or p in done for p, a in st.park.items())
            for nt in range(10):
                a = (j * 10 + nt) * 4 + 2 * half
                e(f"ds_read_b64_tr_b16 a[{a}:{a+1}], v{V_WA} offset:{sl*SLOT + 32*nt}")
            e("s_waitcnt lgkmcnt(0)")
            tr_end(f"O{t}" if t in (0, 5, 6, 11) else "Ox")
            st.release(tl, nflo if t < 10 else nfl)
        done.add(tl)

    def group(gi):
        done.clear()
        st = Stream(*plans[gi])
        st.next = 6
        st.busy.add(st.slot[("Q", 0)])
        cx.e.vm = list(first_vm)
        st.top_up(nflq)
        late_setup(gi)
        for p in range(10):
            st.wait_tile(("Q", p), nflq)
            consume(st, ("Q", p))
        reduce_partials(f"L_qred_{gi}", st)
        for j in range(6):
            cx.e(f"ds_read_b128 v[{V_QB+4*j}:{V_QB+4*j+3}], v{V_BR} offset:{64*j}")
        cx.e(f"v_mov_b32 v{V_M}, 0xff800000")
        st.sprinkle()
        cx.e("s_waitcnt lgkmcnt(0)")
        tr("qrdy")
        for pos in range(MERGE):
            tl = seqs[gi][pos]
            cx.e.c(f"consume {tl[0]}{tl[1]}")
            st.wait_tile(tl, nflo if tl[0] == "O" and 0 < tl[1] < 11 else nfl)
            consume(st, tl)
            if pos == 0:
                post_q_setup()
        return st

    done = set()
    head = cx.e
    for gi in range(1, len(groups)):
        head(f"s_cmp_eq_u32 s{S_G}, {gi}")
        head(f"s_cbranch_scc1 L_grp_{gi}")
    paths = []
    for gi in range(len(groups)):
        cx.e = E()
        paths.append((group(gi), cx.e))
    left = min(len(st.flat) - st.next for st, _ in paths)
    for st, em in paths:
        cx.e = em
        while len(st.flat) - st.next > left:
            st.gated(nfl)
        em.wait_vm("tagst")
    n = max(len(em.vm) for _, em in paths)
    X = paths[0][0].next
    for st, em in paths:
        assert st.busy == paths[0][0].busy and st.flat[st.next - n:] == paths[0][0].flat[X - n:]
    e = cx.e = head
    for gi, (st, em) in enumerate(paths):
        if gi:
            e(f"L_grp_{gi}:")
        e.lines += em.lines
        if gi < len(paths) - 1:
            e("s_branch L_merge")
    e("L_merge:")
    st = paths[0][0]
    st.park = {}
    e.vm = list(st.flat[X - n:X])

    hooks = {}
    def h_tagload():
        e.vmop(f"buffer_load_dword v{V_TK}, off, s[{R_DBG}:{R_DBG+3}], s{S_CO} sc1", "tagld")
        hooks[seq.index(st.next_tile())] = h_tagcheck
    def h_tagcheck():
        assert "tagld" not in e.vm
        e(f"s_mov_b32 s{S_SPIN}, {spin_max}")
        e("L_spin:")
        e(f"v_readfirstlane_b32 s{S_T0}, v{V_TK}")
        e(f"s_sub_u32 s{S_SPIN}, s{S_SPIN}, 1")
        e("s_cbranch_scc1 L_spin_done")
        e(f"s_cmp_lg_u32 s{S_T0}, 0")
        e("s_cbranch_scc1 L_spin_done")
        e(f"buffer_load_dword v{V_TK}, off, s[{R_DBG}:{R_DBG+3}], s{S_CO} sc1")
        e("s_waitcnt vmcnt(0)")
        e("s_branch L_spin")
        e("L_spin_done:")
        for r in range(4):
            e(f"s_bfe_u32 s{S_TG+r}, s{S_T0}, {0x80000 + 8*r:#x}")
    hooks[max(MERGE, seq.index(("V", 4)))] = h_tagload
    plain_issue = st.issue_next
    def issue_then_warm():
        plain_issue()
        if warm and st.next == len(st.flat) - (warm - 1):
            e.c("pull the inbox lines written so far into L2")
            for i in range(4):
                e.vmop(f"buffer_load_dwordx4 v[{V_S+40+4*i}:{V_S+43+4*i}], v{V_IA}, s[{R_RD}:{R_RD+3}], 0 offen offset:{1024*i} {f_poll}", "warm")
    st.issue_next = issue_then_warm
    for pos in range(MERGE, len(seq)):
        tl = seq[pos]
        if pos == len(seq) - tail_from:
            e.c("the rest of the kernel sits in one 4 KiB code page")
            e("s_branch L_tailpage")
            e(".p2align 12")
            e("L_tailpage:")
        k = pos - (len(seq) - hpos)
        if 0 <= k < len(helps):
            assert st.next == len(st.flat)
            e.c("touch the neighbour's last tiles: whichever workgroup comes second finds them in L2")
            for m, t0 in helps[k]:
                sl = [z for z in range(NSLOT) if z not in st.busy][0]
                st.busy.add(sl)
                for i in range(6):
                    if i & 1 == 0:
                        key_tile_offset(t0 + (i >> 1), 128 * m, S_PK)
                    e(f"s_add_u32 m0, s{S_RING}, {sl*SLOT + i*1024}")
                    e("s_nop 0")
                    e.vmop(f"buffer_load_dwordx4 v{V_CV + (i & 1)}, s[{R_PV}:{R_PV+3}], s{S_OFF} offen {f_last} lds", "help")
        e.c(f"consume {tl[0]}{tl[1]}")
        if fast and tl == seq[-1]:
            assert st.next == len(st.flat)
            e.wait_vm((tl, 3))
        else:
            st.wait_tile(tl, nfle if nfle and tl[0] == "C" else nfl)
        if pos in hooks:
            hooks.pop(pos)()
        consume(st, tl)
    assert st.next == len(st.flat) and not hooks, hooks

    if not ncol:
        e.c("output projection of this head")
        reduce_partials("L_ored", None)
        tr_begin()
        for j in range(6):
            e(f"ds_read2_b64 v[{V_QB+4*j}:{V_QB+4*j+3}], v{V_BO} offset0:{8*j} offset1:{8*j+4}")
        e("s_waitcnt lgkmcnt(0)")
        tr_end("obr")
        final_projection(list(range(6)), {j: V_QB + 4 * j for j in range(6)})
    tr("sent")
    if ackwait == 2:
        e("s_waitcnt vmcnt(0)")
        e("s_barrier")
    NL = 4 if half else 8
    e(f"s_cmp_ge_u32 s{S_CT}, {80 if half else 40}")
    e("s_cbranch_scc1 L_fin")
    e.c("reduce one 16-column tile over the 32 heads")
    e(f"s_mov_b32 s{S_SPIN}, {spin_max}")
    D = V_S
    A = V_RD
    if ackwait:
        e("s_waitcnt vmcnt(0)")
    e("L_poll:")
    for i in range(NL):
        e(f"buffer_load_dwordx4 v[{D+4*i}:{D+4*i+3}], v{V_IA + (i >> 2)}, s[{R_RD}:{R_RD+3}], 0 offen offset:{1024*(i & 3)} {f_poll}")
    for i in range(NL):
        e(f"s_waitcnt vmcnt({NL-1-i})")
        d = D + 4 * i
        for r in range(4):
            e(f"v_xor_b32 v{d+r}, s{S_TG+r}, v{d+r}")
        if i == 0:
            e(f"v_or3_b32 v{A+4}, v{d}, v{d+1}, v{d+2}")
            e(f"v_or_b32 v{A+4}, v{A+4}, v{d+3}")
        else:
            e(f"v_or3_b32 v{A+4}, v{A+4}, v{d}, v{d+1}")
            e(f"v_or3_b32 v{A+4}, v{A+4}, v{d+2}, v{d+3}")
            for r in range(4):
                e(f"v_add_f32 v{A+r}, v{A+r if i > 1 else D+r}, v{d+r}")
    e(f"v_and_b32 v{A+4}, 0xff, v{A+4}")
    e(f"v_cmp_ne_u32 vcc, 0, v{A+4}")
    e(f"s_sub_u32 s{S_SPIN}, s{S_SPIN}, 1")
    e("s_cbranch_scc1 L_ready")
    e("s_cbranch_vccnz L_poll")
    e("L_ready:")
    if trace == 3:
        e(f"v_writelane_b32 v{V_TR}, s{S_SPIN}, 60")
        tr("rdy")
    e(f"v_permlane32_swap_b32 v{A}, v{A+1}")
    e(f"v_permlane32_swap_b32 v{A+2}, v{A+3}")
    e("s_nop 0")
    e(f"v_add_f32 v{A}, v{A}, v{A+1}")
    e(f"v_add_f32 v{A+2}, v{A+2}, v{A+3}")
    e("s_nop 1")
    e(f"v_permlane16_swap_b32 v{A}, v{A+2}")
    e("s_nop 0")
    e(f"v_add_f32 v{A}, v{A}, v{A+2}")
    if half:
        e("s_nop 1")
        e(f"v_add_f32_dpp v{A}, v{A}, v{A} row_ror:8 row_mask:0xf bank_mask:0xf")
    e(f"v_cvt_pk_bf16_f32 v{A}, v{A}, v{A}")
    e(f"buffer_store_short v{A}, v{V_OA}, s[{R_OUT}:{R_OUT+3}], 0 offen {f_out}")
    e("L_fin:")
    if dbgtime:
        e("s_waitcnt vmcnt(0)")
        e("s_memrealtime s[92:93]")
        if dbgtime == "end":
            e("s_memrealtime s[90:91]")
        e("s_waitcnt lgkmcnt(0)")
        e(f"s_sub_u32 s94, s90, s{S_NC}")
        e("s_lshl_b32 s94, s94, 1")
        e("s_add_u32 s94, s94, s92")
        e("L_stretch:")
        e("s_memrealtime s[96:97]")
        e("s_waitcnt lgkmcnt(0)")
        e("s_sub_u32 s96, s96, s94")
        e("s_cmp_lt_i32 s96, 0")
        e("s_cbranch_scc1 L_stretch")
    if trace:
        e("s_waitcnt vmcnt(0)")
        e("s_memtime s[94:95]")
        tr("end")
        e("s_sub_u32 s94, s94, s96")
        e(f"v_writelane_b32 v{V_TR}, s94, 61")
        e(f"s_getreg_b32 s{S_T0}, hwreg(HW_REG_XCC_ID)")
        e(f"v_writelane_b32 v{V_TR}, s{S_T0}, 63")
        e(f"s_lshl_b32 s{S_T0}, s2, 2")
        e(f"s_add_u32 s{S_T0}, s{S_T0}, s{S_W}")
        e(f"s_lshl_b32 s{S_T0}, s{S_T0}, 8")
        e(f"s_add_u32 s{S_T0}, s{S_T0}, 0x2000000")
        srd(e, R_OUT, S_WS, S_T0, 256)
        e(f"v_lshlrev_b32 v{T+4}, 2, v{V_L}")
        e(f"buffer_store_dword v{V_TR}, v{T+4}, s[{R_OUT}:{R_OUT+3}], 0 offen")
        assert len(TRACE_NAMES) <= 60, len(TRACE_NAMES)
    e("L_end:")
    e("s_endpgm")

    return f"""; Fused q-projection + sliding-window attention + output projection for B=8, Sq=4, D=640, H=32, Dh=192, W=1024.
;
;     Four start orders (by batch) stagger this L2-bound phase in time; K tiles fetched earlier wait in LDS or AGPRs.
;  3. o = p @ V; the wo slice of the head is transposed into AGPRs in one burst per start order. The last 96 keys of each wave are read by
; @launch grid=(256,1,1) block=(256,1,1) lds={LDS_BYTES}
.amdgcn_target "amdgcn-amd-amdhsa--gfx950"
.text
.globl {KN}
.p2align 12
.p2align 8
.type {KN},@function
{e.text()}
.section .rodata,"a"
.p2align 6
.amdhsa_kernel {KN}
  .amdhsa_next_free_vgpr 496
  .amdhsa_next_free_sgpr 102
  .amdhsa_accum_offset 256
  .amdhsa_group_segment_fixed_size 0
  .amdhsa_kernarg_size 64
  .amdhsa_user_sgpr_count 2
  .amdhsa_user_sgpr_kernarg_segment_ptr 1
  .amdhsa_system_sgpr_workgroup_id_x 1
  .amdhsa_float_denorm_mode_32 {3 if denorm else 0}
.end_amdhsa_kernel
"""

if __name__ == "__main__":
    kw = eval("dict(" + (sys.argv[1] if len(sys.argv) > 1 else "") + ")")
    sys.stdout.write(gen(**kw))
```
